```python
import torch

def _softmax(x, axis=-1):
    return torch.softmax(x, dim=axis)
def _gelu(x):
    return torch.nn.functional.gelu(x, approximate="tanh")
def _silu(x):
    return torch.nn.functional.silu(x)
def _sigmoid(x):
    return torch.sigmoid(x)
def _layernorm(x, axis=-1, eps=1e-5):
    m = x.mean(dim=axis, keepdim=True)
    v = x.var(dim=axis, keepdim=True, unbiased=False)
    return (x - m) / torch.sqrt(v + eps)
def _scatter_add(tgt, idx, src, axis=0):
    return tgt.clone().index_add_(axis, idx, src)
def _segment_sum(src, seg, n):
    out = torch.zeros((n,) + src.shape[1:], dtype=src.dtype)
    return out.index_add_(0, seg, src)
def _pad(x, pw):
    flat = tuple(v for pair in reversed(pw) for v in pair)
    return torch.nn.functional.pad(x, flat)

kernel_name = 'interleave_layers__gqa_block_cached__gqa_block_cached__decode'

def setup_inputs():

    _w = (lambda a: (lambda t: t.to(torch.bfloat16) if t.is_floating_point() else t)(torch.as_tensor(a)))
    def _A_setup():
        B, Sq, D = 4, 1, 640
        Hq, Hkv, Sk, Dh = 32, 32, 4096, 128
        assert Hq % Hkv == 0, (Hq, Hkv)
        return {
            "x": _w((lambda *s: torch.randn(*s, dtype=torch.bfloat16) * 0.1)(B, Sq, D)),
            "k_cache": _w((lambda *s: torch.randn(*s, dtype=torch.bfloat16) * 0.8)(B, Hkv, Sk, Dh)),
            "v_cache": _w((lambda *s: torch.randn(*s, dtype=torch.bfloat16) * 3.2)(B, Hkv, Sk, Dh)),
            "wq": _w((lambda *s: torch.randn(*s, dtype=torch.bfloat16) * 0.8)(D, Hq * Dh) * (D ** -0.5)),
            "wo": _w((lambda *s: torch.randn(*s, dtype=torch.bfloat16) * 3.2)(Hq * Dh, D) * ((Hq * Dh) ** -0.5)),
        }
    _A_in = _A_setup()

    def _B_setup():
        B, Sq, D = 4, 1, 640
        Hq, Hkv, Sk, Dh = 32, 32, 4096, 128
        assert Hq % Hkv == 0, (Hq, Hkv)
        return {
            "x": _w((lambda *s: torch.randn(*s, dtype=torch.bfloat16) * 0.1)(B, Sq, D)),
            "k_cache": _w((lambda *s: torch.randn(*s, dtype=torch.bfloat16) * 1.6)(B, Hkv, Sk, Dh)),
            "v_cache": _w((lambda *s: torch.randn(*s, dtype=torch.bfloat16) * 1.6)(B, Hkv, Sk, Dh)),
            "wq": _w((lambda *s: torch.randn(*s, dtype=torch.bfloat16) * 1.6)(D, Hq * Dh) * (D ** -0.5)),
            "wo": _w((lambda *s: torch.randn(*s, dtype=torch.bfloat16) * 1.6)(Hq * Dh, D) * ((Hq * Dh) ** -0.5)),
        }
    _B_in = _B_setup()

    return {
        "A_x": _A_in["x"],
        "A_k_cache": _A_in["k_cache"],
        "A_v_cache": _A_in["v_cache"],
        "A_wq": _A_in["wq"],
        "A_wo": _A_in["wo"],
        "B_x": _B_in["x"],
        "B_k_cache": _B_in["k_cache"],
        "B_v_cache": _B_in["v_cache"],
        "B_wq": _B_in["wq"],
        "B_wo": _B_in["wo"],
    }

def reference(A_x, A_k_cache, A_v_cache, A_wq, A_wo, B_x, B_k_cache, B_v_cache, B_wq, B_wo):
    def _A_ref(x, k_cache, v_cache, wq, wo):
        B, Sq, D = x.shape
        Hq, Dh = 32, 128
        Hkv = k_cache.shape[1]
        rep = Hq // Hkv
        q = (lambda x, *d: x.permute(*d))((x @ wq).reshape(B, Sq, Hq, Dh), 0, 2, 1, 3)
        k = (lambda x, n, axis: torch.repeat_interleave(x, n, dim=axis))(k_cache, rep, axis=1)
        v = (lambda x, n, axis: torch.repeat_interleave(x, n, dim=axis))(v_cache, rep, axis=1)
        scores = torch.einsum("bhqd,bhkd->bhqk", q, k) * (Dh ** -0.5)
        p = _softmax(scores, axis=-1)
        o = torch.einsum("bhqk,bhkd->bhqd", p, v)
        return (lambda x, *d: x.permute(*d))(o, 0, 2, 1, 3).reshape(B, Sq, Hq * Dh) @ wo

    def _B_ref(x, k_cache, v_cache, wq, wo):
        B, Sq, D = x.shape
        Hq, Dh = 32, 128
        Hkv = k_cache.shape[1]
        rep = Hq // Hkv
        q = (lambda x, *d: x.permute(*d))((x @ wq).reshape(B, Sq, Hq, Dh), 0, 2, 1, 3)
        k = (lambda x, n, axis: torch.repeat_interleave(x, n, dim=axis))(k_cache, rep, axis=1)
        v = (lambda x, n, axis: torch.repeat_interleave(x, n, dim=axis))(v_cache, rep, axis=1)
        scores = torch.einsum("bhqd,bhkd->bhqk", q, k) * (Dh ** -0.5)
        p = _softmax(scores, axis=-1)
        o = torch.einsum("bhqk,bhkd->bhqd", p, v)
        return (lambda x, *d: x.permute(*d))(o, 0, 2, 1, 3).reshape(B, Sq, Hq * Dh) @ wo

    x = A_x
    x = x + _A_ref(_layernorm(x, axis=-1), A_k_cache, A_v_cache, A_wq, A_wo)
    x = x + _B_ref(_layernorm(x, axis=-1), B_k_cache, B_v_cache, B_wq, B_wo)
    x = x + _A_ref(_layernorm(x, axis=-1), A_k_cache, A_v_cache, A_wq, A_wo)
    x = x + _B_ref(_layernorm(x, axis=-1), B_k_cache, B_v_cache, B_wq, B_wo)
    return x
```

```python
import re

TRANS = ("v_exp_f32", "v_log_f32", "v_rcp_f32", "v_rsq_f32", "v_sqrt_f32", "v_sin_f32", "v_cos_f32")


def split_ops(s):
    ops, depth, cur = [], 0, ""
    for ch in s + ",":
        if ch in "[(":
            depth += 1
        elif ch in "])":
            depth -= 1
        if ch == "," and depth == 0:
            ops.append(cur.strip())
            cur = ""
        else:
            cur += ch
    return [o for o in ops if o]


def regs_of(tok, kind):
    tok = tok.split()[0] if tok.split() else tok
    tok = tok.lstrip("-")
    if tok.startswith("abs(") or tok.startswith("|"):
        tok = tok.strip("|").replace("abs(", "").rstrip(")")
    m = re.fullmatch(kind + r"(\d+)", tok)
    if m:
        return [int(m.group(1))]
    m = re.fullmatch(kind + r"\[(\d+):(\d+)\]", tok)
    if m:
        return list(range(int(m.group(1)), int(m.group(2)) + 1))
    return []


def sregs_of(tok):
    t = tok.split()[0] if tok.split() else tok
    if t == "vcc":
        return ["vcc"]
    return regs_of(tok, "s")


def V(a, n=1):
    return "v%d" % a if n == 1 else "v[%d:%d]" % (a, a + n - 1)


def S(a, n=1):
    return "s%d" % a if n == 1 else "s[%d:%d]" % (a, a + n - 1)


class Asm:
    def __init__(self):
        self.lines = []
        self.st = 0
        self.vw = {}
        self.mfd = {}
        self.mc = {}
        self.sw = {}
        self.m0 = -99
        self.stw = {}
        self.nlabel = 0
        self.vmq = []

    def raw(self, text):
        self.lines.append(text)

    def comment(self, text):
        self.lines.append("    ; " + text)

    def newlabel(self, base="L"):
        self.nlabel += 1
        return "%s_%d" % (base, self.nlabel)

    def label(self, name):
        self.lines.append(name + ":")

    def nop(self, n):
        while n > 0:
            k = min(n, 16)
            self.lines.append("    s_nop %d" % (k - 1))
            self.st += k
            n -= k

    def drain(self):
        need = 0
        for r, (st, kind) in self.vw.items():
            d = 8 if kind == "mfma" else 2
            need = max(need, st + d + 1 - (self.st + 1))
        for r, st in self.mc.items():
            need = max(need, st + 3 + 1 - (self.st + 1))
        for r, st in self.stw.items():
            need = max(need, st + 2 + 1 - (self.st + 1))
        for r, st in self.sw.items():
            if r != "vcc":
                need = max(need, st + 5 + 1 - (self.st + 1))
        need = max(need, self.m0 + 1 + 1 - (self.st + 1))
        if need > 0:
            self.nop(need)

    def __call__(self, text, tag=None):
        text = text.strip()
        parts = text.split(None, 1)
        mn = parts[0]
        ops = split_ops(parts[1]) if len(parts) > 1 else []
        need = 0

        def after(st, d):
            nonlocal need
            need = max(need, st + d + 1)

        vr, vwr = [], []
        is_valu = mn.startswith("v_") and not mn.startswith("v_mfma")
        is_mfma = mn.startswith("v_mfma")
        is_vmem = mn.startswith("buffer_") or mn.startswith("global_")
        is_ds = mn.startswith("ds_")
        swr = []
        if is_mfma:
            d = regs_of(ops[0], "v")
            a = regs_of(ops[1], "v")
            b = regs_of(ops[2], "v")
            c = regs_of(ops[3], "v")
            for r in a + b:
                if r in self.vw:
                    st, kind = self.vw[r]
                    after(st, 8 if kind == "mfma" else 2)
            for r in c:
                if r in self.vw:
                    st, kind = self.vw[r]
                    if kind == "mfma":
                        if self.mfd.get(r) != (c[0], len(c), mn):
                            after(st, 6)
                    else:
                        after(st, 2)
            for r in d:
                if r in self.vw and r not in c:
                    st, kind = self.vw[r]
                    if kind == "mfma":
                        after(st, 6)
                if r in self.stw:
                    after(self.stw[r], 2)
            if need > self.st:
                self.nop(need - self.st)
            self.lines.append("    " + text)
            for r in c:
                self.mc[r] = self.st
            for r in d:
                self.vw[r] = (self.st, "mfma")
                self.mfd[r] = (d[0], len(d), mn)
            self.st += 1
            return
        if is_valu:
            dpp = "_dpp" in mn
            perm = mn.startswith("v_permlane")
            if mn.startswith("v_cmp"):
                swr = sregs_of(ops[0])
                srcs = ops[1:]
            elif mn.startswith("v_readlane") or mn.startswith("v_readfirstlane"):
                swr = sregs_of(ops[0])
                srcs = ops[1:]
            elif perm:
                vwr = regs_of(ops[0], "v") + regs_of(ops[1], "v")
                srcs = ops
            else:
                vwr = regs_of(ops[0], "v")
                srcs = ops[1:]
                if mn.startswith("v_fmac") or mn.startswith("v_writelane") or dpp:
                    srcs = ops
            for o in srcs:
                vr += regs_of(o, "v")
            for r in vr:
                if r in self.vw:
                    st, kind = self.vw[r]
                    if kind == "mfma":
                        after(st, 8)
                    else:
                        if dpp or perm:
                            after(st, 2)
                        if mn.startswith("v_readlane") or mn.startswith("v_readfirstlane"):
                            after(st, 1)
                        if kind == "trans":
                            after(st, 1)
            for o in srcs:
                for r in sregs_of(o):
                    if r in self.sw:
                        after(self.sw[r], 4 if ("lane" in mn) else 2)
            if mn.startswith("v_cndmask") and len(ops) == 3 and "vcc" in self.sw:
                after(self.sw["vcc"], 2)
            for r in vwr:
                if r in self.vw and self.vw[r][1] == "mfma":
                    after(self.vw[r][0], 8)
                if r in self.mc:
                    after(self.mc[r], 3)
                if r in self.stw:
                    after(self.stw[r], 2)
        elif is_vmem or is_ds:
            lds_dma = is_vmem and re.search(r"\blds\b", text) is not None
            is_load = ("_load" in mn or mn.startswith("ds_read")) and not lds_dma
            if is_load:
                vwr = regs_of(ops[0], "v")
                srcs = ops[1:]
            else:
                srcs = ops
            for o in srcs:
                vr += regs_of(o, "v")
            for r in vr + vwr:
                if r in self.vw and self.vw[r][1] == "mfma":
                    after(self.vw[r][0], 8)
            for r in vwr:
                if r in self.stw:
                    after(self.stw[r], 1)
                if r in self.mc:
                    after(self.mc[r], 3)
            if is_vmem:
                for o in srcs:
                    for r in sregs_of(o):
                        if r in self.sw:
                            after(self.sw[r], 5)
                if lds_dma:
                    after(self.m0, 1)
        elif mn in ("s_branch", "s_setpc_b64", "s_call_b64", "s_swappc_b64") or mn.startswith("s_cbranch"):
            self.drain()
        elif mn.startswith("s_"):
            for o in ops[1:] if not mn.startswith("s_cmp") else ops:
                for r in sregs_of(o):
                    if r in self.sw and r != "vcc":
                        after(self.sw[r], 1)
        if need > self.st:
            self.nop(need - self.st)
        self.lines.append("    " + text)
        if is_valu:
            kind = "trans" if mn.replace("_e32", "").replace("_e64", "") in TRANS else "valu"
            for r in vwr:
                self.vw[r] = (self.st, kind)
            for r in swr:
                self.sw[r] = self.st
        elif is_vmem or is_ds:
            for r in vwr:
                self.vw.pop(r, None)
            if is_vmem and "_store" in mn and ("x3" in mn or "x4" in mn):
                for r in regs_of(ops[0], "v"):
                    self.stw[r] = self.st
            if is_vmem:
                self.vmq.append(tag)
        elif mn.startswith("s_") and ops and ops[0] == "m0":
            self.m0 = self.st
        if mn == "s_nop":
            self.st += int(ops[0]) + 1
        else:
            self.st += 1

    def vm_after(self, tag):
        idx = max(i for i, t in enumerate(self.vmq) if t == tag)
        return len(self.vmq) - 1 - idx

    def wait_tag(self, tag):
        n = self.vm_after(tag)
        assert n <= 63
        self("s_waitcnt vmcnt(%d)" % n)

    def text(self):
        return "\n".join(self.lines) + "\n"
```

```python
import sys, os, math, struct
sys.path.insert(0, os.path.dirname(__file__))
from asmlib import Asm, V, S

NAME = "interleave_layers__gqa_block_cached__gqa_block_cached__decode"

P = dict(W=4, DIAG=0, SL1=8, SL2=0, SL3=8, D1=0, D2=0, D3=0, Q2POS=3)
for a in sys.argv[2:]:
    k, v = a.split("=")
    P[k] = int(v)
W = P["W"]
DIAG = P["DIAG"]


def f32(x):
    return struct.unpack("<I", struct.pack("<f", x))[0]


L_QF = [0, 4, 8, 12]
L_CNT = [16, 20]
L_PART = [64, 64 + 3648]
L_Q = 7360
L_X = 9264
L_OB = 10224
L_EXAV = 10752
L_EXB = 18944
L_VA = 35328
LDS_BYTES = 163840
assert L_VA + 6 * 20480 <= LDS_BYTES
ROWSZ = 180224
COL0 = 32 * ROWSZ
WS_DIAG = 8 << 20
WS_BYTES = 9 << 20
BATCH = 1 << 25
TENSOR = 1 << 27
DPPM = "row_mask:0xf bank_mask:0xf"

a = Asm()

sH, sS, sWv = 3, 4, 5
KA, VA, KB, VB, WS = 44, 48, 52, 56, 80
sNRK, sNRV = 60, 61
sTO = 62
sC = 63
sT = 64
sT2 = 65
sLB = 66
sQM = 70
sDI = 98


def stamp():
    if not DIAG:
        return
    a("s_memrealtime s[96:97]")
    a("s_waitcnt lgkmcnt(0)")
    a("s_lshl_b64 exec, 1, s%d" % sDI)
    a("v_mov_b32 v0, s96")
    a("s_mov_b64 exec, -1")
    a("s_add_u32 s%d, s%d, 1" % (sDI, sDI))


def budget(done, loop, sleep=None):
    a("s_cmp_eq_u32 s%d, 0" % sTO)
    a("s_cbranch_scc1 %s" % done)
    a("s_sub_u32 s%d, s%d, 1" % (sTO, sTO))
    if sleep:
        a("s_sleep %d" % sleep)
    if loop:
        a("s_branch %s" % loop)


def csel(dst, c1, c0):
    a("s_mov_b32 s%d, %d" % (dst, c0))
    a("s_cselect_b32 s%d, %d, s%d" % (dst, c1, dst))


def mfma(d, x, y, c, k16=False):
    if k16:
        a("v_mfma_f32_16x16x16_bf16 %s, %s, %s, %s" % (V(d, 4), V(x, 2), V(y, 2), c))
    else:
        a("v_mfma_f32_16x16x32_bf16 %s, %s, %s, %s" % (V(d, 4), V(x, 4), V(y, 4), c))


def red_ops(D, Sr):
    return ["v_mov_b32_dpp %s, %s quad_perm:[0,0,0,0] %s" % (V(Sr), V(D), DPPM)] + [
        "v_add_f32_dpp %s, %s, %s quad_perm:[%d,%d,%d,%d] %s" % (V(Sr), V(D + r), V(Sr), r, r, r, r, DPPM)
        for r in (1, 2, 3)]


def qk_one(K, qf, D, Sr):
    for t in range(4):
        mfma(D, K + 4 * t, qf + 4 * t, "0" if t == 0 else V(D, 4))
    for op in red_ops(D, Sr):
        a(op)


def qk_burst(groups, qf, Ds, hook=None):
    n = len(groups)
    for i in range(n):
        K, _ = groups[i]
        D = Ds[i % 3]
        r = red_ops(Ds[(i - 2) % 3], groups[i - 2][1]) if i >= 2 else [None] * 4
        for t in range(4):
            mfma(D, K + 4 * t, qf + 4 * t, "0" if t == 0 else V(D, 4))
            if r[t]:
                a(r[t])
        if hook:
            hook(i)
    for i in range(max(0, n - 2), n):
        for op in red_ops(Ds[i % 3], groups[i][1]):
            a(op)


def xlane(op, X, U):
    a("%s_dpp %s, %s, %s row_ror:4 %s" % (op, V(X), V(X), V(X), DPPM))
    a("%s_dpp %s, %s, %s row_ror:8 %s" % (op, V(X), V(X), V(X), DPPM))
    a("v_mov_b32 %s, %s" % (V(U), V(X)))
    a("v_permlane16_swap_b32 %s, %s" % (V(X), V(U)))
    a("%s %s, %s, %s" % (op, V(X), V(X), V(U)))
    a("v_mov_b32 %s, %s" % (V(U), V(X)))
    a("v_permlane32_swap_b32 %s, %s" % (V(X), V(U)))
    a("%s %s, %s, %s" % (op, V(X), V(X), V(U)))


def softmax(Ss, ML, U):
    M, L = ML, ML + 1
    if len(Ss) == 5:
        a("v_max3_f32 %s, %s, %s, %s" % (V(M), V(Ss[0]), V(Ss[1]), V(Ss[2])))
        a("v_max3_f32 %s, %s, %s, %s" % (V(M), V(M), V(Ss[3]), V(Ss[4])))
    else:
        a("v_max_f32 %s, %s, %s" % (V(M), V(Ss[0]), V(Ss[1])))
    xlane("v_max_f32", M, U)
    a("v_mul_f32 %s, s%d, %s" % (V(M), sC, V(M)))
    for s_ in Ss:
        a("v_fma_f32 %s, %s, s%d, -%s" % (V(s_), V(s_), sC, V(M)))
    for s_ in Ss:
        a("v_exp_f32 %s, %s" % (V(s_), V(s_)))
    a("v_add_f32 %s, %s, %s" % (V(L), V(Ss[0]), V(Ss[1])))
    for s_ in Ss[2:]:
        a("v_add_f32 %s, %s, %s" % (V(L), V(L), V(s_)))
    for s_ in Ss:
        a("v_cvt_pk_bf16_f32 %s, %s, %s" % (V(s_), V(s_), V(s_)))


def pv_ops(Pr, AX, AY, MK):
    ax = ["v_and_b32 %s, %s, %s" % (V(AX), V(Pr), V(MK)),
          "v_and_b32 %s, %s, %s" % (V(AX + 1), V(Pr), V(MK + 1)),
          "v_and_b32_dpp %s, %s, %s row_ror:4 %s" % (V(AX + 2), V(Pr), V(MK + 2), DPPM),
          "v_and_b32_dpp %s, %s, %s row_ror:4 %s" % (V(AX + 3), V(Pr), V(MK + 3), DPPM)]
    ay = ["v_and_b32_dpp %s, %s, %s row_ror:12 %s" % (V(AY), V(Pr), V(MK), DPPM),
          "v_and_b32_dpp %s, %s, %s row_ror:12 %s" % (V(AY + 1), V(Pr), V(MK + 1), DPPM),
          "v_and_b32 %s, %s, %s" % (V(AY + 2), V(Pr), V(MK + 2)),
          "v_and_b32 %s, %s, %s" % (V(AY + 3), V(Pr), V(MK + 3))]
    return ax, ay


def pv_seq(groups, ACC, MK, first, pre=None, post=None):
    lo, hi, AX, AY = ACC, ACC + 4, ACC + 8, ACC + 12
    n = len(groups)
    ops = [pv_ops(g[0], AX, AY, MK) for g in groups]
    for o in ops[0][0]:
        a(o)
    for i in range(n):
        Vr = groups[i][1]
        ax, ay = ops[i]
        z = first and i == 0
        a(ay[0]); a(ay[1])
        if pre:
            pre(i)
        mfma(lo, AX, Vr, "0" if z else V(lo, 4))
        a(ay[2]); a(ay[3])
        mfma(hi, AX, Vr + 8, "0" if z else V(hi, 4))
        nx = ops[i + 1][0] if i + 1 < n else [None] * 4
        if nx[0]:
            a(nx[0]); a(nx[1])
        mfma(lo, AY, Vr + 4, V(lo, 4))
        if nx[2]:
            a(nx[2]); a(nx[3])
        mfma(hi, AY, Vr + 12, V(hi, 4))
        if post:
            post(i)


def publish(ACC, ML, U, tmp, vPart, part_off, cnt_expr, ml_expr, tgt, pre_done=False):
    lo, hi = ACC, ACC + 4
    tA, tV, tM, tO = tmp, tmp + 1, tmp + 2, tmp + 3
    a("v_mov_b32 %s, %s" % (V(tA), cnt_expr))
    a("ds_read_b32 %s, %s offset:8" % (V(tV), V(tA)))
    a("v_mov_b32 %s, %s" % (V(tM), ml_expr))
    a("v_mov_b32 %s, 1" % V(tO))
    xlane("v_add_f32", ML + 1, U)
    a("v_permlane32_swap_b32 %s, %s" % (V(lo), V(lo + 2)))
    a("v_permlane32_swap_b32 %s, %s" % (V(lo + 1), V(lo + 3)))
    a("v_permlane32_swap_b32 %s, %s" % (V(hi), V(hi + 2)))
    a("v_permlane32_swap_b32 %s, %s" % (V(hi + 1), V(hi + 3)))
    lp, dn = a.newlabel("ACKL"), a.newlabel("ACKD")
    a("s_waitcnt lgkmcnt(0)")
    a("v_readfirstlane_b32 s%d, %s" % (sT2, V(tV)))
    a("v_add_f32 %s, %s, %s" % (V(lo), V(lo), V(hi + 2)))
    a("v_add_f32 %s, %s, %s" % (V(lo + 1), V(lo + 1), V(hi + 3)))
    a("s_cmp_ge_u32 s%d, %s" % (sT2, tgt))
    a.raw("    s_cbranch_scc1 %s" % dn); a.st += 1
    a.label(lp)
    a("ds_read_b32 %s, %s offset:8" % (V(tV), V(tA)))
    a("s_waitcnt lgkmcnt(0)")
    a("v_readfirstlane_b32 s%d, %s" % (sT2, V(tV)))
    a("s_cmp_ge_u32 s%d, %s" % (sT2, tgt))
    a("s_cbranch_scc1 %s" % dn)
    budget(dn, lp, 2)
    a.label(dn)
    a("ds_write_b64 %s, %s offset:%d" % (V(vPart), V(lo, 2), part_off))
    a("s_mov_b64 exec, 1")
    a("ds_write_b64 %s, %s" % (V(tM), V(ML, 2)))
    a("ds_add_u32 %s, %s" % (V(tA), V(tO)))
    a("s_mov_b64 exec, -1")


def qaddr(voffK, at, t0, t1, dyn=None):
    a("v_and_b32 %s, 0xff, %s" % (V(t0), V(voffK)))
    a("v_mov_b32 %s, 0x100" % V(t1))
    if dyn is not None:
        a("v_add_u32 %s, s%d, %s" % (V(t0), dyn, V(t0)))
        a("v_add_u32 %s, s%d, %s" % (V(t1), dyn, V(t1)))
    for t in range(4):
        a("v_cndmask_b32 %s, %s, %s, %s" % (V(at + t), V(t1), V(t0), S(sQM + 2 * t, 2)))


def lane_consts_masks(lane, MK, t0):
    a("v_and_b32 %s, 1, %s" % (V(t0), V(lane)))
    a("v_lshlrev_b32 %s, 4, %s" % (V(t0), V(t0)))
    a("v_mov_b32 %s, 0xffff" % V(MK + 3))
    a("v_lshlrev_b32 %s, %s, %s" % (V(MK + 3), V(t0), V(MK + 3)))
    a("v_bfe_u32 %s, %s, 1, 2" % (V(t0), V(lane)))
    for r in range(4):
        a("v_cmp_eq_u32 vcc, %d, %s" % (r, V(t0)))
        a("v_cndmask_b32 %s, 0, %s, vcc" % (V(MK + r), V(MK + 3)))


def voffk_of(lane, dst, t0):
    a("v_bfe_u32 %s, %s, 2, 2" % (V(dst), V(lane)))
    a("v_lshlrev_b32 %s, 8, %s" % (V(dst), V(dst)))
    a("v_lshrrev_b32 %s, 4, %s" % (V(t0), V(lane)))
    a("v_lshl_add_u32 %s, %s, 6, %s" % (V(dst), V(t0), V(dst)))
    a("v_and_b32 %s, 3, %s" % (V(t0), V(lane)))
    a("v_lshl_add_u32 %s, %s, 4, %s" % (V(dst), V(t0), V(dst)))


def vpart_of(lane, dst, t0):
    a("v_and_b32 %s, 15, %s" % (V(dst), V(lane)))
    a("v_lshlrev_b32 %s, 5, %s" % (V(dst), V(dst)))
    a("v_bfe_u32 %s, %s, 4, 1" % (V(t0), V(lane)))
    a("v_lshl_add_u32 %s, %s, 4, %s" % (V(dst), V(t0), V(dst)))
    a("v_lshrrev_b32 %s, 5, %s" % (V(t0), V(lane)))
    a("v_lshl_add_u32 %s, %s, 3, %s" % (V(dst), V(t0), V(dst)))


def srd(dst, ptr, nrec):
    a("s_mov_b32 s%d, s%d" % (dst, ptr))
    a("s_and_b32 s%d, s%d, 0xffff" % (dst + 1, ptr + 1))
    a("s_mov_b32 s%d, %s" % (dst + 2, nrec))
    a("s_mov_b32 s%d, 0x20000" % (dst + 3))


a("s_cmp_ge_u32 s2, 256")
a("s_cbranch_scc1 L_END")
a("s_load_dwordx16 s[16:31], s[0:1], 0")
a("s_load_dwordx8 s[32:39], s[0:1], 64")
a("s_load_dwordx2 s[40:41], s[0:1], 96")
a("v_lshrrev_b32 v1, 6, v0")
a("v_and_b32 v47, 63, v0")
a("v_readfirstlane_b32 s%d, v1" % sWv)
a("v_mov_b32 v0, 0")
a("s_and_b32 s%d, s2, 7" % sH)
a("s_lshl_b32 s%d, s%d, 2" % (sH, sH))
a("s_lshr_b32 s6, s2, 3")
a("s_and_b32 s6, s6, 3")
a("s_add_u32 s%d, s%d, s6" % (sH, sH))
a("s_lshr_b32 s%d, s2, 5" % sS)
a("s_mov_b32 s%d, 200000" % sTO)
a("s_mov_b32 s%d, 0x%08x" % (sC, f32(128 ** -0.5 * math.log2(math.e))))
a("s_mov_b32 s%d, 0" % sDI)
for t in range(4):
    m = 0x000F000F << (4 * t)
    a("s_mov_b32 s%d, 0x%08x" % (sQM + 2 * t, m))
    a("s_mov_b32 s%d, 0x%08x" % (sQM + 2 * t + 1, m))
a("s_cmp_lg_u32 s%d, 6" % sWv)
a("s_cbranch_scc1 L_NOINIT")
a("v_lshlrev_b32 v1, 2, v47")
a("v_mov_b32 v2, 0")
a("v_mov_b32 v3, 0x3f803f80")
a("v_lshrrev_b32 v4, 2, v47")
a("v_mul_u32_u24 v4, 272, v4")
a("v_and_b32 v5, 3, v47")
a("v_lshl_add_u32 v4, v5, 2, v4")
a("v_mul_u32_u24 v5, 3648, v47")
a("v_mov_b32 v6, 0xff800000")
a("v_mov_b32 v7, 0")
a("s_mov_b64 exec, 0xffff")
a("ds_write_b32 v1, v2")
a("s_mov_b64 exec, 0xfffffff")
a("ds_write_b32 v4, v2 offset:%d" % (L_Q + 256))
a("s_mov_b64 exec, 3")
a("ds_write_b64 v5, v[6:7] offset:%d" % (L_PART[0] + 3584 + 56))
a("s_mov_b32 exec_lo, -1")
a("s_mov_b32 exec_hi, 0xffff")
a("ds_write_b32 v1, v3 offset:%d" % (L_X + 4 * 192))
a("s_mov_b64 exec, -1")
a.label("L_NOINIT")
a("s_min_u32 s6, s%d, 6" % sWv)
a("s_mul_i32 s6, s6, 20480")
a("s_add_u32 s%d, s6, %d" % (sLB, L_VA))
a("s_cmp_lt_u32 s%d, 6" % sWv)
a("s_cselect_b32 s%d, s%d, 0" % (sLB, sLB))
a("s_lshl_b32 s7, s%d, 20" % sH)
a("s_add_u32 s6, s6, s7")
a("s_lshl_b32 s7, s%d, 17" % sS)
a("s_add_u32 s6, s6, s7")
a("s_sub_u32 s%d, 0x%x, s6" % (sNRK, TENSOR))
a("s_add_u32 s%d, s%d, s%d" % (sNRV, sNRK, sLB))
a("s_waitcnt lgkmcnt(0)")
for dst, ptr, isv in ((KA, 18, 0), (VA, 20, 1), (KB, 28, 0), (VB, 30, 1)):
    a("s_add_u32 s%d, s%d, s6" % (dst, ptr))
    a("s_addc_u32 s%d, s%d, 0" % (dst + 1, ptr + 1))
    if isv:
        a("s_sub_u32 s%d, s%d, s%d" % (dst, dst, sLB))
        a("s_subb_u32 s%d, s%d, 0" % (dst + 1, dst + 1))
    a("s_and_b32 s%d, s%d, 0xffff" % (dst + 1, dst + 1))
    a("s_mov_b32 s%d, s%d" % (dst + 2, sNRV if isv else sNRK))
    a("s_mov_b32 s%d, 0x20000" % (dst + 3))
srd(WS, 40, "0x%x" % WS_BYTES)
a("s_barrier")
a("s_cmp_ge_u32 s%d, 6" % sWv)
a("s_cbranch_scc1 L_COMM")

vK, vL, vPt, MK = 1, 2, 3, 4
Sa = [8, 9, 10, 11, 12]
Sb = [13, 14, 15, 16, 17]
MLb, MLa, vT, vU = 18, 20, 22, 23
D2, D1, D3 = 20, 24, 28
QF = 32
ACC = 32
F = [48, 64, 80]
KBs = [96 + 16 * i for i in range(5)]
VBs = [176 + 16 * i for i in range(5)]
sB, sCur, sNxt, sB1, sQ1, sAk, sMLA, sMLB = 6, 7, 8, 9, 10, 11, 12, 13

voffk_of(47, vK, 46)
a("v_lshlrev_b32 v%d, 4, v47" % vL)
a("v_add_u32 v%d, s%d, v%d" % (vL, sLB, vL))
a("s_lshl_b32 s14, s%d, 9" % sWv)
vpart_of(47, vPt, 46)
a("v_add_u32 v%d, s14, v%d" % (vPt, vPt))
lane_consts_masks(47, MK, 46)
a("s_lshl_b32 s14, s%d, 3" % sWv)
a("s_add_u32 s%d, s14, %d" % (sMLA, L_PART[0] + 3584))
a("s_add_u32 s%d, s14, %d" % (sMLB, L_PART[1] + 3584))

cur_half = [None]


def tile(kind, off, grp, dst, t, tag, pace=True):
    srdn = {"KA": KA, "VA": VA, "KB": KB, "VB": VB}[kind]
    vo = vK if kind[0] == "K" else vL
    key = (kind, off, grp)
    if cur_half[0] != key:
        a("s_add_u32 s%d, s%d, %d" % (sT, off, grp * 4096))
        if dst is None:
            a("s_add_u32 m0, s%d, %d" % (sLB, grp * 4096))
        cur_half[0] = key
    if pace:
        a("s_waitcnt vmcnt(%d)" % (W - 1))
    if dst is None:
        a("buffer_load_dwordx4 v%d, %s, s%d offen offset:%d nt lds" % (vo, S(srdn, 4), sT, t * 1024), tag=tag)
    else:
        a("buffer_load_dwordx4 %s, v%d, %s, s%d offen offset:%d nt" % (V(dst + 4 * t, 4), vo, S(srdn, 4), sT, t * 1024), tag=tag)


class Stream:
    def __init__(self):
        self.acts = []
        self.done = set()

    def act(self, name, tag, fn):
        self.acts.append((name, tag, fn))

    def run_next(self):
        name, tag, fn = self.acts.pop(0)
        if tag is not None:
            a.wait_tag(tag)
        fn()
        self.done.add(name)

    def need(self, name):
        while name not in self.done:
            self.run_next()

    def flush(self):
        while self.acts:
            self.run_next()

    def half(self, kind, off, grp, dst, tag, needs=(), tiles=range(4)):
        for n in needs:
            self.need(n)
        for t in tiles:
            tile(kind, off, grp, dst, t, tag)
            if self.acts:
                tg = self.acts[0][1]
                if tg is None or (tg in a.vmq and tg != tag and a.vm_after(tg) >= W):
                    self.run_next()


def waitq(slot, flag, tgt, dyn=None):
    qaddr(vK, D1, D3, D3 + 1, dyn)
    a("v_mov_b32 %s, 0" % V(D3 + 2))
    lp, dn = a.newlabel("WQL"), a.newlabel("WQD")
    a.label(lp)
    a("ds_read_b32 %s, %s offset:%d" % (V(D3 + 3), V(D3 + 2), flag))
    for t in range(4):
        a("ds_read_b128 %s, %s offset:%d" % (V(QF + 4 * t, 4), V(D1 + t), L_Q + 272 * slot))
    a("s_waitcnt lgkmcnt(0)")
    a("v_readfirstlane_b32 s%d, %s" % (sT2, V(D3 + 3)))
    a("s_cmp_ge_u32 s%d, %s" % (sT2, tgt))
    a.raw("    s_cbranch_scc1 %s" % dn); a.st += 1
    budget(dn, lp, 1)
    a.label(dn)


def stage(i, dst):
    for t in range(4):
        a("ds_read_b128 %s, v%d offset:%d" % (V(dst + 4 * t, 4), vL, i * 4096 + t * 1024))


def dpub(typ, ML):
    publish(ACC, ML, vU, D1, vPt, L_PART[typ], str(L_CNT[typ]), "s%d" % (sMLA if typ == 0 else sMLB), "s%d" % sAk)


def pv_lds_one(i, Pr, stg, first):
    stage(i, stg)
    pv_seq([(Pr, stg)], ACC, MK, first, pre=lambda k: a("s_waitcnt lgkmcnt(0)"))


a("s_mov_b32 s%d, 0" % sB)
a("s_mov_b32 s%d, 0" % sCur)
stamp()
st = Stream()
for i in range(5):
    st.half("VA", sCur, i, None, "pVA%d" % i)
for i in range(5):
    if i == 0:
        st.act("wq", "pKA0", lambda: (stamp(), waitq(0, L_QF[0], "1"), stamp()))
    st.act("qk%d" % i, "pKA%d" % i, lambda i=i: qk_one(F[i % 3], QF, D1, Sb[i]))
for i in range(5):
    st.half("KA", sCur, i, F[i % 3], "pKA%d" % i, needs=(["qk%d" % (i - 3)] if i >= 3 else []))
st.half("KB", sCur, 0, F[0], "KB0", needs=["qk3"])
stage(0, F[2])
st.flush()
stage(1, F[1])
softmax(Sb, MLb, vU)
stg = [F[2], F[1]]


def _pre(i):
    a("s_waitcnt lgkmcnt(%d)" % (4 if i < 4 else 0))


def _post(i):
    if i + 2 < 5:
        stage(i + 2, stg[i % 2])


pv_seq([(Sb[i], stg[i % 2]) for i in range(5)], ACC, MK, True, pre=_pre, post=_post)
a("s_mov_b32 s%d, 0" % sAk)
dpub(0, MLb)
stamp()

a.drain()
a.label("L_TOP")
cur_half[0] = None
a.vmq = ["KB0"] * 4
st = Stream()
st.half("KB", sCur, 1, F[1], "KB1")
st.half("KB", sCur, 2, F[2], "KB2")
a("s_cmp_eq_u32 s%d, 0" % sB)
a("s_cbranch_scc1 L_B0")
stamp()
waitq(6, L_QF[3], "s%d" % sB)
stamp()
order = [3, 4, 0, 1, 2]


def _hook(i):
    if i < 4:
        tile("KB", sCur, 3, KBs[3], i, "KB3", pace=False)


qk_burst([(KBs[g], Sa[g]) for g in order], QF, [D1, D2, D3], hook=_hook)
softmax(Sa, MLa, vU)
pv_seq([(Sa[g], VBs[g]) for g in range(5)], ACC, MK, True)
a("s_lshl_b32 s%d, s%d, 1" % (sAk, sB))
a("s_sub_u32 s%d, s%d, 1" % (sAk, sAk))
dpub(1, MLa)
stamp()
a("s_cmp_eq_u32 s%d, 4" % sB)
a("s_cbranch_scc1 L_DEND")
a("s_branch L_JOIN")
a.label("L_B0")
cur_half[0] = None
del a.vmq[-4:]
for t in range(4):
    tile("KB", sCur, 3, KBs[3], t, "KB3")
a.drain()
a.label("L_JOIN")
cur_half[0] = None
a("s_add_u32 s%d, s%d, 1" % (sB1, sB))
a("s_add_u32 s%d, s%d, 0x%x" % (sNxt, sCur, BATCH))
a("s_mul_i32 s%d, s%d, 272" % (sQ1, sB1))


def moves(i):
    for r in range(0, 16, 2):
        a("v_mov_b64 %s, %s" % (V(KBs[i] + r, 2), V(F[i] + r, 2)))


for i in range(3):
    st.act("mv%d" % i, "KB%d" % i, lambda i=i: moves(i))
st.half("KB", sCur, 4, KBs[4], "KB4")
Q2POS = P["Q2POS"]
for i in range(Q2POS + 1):
    st.half("VB", sCur, i, VBs[i], "VB%d" % i)
st.flush()
a.wait_tag("KB4")
stamp()
waitq(4, L_QF[1], "s%d" % sB1)
stamp()
a("s_cmp_lt_u32 s%d, 4" % sB1)
a("s_cselect_b32 s%d, s%d, 0" % (KA + 2, sNRK))
rest = [("VB", sCur, i, VBs[i], "VB%d" % i, t) for i in range(Q2POS + 1, 5) for t in range(4)]
rest += [("KA", sNxt, 0, F[0], "nKA0", t) for t in range(4)]


def _hook2(i):
    if i == 2:
        k, o, g, d, tg, t = rest.pop(0)
        tile(k, o, g, d, t, tg, pace=False)


qk_burst([(KBs[g], Sa[g]) for g in range(5)], QF, [D1, D2, D3], hook=_hook2)
softmax(Sa, MLa, vU)
for i in range(5):
    st.act("pvb%d" % i, "VB%d" % i, lambda i=i: pv_seq([(Sa[i], VBs[i])], ACC, MK, i == 0))


def _pubB2():
    a("s_lshl_b32 s%d, s%d, 1" % (sAk, sB))
    dpub(1, MLa)
    stamp()


st.act("pubB2", None, _pubB2)
for (k, o, g, d, tg, t) in rest:
    st.half(k, o, g, d, tg, tiles=[t])
extra_tiles = max(0, W - 4)
st.half("KA", sNxt, 1, F[1], "nKA1", tiles=range(extra_tiles))
st.flush()


def _wq1():
    lab = a.newlabel("NOQ1")
    a("s_cmp_eq_u32 s%d, 4" % sB1)
    a("s_cbranch_scc1 %s" % lab)
    a("s_add_u32 s14, s%d, 1" % sB1)
    waitq(0, L_QF[0], "s14", dyn=sQ1)
    a.drain()
    a.label(lab)


st.act("wq1", None, _wq1)
for i in range(5):
    st.act("nqk%d" % i, "nKA%d" % i, lambda i=i: qk_one(F[i % 3], QF, D1, Sb[i]))
st.act("nsm", None, lambda: softmax(Sb, MLb, vU))
st.half("KA", sNxt, 1, F[1], "nKA1", tiles=range(extra_tiles, 4))
for i in range(2, 5):
    st.half("KA", sNxt, i, F[i % 3], "nKA%d" % i, needs=(["nqk%d" % (i - 3)] if i >= 3 else []))
a("s_mov_b32 s%d, s%d" % (KA + 2, sNRK))
R = [F[(5 + i) % 3] for i in range(5)]
for i in range(3):
    st.half("KA", sCur, i, R[i], "rKA%d" % i, needs=["nqk%d" % (i + 2)])
st.flush()
stamp()
waitq(5, L_QF[2], "s%d" % sB1)
stamp()
a("s_cmp_lt_u32 s%d, 4" % sB1)
a("s_cselect_b32 s%d, s%d, 0" % (VA + 2, sNRV))
a("s_cselect_b32 s%d, s%d, 0" % (KB + 2, sNRK))
a.wait_tag("rKA0")
qk_one(R[0], QF, D1, Sa[0])
for t in range(4):
    tile("KA", sCur, 3, R[3], t, "rKA3", pace=False)
a.wait_tag("rKA1")
qk_one(R[1], QF, D1, Sa[1])
st.act("rqk2", "rKA2", lambda: (qk_one(R[2], QF, D1, Sa[2]), stage(0, R[2]), a("s_waitcnt lgkmcnt(0)")))
st.act("rqk3", "rKA3", lambda: (qk_one(R[3], QF, D1, Sa[3]), stage(1, R[3])))
st.half("KA", sCur, 4, R[4], "rKA4")
st.half("VA", sNxt, 0, None, "nVA0", needs=["rqk2"])
st.flush()
a.wait_tag("rKA4")
qk_one(R[4], QF, D1, Sa[4])
stage(2, R[4])
softmax(Sa, MLa, vU)
stg3 = [R[2], R[3], R[4], R[2], R[3]]


def _pre3(i):
    a("s_waitcnt lgkmcnt(%d)" % [4, 8, 8, 4, 0][i])


def _post3(i):
    if i + 3 < 5:
        stage(i + 3, stg3[i + 3])
    if i in (1, 3):
        tile("VA", sNxt, 1, None, (i - 1) // 2, "nVA1", pace=False)


pv_seq([(Sa[i], stg3[i]) for i in range(5)], ACC, MK, True, pre=_pre3, post=_post3)
a("s_lshl_b32 s%d, s%d, 1" % (sAk, sB))
a("s_add_u32 s%d, s%d, 1" % (sAk, sAk))
dpub(0, MLa)
stamp()
for i in range(5):
    st.act("npv%d" % i, "nVA%d" % i, lambda i=i: pv_lds_one(i, Sb[i], F[2], i == 0))
st.half("VA", sNxt, 1, None, "nVA1", tiles=[2, 3])
for i in range(2, 5):
    st.half("VA", sNxt, i, None, "nVA%d" % i)
st.half("KB", sNxt, 0, F[0], "KB0")
st.flush()
a("s_mov_b32 s%d, s%d" % (sB, sB1))
a("s_mov_b32 s%d, s%d" % (sCur, sNxt))
a("s_cmp_eq_u32 s%d, 4" % sB)
a("s_cbranch_scc1 L_TOP")
a("s_lshl_b32 s%d, s%d, 1" % (sAk, sB))
dpub(0, MLb)
stamp()
a("s_branch L_TOP")
a.label("L_DEND")
a("s_branch L_FIN")

a.label("L_COMM")
a("s_setprio 3")
vL8, vML, vML8, vH2a, vH2b, vQw, vG16, vXw1, vXw2, vC = 1, 2, 3, 4, 5, 6, 7, 8, 9, 10
SR, CM = 12, 52
WO, WQ = 96, 176
lane = 47
sRole = 6
sRow, sMy512, sMy128, sCol, sColMy = 7, 8, 9, 10, 11
sH1, sH2, sH3, sXoff, sCntT, sAckV, sFinal, sQoff, sQfl, sQval = 12, 13, 14, 15, 42, 43, 67, 68, 69, 78
sPart, sCntA, sOb, sExPart, sExCnt, sExML, sExBase, sExK, sExAck, sMode = 16, 17, 18, 19, 20, 21, 26, 27, 28, 29
sK, sBc = 30, 31
RA = 100
DBG, WT, OUT = 84, 88, 92
SEL_LO, SEL_HI = 79, 99

a("s_sub_u32 s%d, s%d, 6" % (sRole, sWv))
srd(DBG, 38, "256")
srd(OUT, 36, "5120")
srd(WT, 16, "5120")
a("s_cmp_eq_u32 s%d, 0" % sRole)
a("s_cselect_b32 s36, s32, s22")
a("s_cselect_b32 s37, s33, s23")
a("s_cselect_b32 s38, s24, s34")
a("s_cselect_b32 s39, s25, s35")
csel(sPart, L_PART[0], L_PART[1])
csel(sCntA, L_CNT[0], L_CNT[1])
csel(sOb, L_OB, L_OB + 256)
csel(sExPart, L_PART[1] + 6 * 512, L_PART[0] + 6 * 512)
csel(sExCnt, L_CNT[1], L_CNT[0])
csel(sExML, L_PART[1] + 3584 + 48, L_PART[0] + 3584 + 48)
csel(sExBase, L_EXB, L_EXAV - 8192)
a("s_mul_i32 s%d, s%d, %d" % (sRow, sH, ROWSZ))
a("s_lshl_b32 s%d, s%d, 9" % (sMy512, sS))
a("s_lshl_b32 s%d, s%d, 7" % (sMy128, sS))
a("s_add_u32 s%d, s%d, 4096" % (sMy128, sMy128))
a("s_mul_i32 s%d, s%d, 12288" % (sCol, sS))
a("s_add_u32 s%d, s%d, %d" % (sCol, sCol, COL0))
a("s_mul_i32 s%d, s%d, 384" % (sColMy, sH))
a("s_mov_b32 s%d, 0x05040100" % SEL_LO)
a("s_mov_b32 s%d, 0x07060302" % SEL_HI)
a("v_and_b32 v46, 15, v47")
a("v_lshrrev_b32 v45, 4, v47")
a("v_lshlrev_b32 v%d, 3, v47" % vL8)
a("v_and_b32 v44, 7, v47")
a("v_lshlrev_b32 v%d, 7, v44" % vML)
a("v_add_u32 v%d, 4096, v%d" % (vML, vML))
a("v_lshlrev_b32 v%d, 3, v44" % vML8)
a("s_add_u32 s%d, s%d, 3584" % (sT, sPart))
a("v_add_u32 v%d, s%d, v%d" % (vML8, sT, vML8))
a("v_mul_u32_u24 v44, 3072, v45")
a("v_lshl_add_u32 v%d, v46, 4, v44" % vH2a)
a("v_lshl_add_u32 v%d, v46, 2, v44" % vH2b)
a("v_add_u32 v%d, 256, v%d" % (vH2b, vH2b))
a("v_bfe_u32 v44, v47, 1, 4")
a("v_lshlrev_b32 v%d, 4, v44" % vQw)
a("v_lshrrev_b32 v44, 5, v47")
a("v_lshl_add_u32 v%d, v44, 3, v%d" % (vQw, vQw))
a("v_and_b32 v44, 1, v47")
a("v_lshl_add_u32 v%d, v44, 2, v%d" % (vQw, vQw))
a("v_lshlrev_b32 v%d, 4, v45" % vG16)
a("v_lshlrev_b32 v%d, 3, v46" % vXw1)
a("v_and_b32 v44, 1, v45")
a("v_lshl_add_u32 v%d, v44, 2, v%d" % (vXw1, vXw1))
a("v_lshrrev_b32 v44, 1, v45")
a("v_lshl_add_u32 v%d, v44, 1, v%d" % (vXw1, vXw1))
a("v_lshrrev_b32 v44, 2, v46")
a("v_lshlrev_b32 v%d, 4, v44" % vXw2)
a("v_and_b32 v44, 3, v46")
a("v_lshl_add_u32 v%d, v44, 1, v%d" % (vXw2, vXw2))
a("v_add_u32 v%d, 128, v%d" % (vXw2, vXw2))
a("v_mov_b32 v%d, 0" % vC)
a("v_mov_b32 v%d, 0" % (vC + 1))
stamp()
a("s_cmp_eq_u32 s%d, 0" % sRole)
a("s_cbranch_scc0 L_C1X")
a("v_lshlrev_b32 v44, 4, v47")
for r in range(4):
    a("v_mov_b32 v%d, -1" % (CM + r))
a("s_mul_i32 s%d, s%d, 22528" % (sT, sS))
a("s_add_u32 s%d, s%d, s%d" % (sT, sT, sRow))
for i in range(22):
    if i % 4 == 0 and i:
        a("s_add_u32 s%d, s%d, 4096" % (sT, sT))
    a("buffer_store_dwordx4 %s, v44, %s, s%d offen offset:%d sc1" % (V(CM, 4), S(WS, 4), sT, (i % 4) * 1024))
a("s_lshl_b32 s%d, s%d, 3" % (sT, sH))
a("s_add_u32 s%d, s%d, s%d" % (sT, sT, sS))
a("s_mul_i32 s%d, s%d, 6144" % (sT, sT))
a("s_add_u32 s%d, s%d, %d" % (sT, sT, COL0))
for i in range(6):
    if i % 4 == 0 and i:
        a("s_add_u32 s%d, s%d, 4096" % (sT, sT))
    a("buffer_store_dwordx4 %s, v44, %s, s%d offen offset:%d sc1" % (V(CM, 4), S(WS, 4), sT, (i % 4) * 1024))
a("s_branch L_CWQ")
a.label("L_C1X")
a("v_lshlrev_b32 v44, 1, v46")
a("s_mul_i32 s%d, s%d, 160" % (sT, sS))
for b in range(4):
    a("buffer_load_ushort v%d, v%d, %s, s%d offen offset:%d" % (CM + 2 * b, vXw1, S(WT, 4), sT, b * 1280))
    a("buffer_load_ushort v%d, v44, %s, s%d offen offset:%d" % (CM + 2 * b + 1, S(WT, 4), sT, b * 1280 + 128))
a.label("L_CWQ")
srd(WT, 36, "0x%x" % (640 * 8192))
a("v_lshlrev_b32 v43, 16, v45")
a("v_lshl_add_u32 v43, v46, 4, v43")
a("v_lshlrev_b32 v42, 15, v45")
a("v_lshl_add_u32 v42, v46, 4, v42")
a("s_mul_i32 s%d, s%d, %d" % (sT2, sS, 80 * 8192))
a("s_lshl_b32 s%d, s%d, 8" % (sT, sH))
a("s_add_u32 s%d, s%d, s%d" % (sT2, sT2, sT))
for k in range(3):
    for e in range(8 if k < 2 else 4):
        a("s_add_u32 s%d, s%d, %d" % (sT, sT2, (32 * k + e) * 8192))
        a("buffer_load_dwordx4 %s, v%d, %s, s%d offen nt" % (V(WO + 32 * k + 4 * e, 4), 43 if k < 2 else 42, S(WT, 4), sT))
a("s_waitcnt vmcnt(20)")
a("s_cmp_eq_u32 s%d, 0" % sRole)
a("s_cbranch_scc0 L_C1Y")
a("s_lshl_b32 s%d, s%d, 3" % (sT, sH))
a("s_add_u32 s%d, s%d, s%d" % (sT, sT, sS))
a("v_mov_b32 v44, 1")
a("s_mov_b64 exec, 1")
a("buffer_store_byte v44, v%d, %s, s%d offen sc1" % (vL8, S(DBG, 4), sT))
a("s_mov_b64 exec, -1")
a("s_branch L_CPERM")
a.label("L_C1Y")
for b in range(4):
    a("ds_write_b16 v%d, v%d offset:%d" % (vXw1, CM + 2 * b, L_X + 192 * b))
    a("ds_write_b16 v%d, v%d offset:%d" % (vXw2, CM + 2 * b + 1, L_X + 192 * b))
a.label("L_CPERM")
a("s_waitcnt vmcnt(0)")


def WQF(k, ct):
    return WQ + 32 * k + 4 * ct if k < 2 else WQ + 64 + 2 * ct


for k in range(3):
    for ct in range(8):
        for e in range(0, 8 if k < 2 else 4, 2):
            r0 = WO + 32 * k + 4 * e + ct // 2
            a("v_perm_b32 v%d, v%d, v%d, s%d" % (WQF(k, ct) + e // 2, r0 + 4, r0, SEL_HI if ct & 1 else SEL_LO))
stamp()
a("s_lshl_b32 s%d, s%d, 3" % (sT, sH))
a("v_mov_b32 v44, 0")
a("s_mov_b32 s%d, 0x01010101" % sT2)
a.label("L_RFW")
a("buffer_load_dwordx2 v[42:43], v44, %s, s%d offen sc1" % (S(DBG, 4), sT))
a("s_waitcnt vmcnt(0)")
a("v_and_b32 v42, v42, v43")
a("v_cmp_ne_u32 vcc, s%d, v42" % sT2)
a("s_cbranch_vccz L_RFD")
budget("L_RFD", "L_RFW", 2)
a.label("L_RFD")
stamp()
a("s_sub_u32 s%d, 33, s%d" % (sT, sRole))
a("s_mul_i32 s%d, s%d, 5120" % (sT, sT))
a("s_add_u32 s%d, s%d, s%d" % (sH3, sRow, sT))
a("s_mov_b32 s%d, %d" % (sXoff, L_X + 4 * 192))
a("s_call_b64 %s, R_WQE" % S(RA, 2))
a("s_cmp_eq_u32 s%d, 0" % sRole)
a("s_cbranch_scc1 L_CS1")
for b in range(4):
    a("s_add_u32 s%d, s%d, %d" % (sH3, sRow, (8 * b + 7) * 5120))
    a("s_mov_b32 s%d, %d" % (sXoff, L_X + b * 192))
    a("s_call_b64 %s, R_WQE" % S(RA, 2))
a.label("L_CS1")
a("s_sub_u32 s%d, 33, s%d" % (sT, sRole))
a("s_mul_i32 s%d, s%d, 5120" % (sT, sT))
a("s_add_u32 s%d, s%d, s%d" % (sH3, sRow, sT))
a("s_mov_b32 s%d, 1" % sMode)
a("s_mov_b32 s%d, 0" % sQoff)
a("s_mov_b32 s%d, 0" % sQfl)
a("s_mov_b32 s%d, 0" % sQval)
a("s_call_b64 %s, R_H3" % S(RA, 2))
a("s_mov_b32 s%d, 0" % sMode)
a("s_cmp_eq_u32 s%d, 0" % sRole)
a("s_cbranch_scc1 L_CS2")
for b in range(4):
    a("s_add_u32 s%d, s%d, %d" % (sH3, sRow, (8 * b + 7) * 5120))
    a("s_mov_b32 s%d, %d" % (sQoff, L_Q + 272 * b))
    a("s_mov_b32 s%d, %d" % (sQval, b + 1))
    a("s_call_b64 %s, R_H3" % S(RA, 2))
    if b == 0:
        stamp()
a("s_mov_b32 s%d, 0" % sExK)
a("s_call_b64 %s, R_EXLD" % S(RA, 2))
a("s_mov_b32 s%d, %d" % (sQoff, L_Q))
a("s_mov_b32 s%d, 0" % sExAck)
a("s_call_b64 %s, R_EXPRE" % S(RA, 2))
a("s_call_b64 %s, R_EX" % S(RA, 2))
a.label("L_CS2")
stamp()
a("s_waitcnt vmcnt(0)")
srd(WT, 38, "0x%x" % (4096 * 1280))
a("v_mbcnt_lo_u32_b32 v95, -1, 0")
a("v_mbcnt_hi_u32_b32 v95, -1, v95")
a("v_lshrrev_b32 v94, 4, v95")
a("v_and_b32 v95, 15, v95")
a("v_mul_u32_u24 v94, 5120, v94")
a("v_lshl_add_u32 v93, v95, 1, v94")
a("v_add_u32 v93, 128, v93")
a("v_lshl_add_u32 v94, v95, 3, v94")
a("s_mul_i32 s%d, s%d, %d" % (sT2, sH, 128 * 1280))
a("s_mul_i32 s%d, s%d, 160" % (sT, sS))
a("s_add_u32 s%d, s%d, s%d" % (sT2, sT2, sT))


def WOF(k, t):
    return WO + 20 * k + 4 * t


for rnd in range(2):
    for kk in range(2):
        k = 2 * rnd + kk
        for e in range(8):
            if e % 4 == 0:
                a("s_add_u32 s%d, s%d, %d" % (sT, sT2, (64 * (e // 4) + 16 * k) * 1280))
            a("buffer_load_dwordx2 %s, v94, %s, s%d offen offset:%d nt" % (V(SR + 24 * kk + 2 * e, 2), S(WT, 4), sT, (e % 4) * 1280))
            a("buffer_load_ushort v%d, v93, %s, s%d offen offset:%d nt" % (SR + 24 * kk + 16 + e, S(WT, 4), sT, (e % 4) * 1280))
    a("s_waitcnt vmcnt(0)")
    for kk in range(2):
        k = 2 * rnd + kk
        for e in range(0, 8, 2):
            for t in range(4):
                r0 = SR + 24 * kk + 2 * e + t // 2
                a("v_perm_b32 v%d, v%d, v%d, s%d" % (WOF(k, t) + e // 2, r0 + 2, r0, SEL_HI if t & 1 else SEL_LO))
            r0 = SR + 24 * kk + 16 + e
            a("v_perm_b32 v%d, v%d, v%d, s%d" % (WOF(k, 4) + e // 2, r0 + 1, r0, SEL_LO))
a("v_lshrrev_b32 v44, 1, v%d" % vL8)
a("s_mov_b32 s%d, 0x01010101" % sT2)
a.label("L_AFW")
a("buffer_load_dword v42, v44, %s, 0 offen sc1" % S(DBG, 4))
a("s_waitcnt vmcnt(0)")
a("v_cmp_ne_u32 vcc, s%d, v42" % sT2)
a("s_cbranch_vccz L_AFD")
budget("L_AFD", "L_AFW", 2)
a.label("L_AFD")
stamp()


def chain_params(phase_sgpr):
    a("s_mul_i32 s%d, s%d, 10240" % (sH1, phase_sgpr))
    a("s_add_u32 s%d, s%d, s%d" % (sH1, sH1, sRow))
    a("s_add_u32 s%d, s%d, 5120" % (sH3, sH1))
    a("s_mul_i32 s%d, s%d, 98304" % (sH2, phase_sgpr))
    a("s_add_u32 s%d, s%d, s%d" % (sH2, sH2, sCol))
    a("s_mul_i32 s%d, s%d, 192" % (sXoff, sBc))
    a("s_add_u32 s%d, s%d, %d" % (sXoff, sXoff, L_X))
    a("s_add_u32 s%d, s%d, 1" % (sAckV, sK))
    a("s_mul_i32 s%d, s%d, 7" % (sCntT, sAckV))
    a("s_add_u32 s%d, s%d, 1" % (sQval, sBc))


a("s_mov_b32 s%d, 0" % sK)
a("s_cmp_eq_u32 s%d, 0" % sRole)
a("s_cbranch_scc0 L_C1LOOP")
a("s_mov_b32 s%d, 0" % sExK)
a("s_call_b64 %s, R_EXLD" % S(RA, 2))
a("s_mov_b32 s%d, 0" % sFinal)
a.label("L_C0LOOP")
a("s_lshr_b32 s%d, s%d, 1" % (sBc, sK))
a("s_lshl_b32 s22, s%d, 1" % sK)
chain_params(22)
a("s_bitcmp1_b32 s%d, 0" % sK)
csel(sQoff, L_Q + 272 * 6, L_Q + 272 * 4)
csel(sQfl, L_QF[3], L_QF[1])
a("s_mov_b32 s%d, s%d" % (sExAck, sK))
a("s_call_b64 %s, R_S0" % S(RA, 2))
a("s_call_b64 %s, R_H2" % S(RA, 2))
a("s_call_b64 %s, R_EXPRE" % S(RA, 2))
a("s_call_b64 %s, R_H3" % S(RA, 2))
stamp()
a("s_call_b64 %s, R_EX" % S(RA, 2))
stamp()
a("s_add_u32 s%d, s%d, 1" % (sK, sK))
a("s_cmp_eq_u32 s%d, 8" % sK)
a("s_cbranch_scc1 L_FIN")
a("s_bitcmp1_b32 s%d, 0" % sK)
a("s_cbranch_scc1 L_C0LOOP")
a("s_lshl_b32 s%d, s%d, 24" % (sExK, sK))
a("s_call_b64 %s, R_EXLD" % S(RA, 2))
a("s_branch L_C0LOOP")
a.label("L_C1LOOP")
a("s_lshr_b32 s%d, s%d, 1" % (sBc, sK))
a("s_lshl_b32 s22, s%d, 1" % sK)
a("s_add_u32 s22, s22, 1")
chain_params(22)
a("s_and_b32 s%d, s%d, 1" % (sFinal, sK))
a("s_call_b64 %s, R_S0" % S(RA, 2))
a("s_call_b64 %s, R_H2" % S(RA, 2))
a("s_add_u32 s%d, s%d, 1" % (sK, sK))
a("s_cmp_eq_u32 s%d, 8" % sK)
a("s_cbranch_scc1 L_FIN")
a("s_cmp_eq_u32 s%d, 1" % sFinal)
a("s_cbranch_scc1 L_C1LOOP")
a("s_mov_b32 s%d, %d" % (sQoff, L_Q + 272 * 5))
a("s_mov_b32 s%d, %d" % (sQfl, L_QF[2]))
a("s_lshl_b32 s%d, s%d, 25" % (sExK, sBc))
a("s_mov_b32 s%d, s%d" % (sExAck, sK))
a("s_call_b64 %s, R_EXPRE" % S(RA, 2))
a("s_call_b64 %s, R_H3" % S(RA, 2))
stamp()
a("s_call_b64 %s, R_EX" % S(RA, 2))
stamp()
a("s_cmp_eq_u32 s%d, 3" % sBc)
a("s_cbranch_scc1 L_C1LOOP")
a("s_add_u32 s%d, s%d, 0x%x" % (sExK, sExK, BATCH))
a("s_call_b64 %s, R_EXLD" % S(RA, 2))
a("s_mul_i32 s%d, s%d, 272" % (sQoff, sQval))
a("s_add_u32 s%d, s%d, %d" % (sQoff, sQoff, L_Q))
a("s_add_u32 s%d, s%d, 1" % (sExAck, sK))
a("s_call_b64 %s, R_EXPRE" % S(RA, 2))
a("s_call_b64 %s, R_EX" % S(RA, 2))
a("s_branch L_C1LOOP")


def ret():
    a("s_setpc_b64 %s" % S(RA, 2))


cM, cL, cW, cA = CM + 36, CM + 37, CM + 38, CM + 40
QP = ["quad_perm:[1,0,3,2]", "quad_perm:[2,3,0,1]", "row_half_mirror"]


def comb_w(ml):
    a("v_max_f32_dpp v%d, v%d, v%d %s %s" % (cM, ml, ml, QP[0], DPPM))
    a("v_max_f32_dpp v%d, v%d, v%d %s %s" % (cM, cM, cM, QP[1], DPPM))
    a("v_max_f32_dpp v%d, v%d, v%d %s %s" % (cM, cM, cM, QP[2], DPPM))
    a("v_sub_f32 v%d, v%d, v%d" % (cW, ml, cM))
    a("v_exp_f32 v%d, v%d" % (cW, cW))
    a("v_mul_f32 v%d, v%d, v%d" % (cL, ml + 1, cW))


def comb_o(o, n):
    lsum = ["v_add_f32_dpp v%d, v%d, v%d %s %s" % (cL, cL, cL, q, DPPM) for q in QP]
    for p in range(n):
        for c in range(2):
            d = cA + 2 * (p & 1) + c
            op = "v_mul_f32_dpp" if p < 2 else "v_fmac_f32_dpp"
            a("%s v%d, v%d, v%d row_newbcast:%d %s" % (op, d, cW, o + 2 * p + c, p, DPPM))
        if p in (1, 3, 5):
            a(lsum[(p - 1) // 2])
    a("v_pk_add_f32 %s, %s, %s" % (V(cA, 2), V(cA, 2), V(cA + 2, 2)))


def exact_check(regs, t):
    regs = list(regs)
    a("v_max3_u32 v%d, v%d, v%d, v%d" % (t, regs[0], regs[1], regs[2]))
    i = 3
    while i < len(regs):
        r2 = regs[i + 1] if i + 1 < len(regs) else regs[i]
        a("v_max3_u32 v%d, v%d, v%d, v%d" % (t, t, regs[i], r2))
        i += 2
    a("v_cmp_eq_u32 vcc, -1, v%d" % t)


def row_issue(st_, soff):
    o = SR + 18 * st_
    a("buffer_load_dwordx2 %s, v%d, %s, s%d offen sc1" % (V(o + 16, 2), vML, S(WS, 4), soff))
    for p in range(8):
        a("buffer_load_dwordx2 %s, v%d, %s, s%d offen offset:%d sc1" % (V(o + 2 * p, 2), vL8, S(WS, 4), soff, p * 512))


def row_poll(soff, body, post, delay, stagger, name):
    if delay:
        a("s_sleep %d" % delay)
    row_issue(0, soff)
    if stagger:
        a("s_sleep %d" % stagger)
    row_issue(1, soff)
    a.label(name + "_L")
    for st_ in range(2):
        o = SR + 18 * st_
        body(o)
        a("s_cbranch_vccz %s" % post)
        exact_check(range(o, o + 18), CM + 39)
        a("s_cbranch_vccz %s" % post)
        budget(post, None)
        row_issue(st_, soff)
    a("s_branch %s_L" % name)


a.label("R_S0")
t0, t1, t2, t3, t4 = CM + 20, CM + 21, CM + 22, CM + 34, CM + 35
a("v_add_u32 v%d, s%d, v%d" % (t0, sPart, vL8))
a("v_mov_b32 v%d, s%d" % (t1, sCntA))
a("v_mov_b32 v%d, s%d" % (t3, sAckV))
a("s_add_u32 s%d, s%d, s%d" % (sT, sH1, sMy512))
a("s_add_u32 s23, s%d, s%d" % (sH1, sMy128))
a.label("S0_L")
a("ds_read_b32 v%d, v%d" % (t2, t1))
a("ds_read_b64 %s, v%d" % (V(SR + 16, 2), vML8))
for p in range(7):
    a("ds_read_b64 %s, v%d offset:%d" % (V(SR + 2 * p, 2), t0, p * 512))
a("s_waitcnt lgkmcnt(0)")
a("v_readfirstlane_b32 s%d, v%d" % (sT2, t2))
a("s_cmp_ge_u32 s%d, s%d" % (sT2, sCntT))
a.raw("    s_cbranch_scc1 S0_D"); a.st += 1
budget("S0_D", "S0_L", 1)
a.label("S0_D")
stamp()
a("ds_write_b32 v%d, v%d offset:8" % (t1, t3))
comb_w(SR + 16)
comb_o(SR, 7)
a("v_min_u32 v%d, -2, v%d" % (cM, cM))
a("v_min_u32 v%d, -2, v%d" % (cL, cL))
a("v_min_u32 v%d, -2, v%d" % (cA, cA))
a("v_min_u32 v%d, -2, v%d" % (cA + 1, cA + 1))
a("buffer_store_dwordx2 %s, v%d, %s, s%d offen sc1" % (V(cA, 2), vL8, S(WS, 4), sT))
a("s_mov_b64 exec, 1")
a("buffer_store_dwordx2 %s, v%d, %s, s23 offen sc1" % (V(cM, 2), vL8, S(WS, 4)))
a("s_mov_b64 exec, -1")
tw, tr = SR + 36, SR + 37
a("v_add_u32 v%d, s%d, v%d" % (tw, sOb, vQw))
a("v_add_u32 v%d, s%d, v%d" % (tr, sOb, vG16))
a("s_add_u32 s%d, s%d, s%d" % (sT, sH2, sColMy))


def h1_body(o):
    a("s_waitcnt vmcnt(17)")
    comb_w(o + 16)
    a("s_waitcnt vmcnt(9)")
    comb_o(o, 8)
    a("v_rcp_f32 v%d, v%d" % (cL, cL))
    a("v_mul_f32 v%d, v%d, v%d" % (cA, cA, cL))
    a("v_mul_f32 v%d, v%d, v%d" % (cA + 1, cA + 1, cL))
    a("v_cmp_u_f32 vcc, v%d, v%d" % (cA, cA + 1))


row_poll(sH1, h1_body, "H1_P", P["D1"], P["SL1"], "H1")
a.label("H1_P")
stamp()
AF, DY = CM, CM + 16
a("v_cvt_pk_bf16_f32 v%d, v%d, v%d" % (cA, cA, cA + 1))
a("ds_write_b32 v%d, v%d" % (tw, cA))
for k in range(4):
    a("ds_read_b128 %s, v%d offset:%d" % (V(AF + 4 * k, 4), tr, 64 * k))
for k in range(4):
    a("s_waitcnt lgkmcnt(%d)" % (3 - k))
    for t in range(5):
        mfma(DY + 4 * t, AF + 4 * k, WOF(k, t), "0" if k == 0 else V(DY + 4 * t, 4))
for t in range(4):
    a("v_min_u32 v%d, -2, v%d" % (DY + t, DY + 4 * t))
a("v_min_u32 v%d, -2, v%d" % (DY + 16, DY + 16))
a("s_mov_b64 exec, 0xffff")
a("buffer_store_dwordx4 %s, v%d, %s, s%d offen sc1" % (V(DY, 4), vH2a, S(WS, 4), sT))
a("buffer_store_dword v%d, v%d, %s, s%d offen sc1" % (DY + 16, vH2b, S(WS, 4), sT))
a("s_mov_b64 exec, -1")
ret()

tx1, tx2, xo1, xo2, ta, ONES = CM + 32, CM + 33, CM + 34, CM + 35, CM + 36, CM + 40


def wq_pre():
    a("v_add_u32 v%d, s%d, v%d" % (ta, sXoff, vG16))
    for r in range(4):
        a("v_mov_b32 v%d, 0x3f803f80" % (ONES + r))
    a("s_add_u32 s%d, s%d, s%d" % (sT, sH3, sMy512))
    a("s_add_u32 s23, s%d, s%d" % (sH3, sMy128))


a.label("R_WQE")
wq_pre()
a("s_branch WQ_B")
a.label("R_H2")
a("v_add_u32 v%d, s%d, v%d" % (tx1, sXoff, vXw1))
a("v_add_u32 v%d, s%d, v%d" % (tx2, sXoff, vXw2))
a("ds_read_u16 v%d, v%d" % (xo1, tx1))
a("ds_read_u16 v%d, v%d" % (xo2, tx2))
wq_pre()
a("s_waitcnt lgkmcnt(0)")
a("v_lshlrev_b32 v%d, 16, v%d" % (xo1, xo1))
a("v_lshlrev_b32 v%d, 16, v%d" % (xo2, xo2))
if P["D2"]:
    a("s_sleep %d" % P["D2"])
a.label("H2_L")
for p in range(8):
    a("buffer_load_dwordx4 %s, v%d, %s, s%d offen offset:%d sc1" % (V(SR + 4 * p, 4), vH2a, S(WS, 4), sH2, p * 384))
for p in range(8):
    a("buffer_load_dword v%d, v%d, %s, s%d offen offset:%d sc1" % (SR + 32 + p, vH2b, S(WS, 4), sH2, p * 384))
T = CM


def pk(d, x, y):
    a("v_pk_add_f32 %s, %s, %s" % (V(d, 2), V(x, 2), V(y, 2)))


for q in range(4):
    a("s_waitcnt vmcnt(%d)" % (14 - 2 * q))
    pk(T + 4 * q, SR + 8 * q, SR + 8 * q + 4)
    pk(T + 4 * q + 2, SR + 8 * q + 2, SR + 8 * q + 6)
pk(T, T, T + 4); pk(T + 2, T + 2, T + 6); pk(T + 8, T + 8, T + 12); pk(T + 10, T + 10, T + 14)
pk(T, T, T + 8); pk(T + 2, T + 2, T + 10)
a("s_waitcnt vmcnt(0)")
pk(T + 16, SR + 32, SR + 34); pk(T + 18, SR + 36, SR + 38)
a("v_permlane32_swap_b32 v%d, v%d" % (T, T + 1))
pk(T + 16, T + 16, T + 18)
a("v_permlane32_swap_b32 v%d, v%d" % (T + 2, T + 3))
a("v_add_f32 v%d, v%d, v%d" % (T + 16, T + 16, T + 17))
a("v_add_f32 v%d, v%d, v%d" % (T, T, T + 1))
a("v_mov_b32 v%d, v%d" % (T + 17, T + 16))
a("v_add_f32 v%d, v%d, v%d" % (T + 2, T + 2, T + 3))
a("v_permlane32_swap_b32 v%d, v%d" % (T + 16, T + 17))
a("v_permlane16_swap_b32 v%d, v%d" % (T, T + 2))
a("v_add_f32 v%d, v%d, v%d" % (T + 16, T + 16, T + 17))
a("v_add_f32 v%d, v%d, v%d" % (T, T, T + 2))
a("v_mov_b32 v%d, v%d" % (T + 17, T + 16))
a("v_permlane16_swap_b32 v%d, v%d" % (T + 16, T + 17))
a("v_add_f32 v%d, v%d, v%d" % (T + 16, T + 16, T + 17))
a("v_cmp_u_f32 vcc, v%d, v%d" % (T, T + 16))
a("s_cbranch_vccz H2_P")
exact_check(range(SR, SR + 40), CM + 39)
a("s_cbranch_vccz H2_P")
budget("H2_P", "H2_L", P["SL2"] or None)
a.label("H2_P")
stamp()
a("v_cvt_pk_bf16_f32 v%d, v%d, v%d" % (T, T, T + 16))
a("v_lshlrev_b32 v%d, 16, v%d" % (T + 1, T))
a("v_and_b32 v%d, 0xffff0000, v%d" % (T + 2, T))
a("v_add_f32 v%d, v%d, v%d" % (T + 1, T + 1, xo1))
a("v_add_f32 v%d, v%d, v%d" % (T + 2, T + 2, xo2))
a("v_cvt_pk_bf16_f32 v%d, v%d, v%d" % (T, T + 1, T + 2))
a("s_cmp_eq_u32 s%d, 0" % sFinal)
a.raw("    s_cbranch_scc0 H2_F"); a.st += 1
a("ds_write_b16 v%d, v%d" % (tx1, T))
a("ds_write_b16_d16_hi v%d, v%d" % (tx2, T))
a.label("WQ_B")
XA, DZ, DS2, DS1 = CM + 4, SR, SR + 32, SR + 36
a("ds_read_b128 %s, v%d" % (V(XA, 4), ta))
a("ds_read_b128 %s, v%d offset:64" % (V(XA + 4, 4), ta))
a("ds_read_b64 %s, v%d offset:128" % (V(XA + 8, 2), ta))


for k in range(3):
    a("s_waitcnt lgkmcnt(%d)" % (2 - k))
    mfma(DS2, XA + 4 * k, XA + 4 * k, "0" if k == 0 else V(DS2, 4), k16=(k == 2))
    mfma(DS1, XA + 4 * k, ONES, "0" if k == 0 else V(DS1, 4), k16=(k == 2))
    for ct in range(8):
        mfma(DZ + 4 * ct, XA + 4 * k, WQF(k, ct), "0" if k == 0 else V(DZ + 4 * ct, 4), k16=(k == 2))
a("v_min_u32 v%d, -2, v%d" % (DS2, DS2))
a("v_min_u32 v%d, -2, v%d" % (DS2 + 1, DS1))
a("s_mov_b64 exec, 1")
a("buffer_store_dwordx2 %s, v%d, %s, s23 offen sc1" % (V(DS2, 2), vL8, S(WS, 4)))
a("s_mov_b64 exec, 0xffff")
for hf in range(2):
    for ct in range(4):
        a("v_min_u32 v%d, -2, v%d" % (DZ + 16 * hf + ct, DZ + 16 * hf + 4 * ct))
    a("buffer_store_dwordx4 %s, v%d, %s, s%d offen offset:%d sc1" % (V(DZ + 16 * hf, 4), vH2a, S(WS, 4), sT, 256 * hf))
a("s_mov_b64 exec, -1")
ret()
a.label("H2_F")
a("s_cmp_lg_u32 s%d, 0" % sH)
a("s_cbranch_scc1 H2_R")
a("s_mul_i32 s%d, s%d, 1280" % (sT, sBc))
a("s_mul_i32 s%d, s%d, 160" % (sT2, sS))
a("s_add_u32 s%d, s%d, s%d" % (sT, sT, sT2))
a("v_lshrrev_b32 v%d, 2, v%d" % (T + 1, vL8))
a("buffer_store_short v%d, v%d, %s, s%d offen" % (T, vXw1, S(OUT, 4), sT))
a("s_mov_b64 exec, 0xffff")
a("buffer_store_short_d16_hi v%d, v%d, %s, s%d offen offset:128" % (T, T + 1, S(OUT, 4), sT))
a("s_mov_b64 exec, -1")
a.label("H2_R")
ret()

a.label("R_H3")
Z, zs2, zs1, tq, tf, tv = CM, CM + 8, CM + 9, SR + 36, SR + 37, SR + 38
a("v_add_u32 v%d, s%d, v%d" % (tq, sQoff, vQw))
a("v_mov_b32 v%d, s%d" % (tf, sQfl))
a("v_mov_b32 v%d, s%d" % (tv, sQval))


def h3_body(o):
    a("s_waitcnt vmcnt(17)")
    a("v_add_f32_dpp v%d, v%d, v%d %s %s" % (zs2, o + 16, o + 16, QP[0], DPPM))
    a("v_add_f32_dpp v%d, v%d, v%d %s %s" % (zs1, o + 17, o + 17, QP[0], DPPM))
    a("s_waitcnt vmcnt(9)")
    pk(Z, o, o + 2)
    a("v_add_f32_dpp v%d, v%d, v%d %s %s" % (zs2, zs2, zs2, QP[1], DPPM))
    a("v_add_f32_dpp v%d, v%d, v%d %s %s" % (zs1, zs1, zs1, QP[1], DPPM))
    pk(Z + 2, o + 4, o + 6)
    a("v_add_f32_dpp v%d, v%d, v%d %s %s" % (zs2, zs2, zs2, QP[2], DPPM))
    a("v_add_f32_dpp v%d, v%d, v%d %s %s" % (zs1, zs1, zs1, QP[2], DPPM))
    pk(Z + 4, o + 8, o + 10)
    pk(Z + 6, o + 12, o + 14)
    pk(Z, Z, Z + 2)
    pk(Z + 4, Z + 4, Z + 6)
    pk(Z, Z, Z + 4)
    pk(Z + 2, Z, zs2)
    a("v_cmp_u_f32 vcc, v%d, v%d" % (Z + 2, Z + 3))


_save = exact_check


def exact_check3(regs, t):
    _save(regs, SR + 39)


exact_check = exact_check3
row_poll(sH3, h3_body, "H3_P", P["D3"], P["SL3"], "H3")
exact_check = _save
a.label("H3_P")
a("s_cmp_eq_u32 s%d, 0" % sMode)
a.raw("    s_cbranch_scc0 H3_C"); a.st += 1
a("v_mul_f32 v%d, 0x%08x, v%d" % (zs1, f32(1.0 / 640), zs1))
a("v_mul_f32 v%d, 0x%08x, v%d" % (zs2, f32(1.0 / 640), zs2))
a("v_fma_f32 v%d, -v%d, v%d, v%d" % (zs2, zs1, zs1, zs2))
a("v_max_f32 v%d, 0, v%d" % (zs2, zs2))
a("v_cvt_pk_bf16_f32 v%d, v%d, v%d" % (zs2, zs1, zs2))
a("v_lshlrev_b32 v%d, 16, v%d" % (zs1, zs2))
a("v_and_b32 v%d, 0xffff0000, v%d" % (zs2, zs2))
a("v_add_f32 v%d, 0x%08x, v%d" % (zs2, f32(1e-5), zs2))
a("v_fma_f32 v%d, -v%d, v%d, v%d" % (Z, zs1, vC, Z))
a("v_cvt_pk_bf16_f32 v%d, v%d, v%d" % (zs2, zs2, zs2))
a("v_fma_f32 v%d, -v%d, v%d, v%d" % (Z + 1, zs1, vC + 1, Z + 1))
a("v_and_b32 v%d, 0xffff0000, v%d" % (zs2, zs2))
a("v_sqrt_f32 v%d, v%d" % (zs2, zs2))
a("v_cvt_pk_bf16_f32 v%d, v%d, v%d" % (zs2, zs2, zs2))
a("v_and_b32 v%d, 0xffff0000, v%d" % (zs2, zs2))
a("v_rcp_f32 v%d, v%d" % (zs2, zs2))
a("v_mul_f32 v%d, v%d, v%d" % (Z, Z, zs2))
a("v_mul_f32 v%d, v%d, v%d" % (Z + 1, Z + 1, zs2))
a("v_cvt_pk_bf16_f32 v%d, v%d, v%d" % (Z, Z, Z + 1))
a("ds_write_b32 v%d, v%d" % (tq, Z))
a("ds_write_b32 v%d, v%d" % (tf, tv))
ret()
a.label("H3_C")
a("v_mov_b32 v%d, v%d" % (vC, Z))
a("v_mov_b32 v%d, v%d" % (vC + 1, Z + 1))
ret()

eQF, eST, eD, eS0, eS1, eML, eT, eU, eA16, eK = CM, CM + 16, CM + 32, CM + 36, CM + 37, CM + 38, CM + 40, CM + 41, CM + 42, CM + 43
a.label("R_EXLD")
a("s_waitcnt lgkmcnt(0)")
a("v_lshrrev_b32 v%d, 3, v%d" % (eT, vL8))
voffk_of(eT, eK, eU)
a("v_lshlrev_b32 v%d, 1, v%d" % (eA16, vL8))
a("s_cmp_eq_u32 s%d, 0" % sRole)
a("s_cbranch_scc0 EXLD_A")
for i in range(2):
    a("s_add_u32 s%d, s%d, %d" % (sT, sExK, i * 4096))
    a("s_mov_b32 m0, %d" % (L_EXB + i * 4096))
    for t in range(4):
        a("buffer_load_dwordx4 v%d, %s, s%d offen offset:%d nt lds" % (eK, S(KB, 4), sT, t * 1024))
    a("s_mov_b32 m0, %d" % (L_EXB + 8192 + i * 4096))
    for t in range(4):
        a("buffer_load_dwordx4 v%d, %s, s%d offen offset:%d nt lds" % (eA16, S(VB, 4), sT, t * 1024))
ret()
a.label("EXLD_A")
for i in range(2):
    a("s_add_u32 s%d, s%d, %d" % (sT, sExK, i * 4096))
    a("s_mov_b32 m0, %d" % (L_EXAV + i * 4096))
    for t in range(4):
        a("buffer_load_dwordx4 v%d, %s, s%d offen offset:%d nt lds" % (eA16, S(VA, 4), sT, t * 1024))
ret()

a.label("R_EXPRE")
a("v_lshrrev_b32 v%d, 3, v%d" % (eT, vL8))
voffk_of(eT, eK, eU)
a("v_lshlrev_b32 v%d, 1, v%d" % (eA16, vL8))
a("v_add_u32 v%d, s%d, v%d" % (eA16, sExBase, eA16))
qaddr(eK, eD, eT, eU, dyn=sQoff)
a("s_cmp_eq_u32 s%d, 0" % sRole)
a("s_cbranch_scc0 EXPRE_A")
for t in range(4):
    a("ds_read_b128 %s, v%d offset:%d" % (V(eST + 4 * t, 4), eA16, t * 1024))
ret()
a.label("EXPRE_A")
for t in range(4):
    a("buffer_load_dwordx4 %s, v%d, %s, s%d offen offset:%d nt" % (V(eST + 4 * t, 4), eK, S(KA, 4), sExK, t * 1024))
ret()

a.label("R_EX")
for t in range(4):
    a("ds_read_b128 %s, v%d" % (V(eQF + 4 * t, 4), eD + t))
a("s_cmp_eq_u32 s%d, 0" % sRole)
a("s_cbranch_scc1 EX_B")
a("s_add_u32 s%d, s%d, 4096" % (sT, sExK))
for t in range(4):
    a("buffer_load_dwordx4 %s, v%d, %s, s%d offen offset:%d nt" % (V(SR + 4 * t, 4), eK, S(KA, 4), sT, t * 1024))
a("s_waitcnt vmcnt(4)")
a.label("EX_B")
a("s_waitcnt lgkmcnt(0)")
for t in range(4):
    mfma(eD, eST + 4 * t, eQF + 4 * t, "0" if t == 0 else V(eD, 4))
a("s_waitcnt vmcnt(0)")
a("s_cmp_eq_u32 s%d, 0" % sRole)
a("s_cbranch_scc0 EX_V")
for t in range(4):
    a("ds_read_b128 %s, v%d offset:%d" % (V(SR + 4 * t, 4), eA16, 4096 + t * 1024))
a.label("EX_V")
for t in range(4):
    a("ds_read_b128 %s, v%d offset:%d" % (V(SR + 16 + 4 * t, 4), eA16, 8192 + t * 1024))
for t in range(4):
    a("ds_read_b128 %s, v%d offset:%d" % (V(eST + 4 * t, 4), eA16, 8192 + 4096 + t * 1024))
for op in red_ops(eD, eS0):
    a(op)
a("s_waitcnt lgkmcnt(8)")
for t in range(4):
    mfma(eD, SR + 4 * t, eQF + 4 * t, "0" if t == 0 else V(eD, 4))
a("v_lshrrev_b32 v%d, 3, v%d" % (eT, vL8))
eMK = SR + 32
lane_consts_masks(eT, eMK, eU)
vpart_of(eT, eK, eU)
a("v_add_u32 v%d, s%d, v%d" % (eK, sExPart, eK))
for op in red_ops(eD, eS1):
    a(op)
softmax([eS0, eS1], eML, eU)
a("s_waitcnt lgkmcnt(0)")
pv_seq([(eS0, SR + 16), (eS1, eST)], eQF, eMK, True)
publish(eQF, eML, eU, eD, eK, 0, "s%d" % sExCnt, "s%d" % sExML, "s%d" % sExAck)
ret()

a.label("L_FIN")
if DIAG:
    stamp()
    a("v_mbcnt_lo_u32_b32 v1, -1, 0")
    a("v_mbcnt_hi_u32_b32 v1, -1, v1")
    a("v_lshlrev_b32 v1, 2, v1")
    a("s_lshl_b32 s%d, s%d, 3" % (sT, sH))
    a("s_add_u32 s%d, s%d, s%d" % (sT, sT, sS))
    a("s_lshl_b32 s%d, s%d, 3" % (sT, sT))
    a("s_add_u32 s%d, s%d, s%d" % (sT, sT, sWv))
    a("s_lshl_b32 s%d, s%d, 8" % (sT, sT))
    a("s_add_u32 s%d, s%d, 0x%x" % (sT, sT, WS_DIAG))
    a("buffer_store_dword v0, v1, %s, s%d offen" % (S(WS, 4), sT))
a.label("L_END")
a("s_endpgm")

ref = open(os.path.join(os.path.dirname(__file__), "..", "cdna_kernels", NAME + ".s.ref")).read().splitlines()
head = [l for l in ref if l.startswith(";") and "@launch" not in l and not l.startswith("; Override") and not l.startswith("; grid=")]
out = "\n".join(head) + "\n"
out += "; @launch grid=(256,1,1) block=(512,1,1) lds=%d\n" % LDS_BYTES
out += '.amdgcn_target "amdgcn-amd-amdhsa--gfx950"\n.text\n.globl %s_kernel\n.p2align 8\n.type %s_kernel,@function\n%s_kernel:\n' % (NAME, NAME, NAME)
out += a.text()
out += """.section .rodata,"a"
.p2align 6
.amdhsa_kernel %s_kernel
  .amdhsa_next_free_vgpr 256
  .amdhsa_next_free_sgpr 102
  .amdhsa_accum_offset 256
  .amdhsa_group_segment_fixed_size 0
  .amdhsa_kernarg_size 104
  .amdhsa_user_sgpr_count 2
  .amdhsa_user_sgpr_kernarg_segment_ptr 1
  .amdhsa_system_sgpr_workgroup_id_x 1
  .amdhsa_float_denorm_mode_32 3
.end_amdhsa_kernel
""" % NAME
open(sys.argv[1], "w").write(out)
print("wrote", sys.argv[1], len(a.lines), "lines")
```

```python
import re

TRANS = ("v_exp_f32", "v_log_f32", "v_rcp_f32", "v_rsq_f32", "v_sqrt_f32", "v_sin_f32", "v_cos_f32")


def split_ops(s):
    ops, depth, cur = [], 0, ""
    for ch in s + ",":
        if ch in "[(":
            depth += 1
        elif ch in "])":
            depth -= 1
        if ch == "," and depth == 0:
            ops.append(cur.strip())
            cur = ""
        else:
            cur += ch
    return [o for o in ops if o]


def regs_of(tok, kind):
    tok = tok.split()[0] if tok.split() else tok
    tok = tok.lstrip("-")
    if tok.startswith("abs(") or tok.startswith("|"):
        tok = tok.strip("|").replace("abs(", "").rstrip(")")
    if kind == "v" and tok.startswith("a") and not tok.startswith("abs"):
        return [256 + r for r in regs_of(tok, "a")]
    m = re.fullmatch(kind + r"(\d+)", tok)
    if m:
        return [int(m.group(1))]
    m = re.fullmatch(kind + r"\[(\d+):(\d+)\]", tok)
    if m:
        return list(range(int(m.group(1)), int(m.group(2)) + 1))
    return []


def sregs_of(tok):
    t = tok.split()[0] if tok.split() else tok
    if t == "vcc":
        return ["vcc"]
    return regs_of(tok, "s")


def V(a, n=1):
    p = "v"
    if a >= 256:
        p, a = "a", a - 256
    else:
        assert a + n <= 256
    return "%s%d" % (p, a) if n == 1 else "%s[%d:%d]" % (p, a, a + n - 1)


def S(a, n=1):
    return "s%d" % a if n == 1 else "s[%d:%d]" % (a, a + n - 1)


class Asm:
    def __init__(self):
        self.lines = []
        self.st = 0
        self.vw = {}
        self.mfd = {}
        self.mc = {}
        self.sw = {}
        self.m0 = -99
        self.stw = {}
        self.nlabel = 0
        self.vmopt = set()
        self.vmq = []

    def raw(self, text):
        self.lines.append(text)

    def comment(self, text):
        self.lines.append("    ; " + text)

    def newlabel(self, base="L"):
        self.nlabel += 1
        return "%s_%d" % (base, self.nlabel)

    def label(self, name):
        self.lines.append(name + ":")

    def nop(self, n):
        while n > 0:
            k = min(n, 16)
            self.lines.append("    s_nop %d" % (k - 1))
            self.st += k
            n -= k

    def drain(self):
        need = 0
        for r, (st, kind) in self.vw.items():
            d = 8 if kind == "mfma" else 3 if kind == "dot" else 2
            need = max(need, st + d + 1 - (self.st + 1))
        for r, st in self.mc.items():
            need = max(need, st + 3 + 1 - (self.st + 1))
        for r, st in self.stw.items():
            need = max(need, st + 2 + 1 - (self.st + 1))
        for r, st in self.sw.items():
            if r != "vcc":
                need = max(need, st + 5 + 1 - (self.st + 1))
        need = max(need, self.m0 + 1 + 1 - (self.st + 1))
        if need > 0:
            self.nop(need)

    def __call__(self, text, tag=None):
        text = text.strip()
        parts = text.split(None, 1)
        mn = parts[0]
        ops = split_ops(parts[1]) if len(parts) > 1 else []
        need = 0

        def after(st, d):
            nonlocal need
            need = max(need, st + d + 1)

        vr, vwr = [], []
        is_valu = mn.startswith("v_") and not mn.startswith("v_mfma")
        is_mfma = mn.startswith("v_mfma")
        is_vmem = mn.startswith("buffer_") or mn.startswith("global_")
        is_ds = mn.startswith("ds_")
        swr = []
        if is_mfma:
            d = regs_of(ops[0], "v")
            a = regs_of(ops[1], "v")
            b = regs_of(ops[2], "v")
            c = regs_of(ops[3], "v")
            for r in a + b:
                if r in self.vw:
                    st, kind = self.vw[r]
                    after(st, 8 if kind == "mfma" else 2)
            for r in c:
                if r in self.vw:
                    st, kind = self.vw[r]
                    if kind == "mfma":
                        if self.mfd.get(r) != (c[0], len(c), mn):
                            after(st, 6)
                    else:
                        after(st, 2)
            for r in d:
                if r in self.vw and r not in c:
                    st, kind = self.vw[r]
                    if kind == "mfma":
                        after(st, 6)
                if r in self.stw:
                    after(self.stw[r], 2)
            if need > self.st:
                self.nop(need - self.st)
            self.lines.append("    " + text)
            for r in c:
                self.mc[r] = self.st
            for r in d:
                self.vw[r] = (self.st, "mfma")
                self.mfd[r] = (d[0], len(d), mn)
            self.st += 1
            return
        if is_valu:
            dpp = "_dpp" in mn
            perm = mn.startswith("v_permlane")
            if mn.startswith("v_cmp"):
                swr = sregs_of(ops[0])
                srcs = ops[1:]
            elif mn.startswith("v_readlane") or mn.startswith("v_readfirstlane"):
                swr = sregs_of(ops[0])
                srcs = ops[1:]
            elif perm:
                vwr = regs_of(ops[0], "v") + regs_of(ops[1], "v")
                srcs = ops
            else:
                vwr = regs_of(ops[0], "v")
                srcs = ops[1:]
                if mn.startswith("v_fmac") or mn.startswith("v_writelane") or dpp or mn.startswith("v_dot2c"):
                    srcs = ops
            for o in srcs:
                vr += regs_of(o, "v")
            for r in vr:
                if r in self.vw:
                    st, kind = self.vw[r]
                    if kind == "mfma":
                        after(st, 8)
                    else:
                        if dpp or perm:
                            after(st, 2)
                        if mn.startswith("v_readlane") or mn.startswith("v_readfirstlane"):
                            after(st, 1)
                        if kind == "trans":
                            after(st, 1)
                        if kind == "dot" and not (mn.startswith("v_dot") and r in vwr):
                            after(st, 3)
            for o in srcs:
                for r in sregs_of(o):
                    if r in self.sw:
                        after(self.sw[r], 4 if ("lane" in mn) else 2)
            if mn.startswith("v_cndmask") and len(ops) == 3 and "vcc" in self.sw:
                after(self.sw["vcc"], 2)
            for r in vwr:
                if r in self.vw and self.vw[r][1] == "mfma":
                    after(self.vw[r][0], 8)
                if r in self.mc:
                    after(self.mc[r], 3)
                if r in self.stw:
                    after(self.stw[r], 2)
        elif is_vmem or is_ds:
            lds_dma = is_vmem and re.search(r"\blds\b", text) is not None
            is_load = ("_load" in mn or mn.startswith("ds_read") or "_rtn" in mn) and not lds_dma
            if is_load:
                vwr = regs_of(ops[0], "v")
                srcs = ops[1:]
            else:
                srcs = ops
            for o in srcs:
                vr += regs_of(o, "v")
            for r in vr + vwr:
                if r in self.vw and self.vw[r][1] == "mfma":
                    after(self.vw[r][0], 8)
            for r in vwr:
                if r in self.stw:
                    after(self.stw[r], 1)
                if r in self.mc:
                    after(self.mc[r], 3)
            if is_vmem:
                for o in srcs:
                    for r in sregs_of(o):
                        if r in self.sw:
                            after(self.sw[r], 5)
                if lds_dma:
                    after(self.m0, 1)
        elif mn in ("s_branch", "s_setpc_b64", "s_call_b64", "s_swappc_b64") or mn.startswith("s_cbranch"):
            self.drain()
        elif mn.startswith("s_"):
            for o in ops[1:] if not mn.startswith("s_cmp") else ops:
                for r in sregs_of(o):
                    if r in self.sw and r != "vcc":
                        after(self.sw[r], 1)
        if need > self.st:
            self.nop(need - self.st)
        self.lines.append("    " + text)
        if is_valu:
            kind = "trans" if mn.replace("_e32", "").replace("_e64", "") in TRANS else "valu"
            if mn.startswith("v_dot"):
                kind = "dot"
            for r in vwr:
                self.vw[r] = (self.st, kind)
            for r in swr:
                self.sw[r] = self.st
        elif is_vmem or is_ds:
            for r in vwr:
                self.vw.pop(r, None)
            if is_vmem and "_store" in mn and ("x3" in mn or "x4" in mn):
                for r in regs_of(ops[0], "v"):
                    self.stw[r] = self.st
            if is_vmem:
                self.vmq.append(tag)
        elif mn.startswith("s_") and ops and ops[0] == "m0":
            self.m0 = self.st
        if mn == "s_nop":
            self.st += int(ops[0]) + 1
        else:
            self.st += 1

    def vm_after(self, tag):
        idx = max(i for i, t in enumerate(self.vmq) if t == tag)
        return self.vm_after_idx(idx)

    def vm_after_idx(self, idx):
        return sum(1 for i in range(idx + 1, len(self.vmq)) if i not in self.vmopt)

    def wait_tag(self, tag):
        n = self.vm_after(tag)
        assert n <= 63
        self("s_waitcnt vmcnt(%d)" % n)

    def text(self):
        return "\n".join(self.lines) + "\n"
```

```python
import sys, os, math, struct
from collections import deque
sys.path.insert(0, os.path.dirname(__file__))
from asmlib import Asm, V, S

NAME = "interleave_layers__gqa_block_cached__gqa_block_cached__decode"

P = dict(W=6, DIAG=0, PF=30, Q2POS=34, WPF=1, SCALE=1000, W0=6, CUD=5, ROT=0, CPF=1, WQNT=0, CDEL=1, LOCAL=1, HBS=3, HBSL=3, APF=4, WCU=8, XB=1, WPFW=4, WEND=6, NEND=12)
for arg in sys.argv[2:]:
    k, v = arg.split("=")
    P[k] = int(v)
W = P["W"]
DIAG = P["DIAG"]
PF = P["PF"]


def f32(x):
    return struct.unpack("<I", struct.pack("<f", x))[0]


LDS_BYTES = 163840
L_CNT = [0, 4]
L_PART = [64, 64 + 2112]
L_VA = 8192
L_X = 0
L_YB = 5120
L_WO = 8192
PH = 184320
HB0 = 147456
HC0 = 167936
WF0 = 4 << 20
WS_DIAG = 12 << 20
WS_BYTES = 13 << 20
BATCH = 1 << 25
TENSOR = 1 << 27
DPPM = "row_mask:0xf bank_mask:0xf"
QP = ["quad_perm:[1,0,3,2]", "quad_perm:[2,3,0,1]", "row_half_mirror", "row_mirror"]

a = Asm()

sH, sS, sWv = 3, 4, 5
KA, VA, KB, VB, WS, DBG, WT, OUT = 44, 48, 52, 56, 80, 84, 88, 92
sNRK, sNRV = 60, 61
sTO, sC, sT, sT2, sLB, sTv = 62, 63, 64, 65, 66, 67
sQM = 70
sDI = 98
sXc, sLoc = 99, 79
RA = 100


def stamp():
    if not DIAG:
        return
    a("s_memrealtime s[96:97]")
    a("s_waitcnt lgkmcnt(0)")
    lgq.clear()
    a("s_lshl_b64 exec, 1, s%d" % sDI)
    a("v_mov_b32 v0, s96")
    a("s_mov_b64 exec, -1")
    a("s_add_u32 s%d, s%d, 1" % (sDI, sDI))


def fstamp():
    if DIAG != 3:
        return
    lab = a.newlabel("FS")
    a("s_cmp_lt_u32 s9, 11")
    a("s_cbranch_scc1 %s" % lab)
    sv = list(lgq)
    stamp()
    lgq[:] = sv
    a.label(lab)


def budget(done, loop, sleep=None):
    a("s_cmp_eq_u32 s%d, 0" % sTO)
    a("s_cbranch_scc1 %s" % done)
    a("s_sub_u32 s%d, s%d, 1" % (sTO, sTO))
    if sleep:
        a("s_sleep %d" % sleep)
    if loop:
        a("s_branch %s" % loop)


def rawbr(text):
    a.raw("    " + text)
    a.st += 1


def mfma(d, x, y, c):
    a("v_mfma_f32_16x16x32_bf16 %s, %s, %s, %s" % (V(d, 4), V(x, 4), V(y, 4), c))


def pk(d, x, y):
    a("v_pk_add_f32 %s, %s, %s" % (V(d, 2), V(x, 2), V(y, 2)))


def srd(dst, ptr, nrec):
    a("s_mov_b32 s%d, s%d" % (dst, ptr))
    a("s_and_b32 s%d, s%d, 0xffff" % (dst + 1, ptr + 1))
    a("s_mov_b32 s%d, %s" % (dst + 2, nrec))
    a("s_mov_b32 s%d, 0x20000" % (dst + 3))


lgq = []


def ds(text, tag=None):
    a(text)
    lgq.append(tag)


def wait_lg(tag=None):
    if tag is None:
        a("s_waitcnt lgkmcnt(0)")
        lgq.clear()
        return
    if tag not in lgq:
        return
    idx = max(i for i, t in enumerate(lgq) if t == tag)
    n = len(lgq) - 1 - idx
    a("s_waitcnt lgkmcnt(%d)" % min(n, 15))
    del lgq[:len(lgq) - min(n, 15)]


def exact_check(regs, t):
    regs = list(regs)
    a("v_max3_u32 v%d, v%d, v%d, v%d" % (t, regs[0], regs[1], regs[2]))
    i = 3
    while i < len(regs):
        r2 = regs[i + 1] if i + 1 < len(regs) else regs[i]
        a("v_max3_u32 v%d, v%d, v%d, v%d" % (t, t, regs[i], r2))
        i += 2
    a("v_cmp_eq_u32 vcc, -1, v%d" % t)


a("s_cmp_ge_u32 s2, 256")
a("s_cbranch_scc1 L_END")
a("s_load_dwordx16 s[16:31], s[0:1], 0")
a("s_load_dwordx8 s[32:39], s[0:1], 64")
a("s_load_dwordx2 s[40:41], s[0:1], 96")
a("v_lshrrev_b32 v1, 6, v0")
a("v_and_b32 v47, 63, v0")
a("v_readfirstlane_b32 s%d, v1" % sWv)
a("v_mov_b32 v0, 0")
a("s_and_b32 s%d, s2, 7" % sH)
a("s_lshl_b32 s%d, s%d, 2" % (sH, sH))
a("s_lshr_b32 s6, s2, 3")
a("s_and_b32 s6, s6, 3")
a("s_add_u32 s%d, s%d, s6" % (sH, sH))
a("s_lshr_b32 s%d, s2, 5" % sS)
a("s_mov_b32 s%d, 200000" % sTO)
a("s_mov_b32 s%d, 0" % sDI)
a("s_getreg_b32 s%d, hwreg(HW_REG_XCC_ID, 0, 4)" % sXc)
a("s_or_b32 s%d, s%d, 0x80" % (sXc, sXc))
a("s_mov_b32 s%d, 0" % sLoc)
a("v_and_b32 v46, 15, v47")
a("v_lshrrev_b32 v45, 4, v47")
a("s_waitcnt lgkmcnt(0)")
srd(WS, 40, "0x%x" % WS_BYTES)
srd(DBG, 38, "256")
a("s_cmp_eq_u32 s%d, 7" % sS)
a("s_cbranch_scc1 L_COMM")

vK, vL, vPt, MK, vBias = 1, 2, 3, 4, 8
SS = list(range(9, 19))
vQa = 19
ML, vT, vU = 20, 22, 23
D2, D1, D3 = 20, 24, 28
QF = 32
ACC = 32
QR = 48
sB, sCur, sNxt, sHas, sPq, sPa, sWi = 6, 7, 8, 9, 10, 11, 12
GO = 16


def home(kind, i):
    if kind == "KA":
        return 68 + 4 * i
    if kind == "KB":
        return 216 + 4 * i
    if kind == "VB":
        return 216 + 148 + 4 * i
    raise KeyError


assert home("VB", 36) + 4 == 512

a("s_mov_b32 s%d, 0x%08x" % (sC, f32(128 ** -0.5 * math.log2(math.e) * P["SCALE"] / 1000.0)))
for t in range(4):
    m = 0x000F000F << (4 * t)
    a("s_mov_b32 s%d, 0x%08x" % (sQM + 2 * t, m))
    a("s_mov_b32 s%d, 0x%08x" % (sQM + 2 * t + 1, m))
a("s_mul_i32 s%d, s%d, 7" % (sWi, sWv))
a("s_add_u32 s%d, s%d, s%d" % (sWi, sWi, sS))
a("s_cmp_lt_u32 s%d, 16" % sWi)
a("s_cselect_b32 s%d, 1, 0" % sHas)
a("s_min_u32 s13, s%d, 16" % sWi)
a("s_mul_i32 s14, s%d, 36" % sWi)
a("s_add_u32 s13, s13, s14")
a("s_lshl_b32 s13, s13, 10")
a("s_lshl_b32 s14, s%d, 20" % sH)
a("s_add_u32 s13, s13, s14")
a("s_mul_i32 s%d, s%d, 37888" % (sLB, sWv))
a("s_add_u32 s%d, s%d, %d" % (sLB, sLB, L_VA))
a("s_sub_u32 s%d, 0x%x, s13" % (sNRK, TENSOR))
a("s_add_u32 s%d, s%d, s%d" % (sNRV, sNRK, sLB))
for dst, ptr, isv in ((KA, 18, 0), (VA, 20, 1), (KB, 28, 0), (VB, 30, 1)):
    a("s_add_u32 s%d, s%d, s13" % (dst, ptr))
    a("s_addc_u32 s%d, s%d, 0" % (dst + 1, ptr + 1))
    if isv:
        a("s_sub_u32 s%d, s%d, s%d" % (dst, dst, sLB))
        a("s_subb_u32 s%d, s%d, 0" % (dst + 1, dst + 1))
    a("s_and_b32 s%d, s%d, 0xffff" % (dst + 1, dst + 1))
    a("s_mov_b32 s%d, s%d" % (dst + 2, sNRV if isv else sNRK))
    a("s_mov_b32 s%d, 0x20000" % (dst + 3))
a("v_and_b32 v44, 3, v47")
a("v_lshlrev_b32 v%d, 4, v44" % vQa)
a("v_lshl_add_u32 v%d, v45, 6, v%d" % (vQa, vQa))
a("v_bfe_u32 v44, v47, 2, 2")
a("v_lshl_add_u32 v%d, v44, 8, v%d" % (vK, vQa))
a("v_lshl_add_u32 v%d, v45, 6, v%d" % (vQa, vQa))
a("v_lshlrev_b32 v43, 4, v47")
a("v_add_u32 v%d, s%d, v43" % (vL, sLB))
a("s_lshl_b32 s%d, s%d, 9" % (sPq, sH))
a("s_add_u32 s%d, s%d, %d" % (sPq, sPq, HC0))
a("s_mul_i32 s%d, s%d, 4608" % (sPa, sH))
a("s_mov_b32 s%d, 0" % sB)
a("s_mov_b32 s%d, 0" % sCur)
stamp()

wpf = []
if P["WPF"]:
    a("s_and_b32 s15, s%d, 3" % sH)
    a("s_mul_i32 s15, s15, 28")
    a("s_add_u32 s15, s15, s%d" % sWi)
    a("s_lshr_b32 s42, s%d, 2" % sH)
    a("s_mul_i32 s43, s42, 655360")
    a("s_lshl_b32 s42, s42, 10")

    def wpf_load(ptr, isq, r):
        def fn():
            if r == 0:
                srd(WT, ptr, "0x%x" % (640 * 8192))
            a("s_add_u32 s%d, s15, %d" % (sT2, 112 * r))
            a("s_min_u32 s%d, s%d, 639" % (sT2, sT2))
            a("s_lshl_b32 s%d, s%d, %d" % (sT2, sT2, 13 if isq else 10))
            a("s_add_u32 s%d, s%d, s%d" % (sT2, sT2, 42 if isq else 43))
            a("buffer_load_dwordx4 %s, v43, %s, s%d offen" % (V(QR, 4), S(WT, 4), sT2), tag="wpf")
        return fn
    for ptr, isq in ((22, 1), (24, 0), (34, 0), (32, 1)):
        for r in range(6):
            wpf.append(wpf_load(ptr, isq, r))

curh = {"K": None, "V": None, "m0": None}
fab = []
done_idx = [-1]
live = {}


def waitvm(n):
    assert n <= 63, n
    a("s_waitcnt vmcnt(%d)" % n)
    i, c = len(a.vmq) - 1, 0
    while i >= 0 and c < n:
        if i not in a.vmopt:
            c += 1
        i -= 1
    done_idx[0] = max(done_idx[0], i)


def tag_idx(tag):
    return max(i for i, t in enumerate(a.vmq) if t == tag)


def landed(tag):
    return tag_idx(tag) <= done_idx[0]


def wait_tag(tag):
    if not landed(tag):
        waitvm(a.vm_after_idx(tag_idx(tag)))


WIN = [P["W0"]]


def pace():
    w = WIN[0]
    if len(fab) >= w and fab[-w] > done_idx[0]:
        waitvm(a.vm_after_idx(fab[-w]))


def reset_vm():
    a.vmq[:] = ["old"] * W
    a.vmopt.clear()
    fab[:] = list(range(W))
    done_idx[0] = -1
    curh.update(K=None, V=None, m0=None)


def load_tile(kind, off, i, mode, fabric, paced):
    g, t = i // 4, i % 4
    srdn = {"KA": KA, "VA": VA, "KB": KB, "VB": VB}[kind]
    c = kind[0]
    vo, so = (vK, sT) if c == "K" else (vL, sTv)
    if mode == "home":
        assert not live.get((kind, i), False), ("slot busy", kind, i)
        live[(kind, i)] = True
    if curh[c] != (kind, off, g):
        a("s_add_u32 s%d, s%d, s%d" % (so, off, GO + g))
        curh[c] = (kind, off, g)
    lds = kind == "VA" and mode == "home"
    if lds and curh["m0"] != g:
        a("s_add_u32 m0, s%d, %d" % (sLB, g * 4096))
        curh["m0"] = g
    if fabric and paced:
        pace()
    opt = i == 36
    if opt:
        lab = a.newlabel("NT")
        a("s_cmp_eq_u32 s%d, 0" % sHas)
        rawbr("s_cbranch_scc1 %s" % lab)
    tag = "%s%d" % (kind, g) if mode == "home" else "pf"
    if lds:
        a("buffer_load_dwordx4 v%d, %s, s%d offen offset:%d nt lds" % (vo, S(srdn, 4), so, t * 1024), tag=tag)
    elif mode == "home":
        a("buffer_load_dwordx4 %s, v%d, %s, s%d offen offset:%d nt" % (V(home(kind, i), 4), vo, S(srdn, 4), so, t * 1024), tag=tag)
    else:
        a("buffer_load_dwordx4 %s, v%d, %s, s%d offen offset:%d" % (V(QR, 4), vo, S(srdn, 4), so, t * 1024), tag=tag)
    if opt:
        a.label(lab)
        a.st -= 1
        a.vmopt.add(len(a.vmq) - 1)
    elif fabric:
        fab.append(len(a.vmq) - 1)


Q = deque()


def pump(n=1, paced=True):
    while n > 0 and Q:
        it = Q.popleft()
        if callable(it):
            it()
            continue
        load_tile(*it, paced)
        n -= 1
        while Q and (callable(Q[0]) or not Q[0][4]):
            it = Q.popleft()
            if callable(it):
                it()
            else:
                load_tile(*it, paced)


def free(kind, g):
    for i in range(4 * g, min(4 * g + 4, 37)):
        live[(kind, i)] = False


def qload(blk_off):
    a("s_add_u32 s%d, s%d, %d" % (sT2, sPq, blk_off * PH))
    a("buffer_load_dwordx4 %s, v%d, %s, s%d offen sc1" % (V(QR, 4), vQa, S(WS, 4), sT2), tag="q")


def qcheck(blk_off, early, QR=QR, dn=None):
    lp, dn = a.newlabel("QL"), dn or a.newlabel("QD")
    if early:
        wait_tag("q")
        exact_check(range(QR, QR + 4), vT)
        a("s_cbranch_vccz %s" % dn)
    a("s_add_u32 s%d, s%d, %d" % (sT2, sPq, blk_off * PH))
    a.label(lp)
    a("buffer_load_dwordx4 %s, v%d, %s, s%d offen sc1" % (V(QR, 4), vQa, S(WS, 4), sT2), tag="qspin")
    if early:
        a.vmopt.add(len(a.vmq) - 1)
        a("s_waitcnt vmcnt(0)")
    else:
        waitvm(0)
    exact_check(range(QR, QR + 4), vT)
    a("s_cbranch_vccz %s" % dn)
    budget(dn, lp)
    a.label(dn)
    for t in range(4):
        for r in range(4):
            a("v_cndmask_b32 %s, 0, %s, %s" % (V(QF + 4 * t + r), V(QR + r), S(sQM + 2 * t, 2)))


def red_ops(D, g):
    Sr = SS[g]
    first = ("v_mov_b32_dpp %s, %s quad_perm:[0,0,0,0] %s" % (V(Sr), V(D), DPPM) if g < 9 else
             "v_add_f32_dpp %s, %s, %s quad_perm:[0,0,0,0] %s" % (V(Sr), V(D), V(vBias), DPPM))
    return [first] + [
        "v_add_f32_dpp %s, %s, %s quad_perm:[%d,%d,%d,%d] %s" % (V(Sr), V(D + r), V(Sr), r, r, r, r, DPPM)
        for r in (1, 2, 3)]


def qk_burst(kind, order, hook=None, release=False):
    Ds = [D1, D2, D3]
    n = len(order)
    for i, g in enumerate(order):
        D = Ds[i % 3]
        r = red_ops(Ds[(i - 2) % 3], order[i - 2]) if i >= 2 else [None] * 4
        for t in range(4):
            if g < 9 or t == 0:
                mfma(D, home(kind, 4 * g + t), QF + 4 * t, "0" if t == 0 else V(D, 4))
            if r[t]:
                a(r[t])
        if release:
            free(kind, g)
        if hook:
            hook(i)
    ra, rb = red_ops(Ds[(n - 2) % 3], order[n - 2]), red_ops(Ds[(n - 1) % 3], order[n - 1])
    for x, y in zip(ra, rb):
        a(x)
        a(y)


def xlane(op, X, U):
    a("%s_dpp %s, %s, %s row_ror:4 %s" % (op, V(X), V(X), V(X), DPPM))
    a("%s_dpp %s, %s, %s row_ror:8 %s" % (op, V(X), V(X), V(X), DPPM))
    a("v_mov_b32 %s, %s" % (V(U), V(X)))
    a("v_permlane16_swap_b32 %s, %s" % (V(X), V(U)))
    a("%s %s, %s, %s" % (op, V(X), V(X), V(U)))
    a("v_mov_b32 %s, %s" % (V(U), V(X)))
    a("v_permlane32_swap_b32 %s, %s" % (V(X), V(U)))
    a("%s %s, %s, %s" % (op, V(X), V(X), V(U)))


def softmax():
    M, L = ML, ML + 1
    a("v_max3_f32 %s, %s, %s, %s" % (V(M), V(SS[0]), V(SS[1]), V(SS[2])))
    a("v_max3_f32 %s, %s, %s, %s" % (V(L), V(SS[3]), V(SS[4]), V(SS[5])))
    a("v_max3_f32 %s, %s, %s, %s" % (V(M), V(M), V(SS[6]), V(SS[7])))
    a("v_max3_f32 %s, %s, %s, %s" % (V(L), V(L), V(SS[8]), V(SS[9])))
    a("v_max_f32 %s, %s, %s" % (V(M), V(M), V(L)))
    xlane("v_max_f32", M, vU)
    a("v_mul_f32 %s, s%d, %s" % (V(M), sC, V(M)))
    for s_ in SS:
        a("v_fma_f32 %s, %s, s%d, -%s" % (V(s_), V(s_), sC, V(M)))
    for s_ in SS:
        a("v_exp_f32 %s, %s" % (V(s_), V(s_)))
    a("v_add_f32 %s, %s, %s" % (V(L), V(SS[0]), V(SS[1])))
    for s_ in SS[2:]:
        a("v_add_f32 %s, %s, %s" % (V(L), V(L), V(s_)))
    for s_ in SS:
        a("v_cvt_pk_bf16_f32 %s, %s, %s" % (V(s_), V(s_), V(s_)))


def pv_ops(Pr, AX, AY):
    ax = ["v_and_b32 %s, %s, %s" % (V(AX), V(Pr), V(MK)),
          "v_and_b32 %s, %s, %s" % (V(AX + 1), V(Pr), V(MK + 1)),
          "v_and_b32_dpp %s, %s, %s row_ror:4 %s" % (V(AX + 2), V(Pr), V(MK + 2), DPPM),
          "v_and_b32_dpp %s, %s, %s row_ror:4 %s" % (V(AX + 3), V(Pr), V(MK + 3), DPPM)]
    ay = ["v_and_b32_dpp %s, %s, %s row_ror:12 %s" % (V(AY), V(Pr), V(MK), DPPM),
          "v_and_b32_dpp %s, %s, %s row_ror:12 %s" % (V(AY + 1), V(Pr), V(MK + 1), DPPM),
          "v_and_b32 %s, %s, %s" % (V(AY + 2), V(Pr), V(MK + 2)),
          "v_and_b32 %s, %s, %s" % (V(AY + 3), V(Pr), V(MK + 3))]
    return ax, ay


def pv_seq(groups, first, pre=None, post=None):
    lo, hi, AX, AY = ACC, ACC + 4, ACC + 8, ACC + 12
    n = len(groups)
    ops = [pv_ops(SS[g], AX, AY) for g, _ in groups]
    for o in ops[0][0]:
        a(o)
    for i in range(n):
        g, Vr = groups[i]
        ax, ay = ops[i]
        z = first and i == 0
        nx = ops[i + 1][0] if i + 1 < n else [None] * 4
        if g == 9:
            assert i == n - 1 and not z
            if pre:
                pre(i)
            mfma(lo, AX, Vr, V(lo, 4))
        else:
            a(ay[0]); a(ay[1])
            if pre:
                pre(i)
            mfma(lo, AX, Vr, "0" if z else V(lo, 4))
            a(ay[2]); a(ay[3])
            mfma(hi, AX, Vr + 8, "0" if z else V(hi, 4))
            if nx[0]:
                a(nx[0]); a(nx[1])
            mfma(lo, AY, Vr + 4, V(lo, 4))
            if nx[2]:
                a(nx[2]); a(nx[3])
            mfma(hi, AY, Vr + 12, V(hi, 4))
        if post:
            post(i)


def publish(typ, blk_off):
    lo, hi = ACC, ACC + 4
    tA, tO, tR, tE = D1, D1 + 1, D1 + 2, D1 + 3
    tM, tW = D3, D3 + 1
    mlr = D3 + 2
    OB = ACC + 8
    part = L_PART[typ]
    a("v_mov_b32 %s, 0" % V(tA))
    a("v_mov_b32 %s, 1" % V(tO))
    a("v_subrev_u32 %s, s%d, %s" % (V(tE), sLB, V(vL)))
    a("v_lshrrev_b32 %s, 1, %s" % (V(tE), V(tE)))
    a("v_and_b32 %s, 24, %s" % (V(tW), V(tE)))
    a("v_mov_b32 %s, s13" % V(tM))
    xlane("v_add_f32", ML + 1, vU)
    a("v_permlane32_swap_b32 %s, %s" % (V(lo), V(lo + 2)))
    a("v_permlane32_swap_b32 %s, %s" % (V(lo + 1), V(lo + 3)))
    a("v_permlane32_swap_b32 %s, %s" % (V(hi), V(hi + 2)))
    a("v_permlane32_swap_b32 %s, %s" % (V(hi + 1), V(hi + 3)))
    a("v_add_f32 %s, %s, %s" % (V(lo), V(lo), V(hi + 2)))
    a("v_add_f32 %s, %s, %s" % (V(lo + 1), V(lo + 1), V(hi + 3)))
    ds("ds_write_b64 %s, %s offset:%d" % (V(vPt), V(lo, 2), part))
    a("s_mov_b64 exec, 1")
    ds("ds_write_b64 %s, %s offset:%d" % (V(tM), V(ML, 2), part + 2048))
    ds("ds_add_rtn_u32 %s, %s, %s offset:%d" % (V(tR), V(tA), V(tO), L_CNT[typ]), "cnt")
    a("s_mov_b64 exec, -1")
    ds("ds_read_b64 %s, %s offset:%d" % (V(mlr, 2), V(tW), part + 2048), "ml")
    for p in range(4):
        ds("ds_read_b64 %s, %s offset:%d" % (V(OB + 2 * p, 2), V(tE), part + 512 * p))
    a("s_add_u32 s%d, s%d, %d" % (sT2, sPa, blk_off * PH))
    wait_lg("ml")
    a("v_readfirstlane_b32 s15, %s" % V(tR))
    cM, cL, cW = ML, ML + 1, vT
    a("v_max_f32_dpp v%d, v%d, v%d %s %s" % (cM, mlr, mlr, QP[0], DPPM))
    a("s_and_b32 s15, s15, 3")
    a("s_cmp_lg_u32 s15, 3")
    lab = a.newlabel("NOTLAST")
    rawbr("s_cbranch_scc1 %s" % lab)
    a("v_max_f32_dpp v%d, v%d, v%d %s %s" % (cM, cM, cM, QP[1], DPPM))
    a("v_sub_f32 v%d, v%d, v%d" % (cW, mlr, cM))
    a("v_exp_f32 v%d, v%d" % (cW, cW))
    a("v_mul_f32 v%d, v%d, v%d" % (cL, mlr + 1, cW))
    a("s_waitcnt lgkmcnt(0)")
    lsum = ["v_add_f32_dpp v%d, v%d, v%d %s %s" % (cL, cL, cL, q, DPPM) for q in QP[:2]]
    for p in range(4):
        for c in range(2):
            d = lo + 2 * (p & 1) + c
            op = "v_mul_f32_dpp" if p < 2 else "v_fmac_f32_dpp"
            a("%s v%d, v%d, v%d row_newbcast:%d %s" % (op, d, cW, OB + 2 * p + c, p, DPPM))
        if p in (0, 2):
            a(lsum[p // 2])
    pk(lo, lo, lo + 2)
    a("v_min_u32 v%d, -2, v%d" % (cM, cM))
    a("v_min_u32 v%d, -2, v%d" % (cL, cL))
    a("v_min_u32 v%d, -2, v%d" % (lo, lo))
    a("v_min_u32 v%d, -2, v%d" % (lo + 1, lo + 1))
    a("s_add_u32 s15, s%d, s14" % sT2)
    a("s_add_u32 s%d, s%d, s68" % (sT2, sT2))
    lab2 = a.newlabel("PLOC")
    a("s_cmp_eq_u32 s%d, 0" % sLoc)
    rawbr("s_cbranch_scc0 %s" % lab2)
    for sc in (" sc1", ""):
        a("buffer_store_dwordx2 %s, %s, %s, s15 offen%s" % (V(lo, 2), V(tE), S(WS, 4), sc))
        a.vmopt.add(len(a.vmq) - 1)
        a("s_mov_b64 exec, 1")
        a("buffer_store_dwordx2 %s, %s, %s, s%d offen%s" % (V(cM, 2), V(tE), S(WS, 4), sT2, sc))
        a.vmopt.add(len(a.vmq) - 1)
        a("s_mov_b64 exec, -1")
        if sc:
            rawbr("s_branch %s" % lab)
            a.label(lab2)
    a.label(lab)
    a("s_waitcnt lgkmcnt(0)")
    lgq.clear()
    a.nop(2)


def stage(g, dst):
    for t in range(4 if g < 9 else 1):
        ds("ds_read_b128 %s, v%d offset:%d" % (V(dst + 4 * t, 4), vL, g * 4096 + t * 1024), "st%d" % g)


reset_vm()
a.vmq[:] = []
fab[:] = []
if P["CPF"]:
    a("s_getpc_b64 %s" % S(WT, 2))
    a.label("L_PC")
    a("s_sub_u32 s%d, s%d, L_PC-%s_kernel" % (WT, WT, NAME))
    a("s_subb_u32 s%d, s%d, 0" % (WT + 1, WT + 1))
    a("s_and_b32 s%d, s%d, 0xffff" % (WT + 1, WT + 1))
    a("s_mov_b32 s%d, L_END-%s_kernel" % (WT + 2, NAME))
    a("s_mov_b32 s%d, 0x20000" % (WT + 3))
    a("s_lshl_b32 s%d, s15, 10" % sT2)
    a("v_add_u32 v42, s%d, v43" % sT2)
    a("buffer_load_dwordx4 %s, v42, %s, 0 offen" % (V(QR, 4), S(WT, 4)))
for fn in wpf[:6]:
    fn()
    fab.append(len(a.vmq) - 1)
a("s_lshl_b32 s14, s%d, 9" % sS)
a("s_lshl_b32 s68, s%d, 7" % sS)
a("s_add_u32 s68, s68, 3584")
a("s_lshl_b32 s13, s%d, 3" % sWv)
a("s_cmp_lg_u32 s%d, 0" % sWv)
a("s_cbranch_scc1 L_NOCLR")
a("v_add_u32 v40, s14, v43")
a("v_subrev_u32 v41, 512, v43")
a("v_add_u32 v41, s68, v41")
a("v_cmp_gt_u32 vcc, 32, v47")
a("v_cndmask_b32 v40, v41, v40, vcc")
for r in range(4):
    a("v_mov_b32 v%d, -1" % (QF + r))
a("v_mov_b32 v41, 0")
a("v_mov_b32 v36, 0")
a("v_mov_b32 v37, 0")
a("ds_write_b64 v41, v[36:37]")
a("s_mov_b32 exec_hi, 0xff")
for p in range(16):
    a("s_add_u32 s%d, s%d, %d" % (sT2, sPa, p * PH))
    a("buffer_store_dwordx4 %s, v40, %s, s%d offen sc1" % (V(QF, 4), S(WS, 4), sT2), tag="clr")
    a.vmopt.add(len(a.vmq) - 1)
a("s_mov_b64 exec, -1")
a("s_waitcnt lgkmcnt(0)")
a.label("L_NOCLR")
a("s_barrier")
for fn in wpf[6:]:
    pace()
    fn()
    fab.append(len(a.vmq) - 1)
a("s_and_b32 s15, s%d, 3" % sH)
a("s_lshl_b32 s15, s15, 2")
a("s_add_u32 s15, s15, s%d" % sWv)
a("s_mul_i32 s15, s15, %d" % P["ROT"])
a("s_mul_hi_u32 s%d, s15, 0x%x" % (sT2, (1 << 32) // 9 + 1))
a("s_mul_i32 s%d, s%d, 9" % (sT2, sT2))
a("s_sub_u32 s15, s15, s%d" % sT2)
a("s_lshl_b32 s15, s15, 12")
for g in range(9):
    a("s_mov_b32 s%d, s15" % (GO + g))
    a("s_add_u32 s15, s15, 4096")
    a("s_cmp_eq_u32 s15, %d" % (9 * 4096))
    a("s_cselect_b32 s15, 0, s15")
a("s_mov_b32 s%d, %d" % (GO + 9, 9 * 4096))
for i in range(37):
    Q.append(("KA", sCur, i, "home", True))
pump(4)
a("v_and_b32 v44, 1, v47")
a("v_lshlrev_b32 v44, 4, v44")
a("v_mov_b32 v%d, 0xffff" % (MK + 3))
a("v_lshlrev_b32 v%d, v44, v%d" % (MK + 3, MK + 3))
a("v_bfe_u32 v44, v47, 1, 2")
for r in range(4):
    a("v_cmp_eq_u32 vcc, %d, v44" % r)
    a("v_cndmask_b32 v%d, 0, v%d, vcc" % (MK + r, MK + 3))
a("v_lshlrev_b32 v%d, 5, v46" % vPt)
a("v_and_b32 v44, 1, v45")
a("v_lshl_add_u32 v%d, v44, 4, v%d" % (vPt, vPt))
a("v_lshrrev_b32 v44, 1, v45")
a("v_lshl_add_u32 v%d, v44, 3, v%d" % (vPt, vPt))
a("s_lshl_b32 s69, s%d, 9" % sWv)
a("v_add_u32 v%d, s69, v%d" % (vPt, vPt))
a("v_mov_b32 v44, 0xff800000")
a("v_cndmask_b32 v%d, v44, 0, %s" % (vBias, S(sQM, 2)))
a("s_cmp_lg_u32 s%d, 0" % sHas)
a("s_cbranch_scc1 L_HAS")
a("v_mov_b32 v%d, v44" % vBias)
for r in range(4):
    a("v_mov_b32 v%d, 0" % (home("KA", 36) + r))
    a("v_mov_b32 v%d, 0" % (36 + r))
    a("v_accvgpr_write_b32 %s, 0" % V(home("KB", 36) + r))
    a("v_accvgpr_write_b32 %s, 0" % V(home("VB", 36) + r))
a("ds_write_b128 v%d, v[36:39] offset:%d" % (vL, 36 * 1024))
a("s_waitcnt lgkmcnt(0)")
a.label("L_HAS")
pump(8)
wait_tag("clr")
a("s_cmp_lg_u32 s%d, 0" % sWv)
a("s_cbranch_scc1 L_NOFLAG")
a("s_lshl_b32 s%d, s%d, 3" % (sT2, sH))
a("s_add_u32 s%d, s%d, s%d" % (sT2, sT2, sS))
a("v_mov_b32 v40, s%d" % sXc)
a("v_mov_b32 v41, 0")
a("s_mov_b64 exec, 1")
a("buffer_store_byte v40, v41, %s, s%d offen sc1" % (S(DBG, 4), sT2))
a.vmopt.add(len(a.vmq) - 1)
a("s_mov_b64 exec, -1")
a.label("L_NOFLAG")
pump(100)
for i in range(PF):
    Q.append(("VA", sCur, i, "home", True))
a("v_and_b32 v41, 31, v47")
a("v_lshlrev_b32 v41, 3, v41")
a("buffer_load_ubyte v40, v41, %s, 0 offen offset:7 sc1" % S(DBG, 4), tag="fl")
pump(WIN[0] + 1)
wait_tag("fl")
a("v_cmp_eq_u32 vcc, 0, v40")
a("s_cbranch_vccz L_FLD")
a.label("L_FLW")
a("buffer_load_ubyte v40, v41, %s, 0 offen offset:7 sc1" % S(DBG, 4))
a.vmopt.add(len(a.vmq) - 1)
a("s_waitcnt vmcnt(0)")
a("v_cmp_eq_u32 vcc, 0, v40")
a("s_cbranch_vccz L_FLD")
budget("L_FLD", "L_FLW", 2)
a.label("L_FLD")
if P["LOCAL"]:
    a("v_cmp_eq_u32 vcc, s%d, v40" % sXc)
    a("s_andn2_b32 s15, s%d, 3" % sH)
    a("s_nop 3")
    a("s_lshr_b32 s15, vcc_lo, s15")
    a("s_and_b32 s15, s15, 15")
    a("s_cmp_eq_u32 s15, 15")
    a("s_cselect_b32 s%d, 1, 0" % sLoc)
pump(100)
stamp()

a.drain()
a.label("L_J")
WIN[0] = W
reset_vm()
lgq.clear()
for i in range(37):
    live[("KA", i)] = live[("KB", i)] = live[("VB", i)] = True
    live[("VA", i)] = i < PF
for i in range(PF, 37):
    Q.append(("VA", sCur, i, "home", True))
nva = 37 - PF
pump(max(0, nva - W))
a("s_cmp_eq_u32 s%d, 0" % sB)
a("s_cselect_b32 s15, 0, %d" % PH)
a("s_sub_u32 s%d, s%d, s15" % (sT2, sPq))
a("buffer_load_dwordx4 %s, v%d, %s, s%d offen sc1" % (V(QR, 4), vQa, S(WS, 4), sT2), tag="q")
pump(100)
for i in range(37):
    Q.append(("KB", sCur, i, "home", True))
a("s_cmp_eq_u32 s%d, 0" % sB)
a("s_cbranch_scc1 L_B0")
sav = (list(a.vmq), set(a.vmopt), list(fab), done_idx[0], dict(curh), deque(Q), dict(live))
stamp()
qcheck(-1, True)
stamp()
qload(0)
NB4 = [0]


def _h4(i):
    n = ({0: 2, 2: 1, 5: 1, 8: 1} if P["XB"] else {0: 2, 3: 1, 7: 1}).get(i, 0)
    pump(n, paced=False)
    NB4[0] += n


qk_burst("KB", list(range(10)), hook=_h4, release=True)
softmax()


def _p4(i):
    free("VB", i)
    if i in ((0, 3, 6, 9) if P["XB"] else (0, 4, 8)):
        pump(1, paced=False)
        NB4[0] += 1


pv_seq([(g, home("VB", 4 * g)) for g in range(10)], True, post=_p4)
publish(1, -1)
stamp()
a("s_cmp_eq_u32 s%d, 4" % sB)
a("s_cbranch_scc1 L_FIN")
a("s_branch L_B1")
a.label("L_B0")
end_state = (list(a.vmq), set(a.vmopt), list(fab), done_idx[0], dict(curh), deque(Q), dict(live))
a.vmq[:], a.vmopt, fab[:], done_idx[0] = sav[0], sav[1], sav[2], sav[3]
curh.update(sav[4]); Q.clear(); Q.extend(sav[5])
for g in range(10):
    free("KB", g); free("VB", g)
pump(NB4[0])
a.drain()
a.label("L_B1")
a.vmq[:], a.vmopt, fab[:] = end_state[0], end_state[1], end_state[2]
a.vmopt.add(tag_idx("q"))
done_idx[0] = sav[3]
Q.clear(); Q.extend(end_state[5]); live.update(end_state[6])
curh.update(K=None, V=None, m0=None)
lgq.clear()

STG1 = [home("VB", 24), home("VB", 28), home("VB", 32)]
for g in (6, 7, 8):
    for i in range(4 * g, 4 * g + 4):
        live[("VB", i)] = True
pump(1)
qcheck(0, True)
stamp()
wait_tag("old")


def va_ready(g):
    if 4 * g + 3 >= PF:
        wait_tag("VA%d" % g)


for g in range(3):
    va_ready(g)
    stage(g, STG1[g])
qk_burst("KA", list(range(10)), hook=lambda i: pump(1) if i in ((0, 3, 6, 9) if P["XB"] else (2, 6)) else None)
softmax()
pump(1)


def _pre1(i):
    wait_lg("st%d" % i)


def _post1(i):
    if i + 3 < 10:
        va_ready(i + 3)
        stage(i + 3, STG1[i % 3])
    if i in ((2, 5, 8) if P["XB"] else (3, 7)):
        pump(1)


pv_seq([(g, STG1[g % 3]) for g in range(10)], True, pre=_pre1, post=_post1)
publish(0, 0)
stamp()
for g in (6, 7, 8):
    free("VB", g)

a("s_add_u32 s%d, s%d, 0x%x" % (sNxt, sCur, BATCH))
a("s_cmp_lt_u32 s%d, 3" % sB)
a("s_cselect_b32 s%d, s%d, 0" % (KA + 2, sNRK))
a("s_cselect_b32 s%d, s%d, 0" % (VA + 2, sNRV))
pump(100)
Q2POS = P["Q2POS"]
for i in range(37):
    if i == 37 - P["NEND"]:
        Q.append(lambda: WIN.__setitem__(0, P["WEND"]))
    Q.append(("VB", sCur, i, "home", True))
pump(Q2POS - W)
qload(1)
pump(W)
stamp()
qcheck(1, True)
stamp()
Q.append(lambda: WIN.__setitem__(0, P["WPFW"]))
for i in range(PF):
    Q.append(("VA", sNxt, i, "pf", True))
wait_tag("KB9")
qk_burst("KB", list(range(10)), hook=lambda i: pump(1) if i in (1, 5, 9) else None)
softmax()
g = 0
while g < 10:
    issued = lambda x: ("VB%d" % x) in a.vmq and not any((not callable(it)) and it[0] == "VB" and it[2] // 4 == x for it in Q)
    run = []
    while g + len(run) < 10 and len(run) < 4 and issued(g + len(run)) and landed("VB%d" % (g + len(run))):
        run.append(g + len(run))
    if run:
        pv_seq([(x, home("VB", 4 * x)) for x in run], g == 0)
        g += len(run)
        if g < 10 and len(run) >= 3:
            pump(1)
    elif Q:
        pump(1)
    else:
        wait_tag("VB%d" % g)
publish(1, 1)
stamp()
a("s_cmp_lt_u32 s%d, 3" % sB)
a("s_cselect_b32 s%d, s%d, 0" % (KB + 2, sNRK))
QR2 = 52
if P["APF"]:
    a("s_add_u32 s15, s%d, %d" % (sPq, 2 * PH))
    pump(8)
    while Q:
        a("buffer_load_dwordx4 %s, v%d, %s, s15 offen sc1" % (V(QR2, 4), vQa, S(WS, 4)), tag="q")
        pump(P["APF"])
        wait_tag("q")
        exact_check(range(QR2, QR2 + 4), vT)
        a("s_cbranch_vccz L_Q3D")
pump(100)

WIN[0] = W
qcheck(2, False, QR2, "L_Q3D")
curh.update(K=None, V=None, m0=None)
stamp()
STG3 = [home("KA", 24), home("KA", 28), home("KA", 32)]
korder = list(range(24)) + [36] + list(range(24, 36))
for i in korder:
    Q.append(("KA", sNxt, i, "home", True))
order3 = [0, 6, 1, 7, 8, 2, 3, 4, 5, 9]


def _h3(i):
    g = order3[i]
    if g in (6, 7, 8):
        for x in range(4 * g, 4 * g + 4):
            live[("KA", x)] = True
        stage(g - 6, STG3[g - 6])
    pump({0: 4, 2: min(4, W - 4), 6: 1, 9: 1}.get(i, 0), paced=False)


qk_burst("KA", order3, hook=_h3, release=True)
softmax()


def _post3(i):
    if i + 3 < 10:
        stage(i + 3, STG3[i % 3])
    if i in (0, 4, 8):
        pump(1, paced=False)


pv_seq([(g, STG3[g % 3]) for g in range(10)], True, pre=_pre1, post=_post3)
publish(0, 2)
stamp()
for g in range(10):
    free("VA", g)
for g in (6, 7, 8):
    free("KA", g)
ka_rest = list(Q)
Q.clear()
l2 = [("VA", sNxt, i, "home", False) for i in range(PF)]
nslot = len(ka_rest) - P["CUD"] - W
for n_, it in enumerate(ka_rest):
    if n_ == P["CUD"]:
        Q.append(lambda: WIN.__setitem__(0, P["WCU"]))
    if n_ == len(ka_rest) - 2:
        Q.append(lambda: WIN.__setitem__(0, W))
    Q.append(it)
    if n_ >= P["CUD"] and nslot > 0:
        for _ in range(-(-len(l2) // nslot)):
            Q.append(l2.pop(0))
        nslot -= 1
assert not l2
pump(100)
a("s_add_u32 s%d, s%d, 1" % (sB, sB))
a("s_mov_b32 s%d, s%d" % (sCur, sNxt))
a("s_add_u32 s%d, s%d, %d" % (sPq, sPq, 4 * PH))
a("s_add_u32 s%d, s%d, %d" % (sPa, sPa, 4 * PH))
stamp()
a("s_branch L_J")

a.label("L_COMM")
lgq.clear()
vL8, vML, vM01, vHa, vHc, vOw, vOr, vX1, vX3, vG16, vL4, vC, vWL, vL16, vY1, vY2 = 1, 2, 3, 4, 5, 6, 7, 8, 9, 10, 11, 12, 16, 17, 18, 19
SET, TMP, AF, AC, STG, XF, G, XC = 20, 36, 52, 68, 84, 100, 108, 188
sP, sHA, sHB, sN, sHBm, sHC, sX, sTy, sMode, sGty, sWF, sHAo, sHBo, sHCo = 6, 7, 8, 9, 10, 11, 12, 13, 14, 15, 42, 43, 68, 69
SEL_LO, SEL_HI = 78, 77


def WQF(mat, k, ct):
    n = mat * 40 + 2 * k + ct
    return 256 + 4 * n if n < 64 else 192 + 4 * (n - 64)


def in_lds(i):
    return (i & 1) and i < 38


def greg(i):
    t, k = i // 4, i % 4
    return XC if i == 39 else G + 40 * (k // 2) + 4 * t


a("s_mov_b32 s%d, 0x05040100" % SEL_LO)
a("s_mov_b32 s%d, 0x07060302" % SEL_HI)
srd(OUT, 36, "5120")
a("v_lshlrev_b32 v%d, 2, v47" % vL4)
a("v_lshlrev_b32 v%d, 4, v47" % vL16)
a("v_lshrrev_b32 v44, 2, v47")
a("v_lshlrev_b32 v44, 13, v44")
a("v_and_b32 v43, 3, v47")
a("v_lshl_add_u32 v44, v43, 4, v44")
a("s_lshl_b32 s76, s%d, 8" % sH)
a("s_lshl_b32 s%d, s%d, 6" % (sT, sWv))
a("s_add_u32 s76, s76, s%d" % sT)
a("s_mul_i32 s71, s%d, 38912" % sWv)
a("s_add_u32 s71, s71, %d" % L_WO)
a("v_lshlrev_b32 v48, 9, v45")
a("v_lshl_add_u32 v48, v46, 2, v48")
a("v_add_u32 v48, s71, v48")
RAW = [52, 92, 132]
WT2 = 44


def wq_issue(n):
    mat, bt = n // 4, n % 4
    for r in range(10):
        a("s_add_u32 s%d, s76, %d" % (sT, (160 * bt + 16 * r) * 8192))
        a("s_add_u32 m0, s71, %d" % ((n % 3) * 10240 + r * 1024))
        a("buffer_load_dwordx4 v44, %s, s%d offen %slds" % (S(WT2 + 4 * mat, 4), sT, "nt " if P["WQNT"] else ""), tag="wq%d" % n)


def wq_read(n):
    for kk in range(5):
        a("v_add_u32 v49, %d, v48" % ((n % 3) * 10240 + kk * 2048))
        for e in range(0, 8, 2):
            a("ds_read2_b32 %s, v49 offset0:%d offset1:%d" % (V(RAW[0] + 8 * kk + e, 2), 16 * e, 16 * e + 16))
        if kk == 2:
            a("s_waitcnt lgkmcnt(6)")


def wq_perm(n):
    mat, bt = n // 4, n % 4
    tq = 92
    c = 0
    for kk in range(5):
        a("s_waitcnt lgkmcnt(%d)" % min(15, 4 * (4 - kk)))
        for ct in range(2):
            for e in range(0, 8, 2):
                r0 = RAW[0] + 8 * kk + e
                dst = WQF(mat, 5 * bt + kk, ct) + e // 2
                sel = SEL_HI if ct else SEL_LO
                if dst < 256:
                    a("v_perm_b32 v%d, v%d, v%d, s%d" % (dst, r0 + 1, r0, sel))
                else:
                    a("v_perm_b32 v%d, v%d, v%d, s%d" % (tq + c % 4, r0 + 1, r0, sel))
                    a("v_accvgpr_write_b32 %s, v%d" % (V(dst), tq + c % 4))
                    c += 1


def wq_step(n):
    a.wait_tag("wq%d" % n)
    wq_read(n)
    wq_perm(n)
    if n + 3 < 8:
        wq_issue(n + 3)


def comm_setup():
    a("v_lshlrev_b32 v%d, 3, v47" % vL8)
    a("v_and_b32 v43, 7, v47")
    a("v_cmp_eq_u32 vcc, 7, v43")
    a("v_min_u32 v43, 6, v43")
    a("v_lshlrev_b32 v%d, 7, v43" % vML)
    a("v_add_u32 v%d, 3584, v%d" % (vML, vML))
    a("v_cndmask_b32 v%d, 1.0, 0, vcc" % vM01)
    a("v_mul_u32_u24 v43, 1280, v45")
    a("v_lshl_add_u32 v%d, v46, 4, v43" % vHa)
    a("v_lshl_add_u32 v%d, v46, 3, v43" % vHc)
    a("v_add_u32 v%d, 512, v%d" % (vHc, vHc))
    a("s_mul_i32 s%d, s%d, 640" % (sT2, sWv))
    a("s_add_u32 s%d, s%d, %d" % (sT2, sT2, L_YB))
    a("v_add_u32 v%d, s%d, v%d" % (vOw, sT2, vL4))
    a("v_add_u32 v%d, s%d, v%d" % (vY1, sT2, vL16))
    a("v_add_u32 v%d, s%d, v%d" % (vY2, sT2, vL8))
    a("v_lshlrev_b32 v%d, 4, v45" % vG16)
    a("v_add_u32 v%d, s%d, v%d" % (vOr, sT2, vG16))
    a("s_mul_i32 s%d, s%d, 320" % (sT2, sWv))
    a("v_lshlrev_b32 v%d, 4, v46" % vX1)
    a("v_and_b32 v43, 1, v45")
    a("v_lshl_add_u32 v%d, v43, 2, v%d" % (vX1, vX1))
    a("v_lshrrev_b32 v43, 1, v45")
    a("v_lshl_add_u32 v%d, v43, 1, v%d" % (vX1, vX1))
    a("v_add_u32 v%d, s%d, v%d" % (vX1, sT2, vX1))
    a("v_lshlrev_b32 v%d, 2, v46" % vX3)
    a("v_lshl_add_u32 v%d, v43, 1, v%d" % (vX3, vX3))
    a("s_add_u32 s%d, s%d, 256" % (sT2, sT2))
    a("v_add_u32 v%d, s%d, v%d" % (vX3, sT2, vX3))
    a("v_add_u32 v%d, s71, v%d" % (vWL, vL16))
    a("s_mul_i32 s%d, s73, 163840" % sWF)
    a("s_mul_i32 s%d, s72, 320" % sT2)
    a("s_add_u32 s%d, s%d, s%d" % (sWF, sWF, sT2))
    a("s_movk_i32 s74, 560")
    a("s_movk_i32 s70, 640")
    for r in range(4):
        a("v_mov_b32 v%d, 0" % (vC + r))


stamp()
a("s_andn2_b32 s73, s%d, 3" % sH)
a("s_add_u32 s73, s73, s%d" % sWv)
a("s_and_b32 s72, s%d, 3" % sH)
a("s_mul_i32 s%d, s73, 4608" % sHAo)
a("s_mul_i32 s%d, s%d, 5120" % (sHBo, sWv))
a("s_add_u32 s%d, s%d, %d" % (sHBo, sHBo, HB0))
a("s_lshl_b32 s%d, s76, 1" % sHCo)
a("s_add_u32 s%d, s%d, %d" % (sHCo, sHCo, HC0))
a("s_mul_i32 s75, s72, 5120")
a("s_lshr_b32 s%d, s%d, 2" % (sT2, sH))
a("s_mul_i32 s%d, s%d, 640" % (sT2, sT2))
a("s_add_u32 s75, s75, s%d" % sT2)
a("s_add_u32 s75, s75, %d" % HB0)
a("v_add_u32 v40, s75, v%d" % vL16)
a("v_subrev_u32 v41, 640, v%d" % vL16)
a("v_add_u32 v41, s%d, v41" % sHCo)
a("v_cmp_gt_u32 vcc, 40, v47")
a("v_cndmask_b32 v40, v41, v40, vcc")
for r in range(4):
    a("v_mov_b32 v%d, -1" % (36 + r))
a("s_mov_b32 exec_hi, 0xfff")
for p in range(16):
    a("s_mov_b32 s%d, %d" % (sT, p * PH))
    a("buffer_store_dwordx4 v[36:39], v40, %s, s%d offen sc1" % (S(WS, 4), sT))
a("s_mov_b64 exec, -1")
srd(WT, 16, "5120")
a("s_mul_i32 s%d, s%d, 1280" % (sT, sWv))
for r in range(5):
    a("buffer_load_dword v%d, v%d, %s, s%d offen offset:%d" % (20 + r, vL4, S(WT, 4), sT, 256 * r))


def _between():
    comm_setup()
    a("s_waitcnt vmcnt(%d)" % (0 if P["CDEL"] else 30))
    a("s_mul_i32 s%d, s%d, 1280" % (sT2, sWv))
    a("v_add_u32 v43, s%d, v%d" % (sT2, vL4))
    a("v_mov_b32 v42, 0x3f803f80")
    for r in range(5):
        a("ds_write_b32 v43, v%d offset:%d" % (20 + r, L_X + 256 * r))
        a("ds_write_b32 v%d, v42 offset:%d" % (vL4, L_X + 4 * 1280 + 256 * r))
    a("s_waitcnt lgkmcnt(0)")
    a("s_barrier")
    a("s_cmp_lg_u32 s%d, 0" % sWv)
    a("s_cbranch_scc1 L_CNF")
    a("s_lshl_b32 s%d, s%d, 3" % (sT2, sH))
    a("s_add_u32 s%d, s%d, 7" % (sT2, sT2))
    a("v_mov_b32 v42, s%d" % sXc)
    a("s_mov_b64 exec, 1")
    a("buffer_store_byte v42, v%d, %s, s%d offen sc1" % (vL4, S(DBG, 4), sT2))
    a.vmopt.add(len(a.vmq) - 1)
    a("s_mov_b64 exec, -1")
    a.label("L_CNF")


WOS = [52, 56]
wa, wb = TMP + 4, TMP + 5


def wo_addr():
    a("v_mad_u32_u24 v%d, v%d, s74, v%d" % (wa, vG16, vHa))
    a("v_and_b32 v%d, 63, v%d" % (wb, vL4))
    a("v_add_u32 v%d, 256, v%d" % (wb, wb))
    a("v_mad_u32_u24 v%d, v%d, s70, v%d" % (wb, vG16, wb))


def wo_issue(srdn, k, R, tag=None):
    for e in range(8):
        if e % 4 == 0:
            a("s_add_u32 s%d, s%d, %d" % (sT, sWF, (32 * k + e) * 1280))
        a("buffer_load_dwordx4 %s, v%d, %s, s%d offen offset:%d" % (V(R + 4 * e, 4), wa, S(srdn, 4), sT, (e % 4) * 1280), tag=tag)
        a("buffer_load_dword v%d, v%d, %s, s%d offen offset:%d" % (R + 32 + e, wb, S(srdn, 4), sT, (e % 4) * 1280), tag=tag)


def wo_perm(R, dst_of):
    for t in range(10):
        for e in range(0, 8, 2):
            if t < 8:
                r0, r1 = R + 4 * e + t // 2, R + 4 * e + 4 + t // 2
            else:
                r0, r1 = R + 32 + e, R + 33 + e
            a("v_perm_b32 v%d, v%d, v%d, s%d" % (dst_of(t) + e // 2, r1, r0, SEL_HI if t & 1 else SEL_LO))


def wo_to_lds(mat):
    FO = 52
    for n_, k in enumerate((1, 3)):
        a.wait_tag("wo%d_%d" % (mat, k))
        wo_perm(G + 40 * n_, lambda t: XF + 4 * mat if (t == 9 and k == 3) else FO + 4 * t)
        for t in range(10):
            i = 4 * t + k
            if in_lds(i):
                a("ds_write_b128 v%d, %s offset:%d" % (vWL, V(FO + 4 * t, 4), mat * 19456 + (i // 2) * 1024))
        a("s_waitcnt lgkmcnt(0)")


def call_wq(ty, slot, mode, blk):
    a("s_mov_b32 s%d, %d" % (sTy, ty))
    a("s_mov_b32 s%d, %d" % (sX, L_X + 1280 * slot))
    a("s_mov_b32 s%d, %d" % (sMode, mode))
    a("s_add_u32 s%d, s%d, %d" % (sHC, sHCo, blk * PH))
    a("s_call_b64 %s, R_WQ" % S(RA, 2))


a.vmq[:] = []
a.vmopt.clear()
srd(WT2, 22, "0x%x" % (640 * 8192))
srd(WT2 + 4, 32, "0x%x" % (640 * 8192))
srd(WOS[0], 24, "0x%x" % (4096 * 1280))
srd(WOS[1], 34, "0x%x" % (4096 * 1280))
if P["CDEL"]:
    _between()
for n in range(3):
    wq_issue(n)
if not P["CDEL"]:
    _between()
wo_addr()
for n in range(4):
    wq_step(n)
    if n == 0:
        wo_issue(WOS[0], 1, G, "wo0_1")
        wo_issue(WOS[0], 3, G + 40, "wo0_3")
stamp()
call_wq(1, 4, 1, 0)
call_wq(1, 0, 0, 0)
stamp()
for n in range(4, 8):
    wq_step(n)
stamp()
wo_to_lds(0)
wo_issue(WOS[1], 1, G, "wo1_1")
wo_issue(WOS[1], 3, G + 40, "wo1_3")
call_wq(0, 4, 1, 0)
for b in range(1, 4):
    call_wq(1, b, 0, 4 * b)
stamp()
wo_to_lds(1)
a("s_barrier")
stamp()

a("s_mov_b32 s%d, 0x80808080" % sT2)
a.label("L_AFW")
a("buffer_load_dword v42, v%d, %s, 0 offen sc1" % (vL4, S(DBG, 4)))
a("s_waitcnt vmcnt(0)")
a("v_and_b32 v43, s%d, v42" % sT2)
a("v_cmp_ne_u32 vcc, s%d, v43" % sT2)
a("s_cbranch_vccz L_AFD")
budget("L_AFD", "L_AFW", 2)
a.label("L_AFD")
if P["LOCAL"]:
    a("s_mul_i32 s%d, s%d, 0x01010101" % (sT2, sXc))
    a("v_cmp_eq_u32 vcc, s%d, v42" % sT2)
    a("s_lshl_b32 s%d, s%d, 1" % (sT, sH))
    a("s_nop 3")
    a("s_lshr_b64 s[16:17], vcc, s%d" % sT)
    a("s_and_b32 s16, s16, 3")
    a("s_cmp_eq_u32 s16, 3")
    a("s_cselect_b32 s%d, 1, 0" % sLoc)
a("s_mov_b32 s%d, 0" % sN)
a("s_mov_b32 s%d, 0" % sMode)
a("s_mov_b32 s%d, 2" % sGty)
a("s_mov_b32 s18, 0x83654210")
a("s_mov_b32 s19, 0xfbedc7a9")
a("s_mov_b32 s%d, 0x%x" % (WT + 2, 4096 * 1280))

cM, cL, cW, cX, cA = TMP, TMP + 1, TMP + 2, TMP + 3, TMP + 4
tLW, tx1, tx3, xo = TMP + 8, TMP + 9, TMP + 10, TMP + 11
a.label("L_CH")
lgq.clear()
a("s_lshl_b32 s%d, s%d, 2" % (sT, sN))
a("s_lshr_b64 s[16:17], s[18:19], s%d" % sT)
a("s_and_b32 s%d, s16, 15" % sP)
a("s_and_b32 s%d, s%d, 1" % (sTy, sP))
a("s_cmp_eq_u32 s%d, s%d" % (sTy, sGty))
a("s_cbranch_scc1 L_GOK")
a("s_mov_b32 s%d, s%d" % (sGty, sTy))
a("s_cmp_eq_u32 s%d, 0" % sTy)
a("s_cselect_b32 s%d, s%d, s%d" % (WT, WOS[0], WOS[1]))
a("s_cselect_b32 s%d, s%d, s%d" % (WT + 1, WOS[0] + 1, WOS[1] + 1))
a("s_cselect_b64 vcc, -1, 0")
wo_addr()
wo_issue(WT, 2, G)
wo_issue(WT, 0, AF)
for r in range(4):
    a("v_cndmask_b32 v%d, v%d, v%d, vcc" % (XC + r, XF + 4 + r, XF + r))
a("s_waitcnt vmcnt(16)")
wo_perm(G, lambda t: G + 40 + 4 * t)
a("s_waitcnt vmcnt(0)")
wo_perm(AF, lambda t: G + 4 * t)
a.label("L_GOK")
if DIAG == 2:
    stamp()
a("s_mul_i32 s%d, s%d, %d" % (sT, sP, PH))
a("s_add_u32 s%d, s%d, s%d" % (sHA, sT, sHAo))
a("s_add_u32 s%d, s%d, s%d" % (sHB, sT, sHBo))
a("s_add_u32 s%d, s%d, s75" % (sHBm, sT))
a("s_add_u32 s%d, s%d, s%d" % (sHC, sT, sHCo))
a("s_add_u32 s%d, s%d, %d" % (sHC, sHC, PH))
a("s_lshr_b32 s%d, s%d, 2" % (sX, sP))
a("s_mul_i32 s%d, s%d, 1280" % (sX, sX))
a("s_mul_i32 s%d, s%d, 19456" % (sT, sTy))
a("v_add_u32 v%d, s%d, v%d" % (tLW, sT, vWL))
a("v_add_u32 v%d, s%d, v%d" % (tx1, sX, vX1))
a("v_add_u32 v%d, s%d, v%d" % (tx3, sX, vX3))
ds("ds_read_u16 v%d, v%d" % (xo, tx1))
ds("ds_read_u16 v%d, v%d offset:8" % (xo + 1, tx1))
ds("ds_read_u16 v%d, v%d" % (xo + 2, tx3))
SLOT = [STG, STG + 4, STG + 8, STG + 12, SET, SET + 4, SET + 8, SET + 12]


def lfrag(n):
    ds("ds_read_b128 %s, v%d offset:%d" % (V(SLOT[n % 8], 4), tLW, n * 1024), "lf%d" % n)


for n in range(4):
    lfrag(n)
wait_lg()
for r in range(3):
    a("v_lshlrev_b32 v%d, 16, v%d" % (xo + r, xo + r))
a.label("HA_L")
a("buffer_load_dwordx2 %s, v%d, %s, s%d offen sc1" % (V(SET + 14, 2), vML, S(WS, 4), sHA))
for p in range(7):
    a("buffer_load_dwordx2 %s, v%d, %s, s%d offen offset:%d sc1" % (V(SET + 2 * p, 2), vL8, S(WS, 4), sHA, p * 512))
ml = SET + 14
a("s_waitcnt vmcnt(7)")
a("v_max_f32_dpp v%d, v%d, v%d %s %s" % (cM, ml, ml, QP[0], DPPM))
a("v_mul_f32 v%d, v%d, v%d" % (cL, ml + 1, vM01))
a("v_max_f32_dpp v%d, v%d, v%d %s %s" % (cM, cM, cM, QP[1], DPPM))
a("v_max_f32_dpp v%d, v%d, v%d %s %s" % (cM, cM, cM, QP[2], DPPM))
a("v_sub_f32 v%d, v%d, v%d" % (cW, ml, cM))
a("v_exp_f32 v%d, v%d" % (cW, cW))
a("v_mul_f32 v%d, v%d, v%d" % (cL, cL, cW))
a("s_waitcnt vmcnt(0)")
lsum = ["v_add_f32_dpp v%d, v%d, v%d %s %s" % (cL, cL, cL, q, DPPM) for q in QP[:3]]
for p in range(7):
    for c in range(2):
        d = cA + 2 * (p & 1) + c
        op = "v_mul_f32_dpp" if p < 2 else "v_fmac_f32_dpp"
        a("%s v%d, v%d, v%d row_newbcast:%d %s" % (op, d, cW, SET + 2 * p + c, p, DPPM))
    if p in (0, 2, 4):
        a(lsum[p // 2])
    if p == 5:
        a("v_rcp_f32 v%d, v%d" % (cL, cL))
pk(cA, cA, cA + 2)
a("v_mul_f32 v%d, v%d, v%d" % (cA, cA, cL))
a("v_mul_f32 v%d, v%d, v%d" % (cA + 1, cA + 1, cL))
a("v_cmp_u_f32 vcc, v%d, v%d" % (cA, cA + 1))
a("v_cvt_pk_bf16_f32 v%d, v%d, v%d" % (cA, cA, cA + 1))
rawbr("s_cbranch_vccz HA_P")
exact_check(range(SET, SET + 16), cX)
a("s_cbranch_vccz HA_P")
budget("HA_P", "HA_L")
a.label("HA_P")
stamp()
ds("ds_write_b32 v%d, v%d" % (vOw, cA))
for k in range(4):
    ds("ds_read_b128 %s, v%d offset:%d" % (V(AF + 4 * k, 4), vOr, 64 * k), "af%d" % k)
for n in range(4, 8):
    lfrag(n)
ASL = [0, 1, 2, 3, 0, 1, 2, 3, 0, 1]


def ywrite(t):
    a("s_mov_b64 exec, 0xffff")
    if t < 8:
        o = 64 * (t // 4) + t % 4
        ds("ds_write2_b32 v%d, v%d, v%d offset0:%d offset1:%d" % (vY1, AC + 4 * ASL[t], AC + 4 * ASL[t + 1], o, o + 1))
    else:
        ds("ds_write2_b32 v%d, v%d, v%d offset0:128 offset1:129" % (vY2, AC + 4 * ASL[t], AC + 4 * ASL[t + 1]))
    a("s_mov_b64 exec, -1")


for i in range(40):
    t, k = i // 4, i % 4
    D = AC + 4 * ASL[t]
    wait_lg("af%d" % k)
    if in_lds(i):
        n = i // 2
        wait_lg("lf%d" % n)
        src = SLOT[n % 8]
    else:
        src = greg(i)
    mfma(D, AF + 4 * k, src, "0" if k == 0 else V(D, 4))
    if in_lds(i) and i // 2 + 8 < 19:
        lfrag(i // 2 + 8)
    if i in (13, 21, 29, 37):
        ywrite((i - 13) // 4)
ywrite(8)
wait_lg()
fstamp()
a("s_barrier")
fstamp()
a("s_cmp_lg_u32 s%d, 0" % sWv)
rawbr("s_cbranch_scc1 HB_0")
YR = SET
a("s_mov_b32 exec_hi, 0xff")
for w_ in range(4):
    a("ds_read_b128 %s, v%d offset:%d" % (V(YR + 4 * w_, 4), vY1, 640 * w_))
a("s_waitcnt lgkmcnt(2)")
pk(YR, YR, YR + 4); pk(YR + 2, YR + 2, YR + 6)
a("s_waitcnt lgkmcnt(0)")
pk(YR + 8, YR + 8, YR + 12); pk(YR + 10, YR + 10, YR + 14)
pk(YR, YR, YR + 8); pk(YR + 2, YR + 2, YR + 10)
for r in range(4):
    a("v_min_u32 v%d, -2, v%d" % (YR + r, YR + r))
a("buffer_store_dwordx4 %s, v%d, %s, s%d offen sc1" % (V(YR, 4), vL16, S(WS, 4), sHBm))
a("s_mov_b64 exec, -1")
a.label("HB_0")
fstamp()
a("s_and_b32 s%d, s%d, 3" % (sT, sP))
a("s_cmp_eq_u32 s%d, 3" % sT)
rawbr("s_cbranch_scc1 L_FINAL")
a.label("HB_L")
NS = P["HBS"]
T = AF


def hb_issue(k):
    for p in range(2):
        U = G + 20 * k + 10 * p
        a("buffer_load_dwordx4 %s, v%d, %s, s%d offen offset:%d sc1" % (V(U, 4), vHa, S(WS, 4), sHB, p * 640))
        a("buffer_load_dwordx4 %s, v%d, %s, s%d offen offset:%d sc1" % (V(U + 4, 4), vHa, S(WS, 4), sHB, p * 640 + 256))
        a("buffer_load_dwordx2 %s, v%d, %s, s%d offen offset:%d sc1" % (V(U + 8, 2), vHc, S(WS, 4), sHB, p * 640))


a("s_mov_b32 s%d, 2" % sGty)
for k in range(NS):
    if k and P["HBSL"]:
        a("s_sleep %d" % P["HBSL"])
    hb_issue(k)
a.label("HB_R")
for k in range(NS):
    U0 = G + 20 * k
    a("s_waitcnt vmcnt(%d)" % (6 * (NS - 1)))
    for r in range(0, 10, 2):
        pk(T + r, U0 + r, U0 + 10 + r)
    for r in (0, 2, 4, 6, 8):
        a("v_permlane32_swap_b32 v%d, v%d" % (T + r, T + r + 1))
    for r in (8, 0, 2, 4, 6):
        a("v_add_f32 v%d, v%d, v%d" % (T + r, T + r, T + r + 1))
        if r == 8:
            a("v_mov_b32 v%d, v%d" % (T + 9, T + 8))
    a("v_permlane16_swap_b32 v%d, v%d" % (T + 8, T + 9))
    a("v_permlane16_swap_b32 v%d, v%d" % (T, T + 2))
    a("v_permlane16_swap_b32 v%d, v%d" % (T + 4, T + 6))
    a("v_add_f32 v%d, v%d, v%d" % (T + 8, T + 8, T + 9))
    a("v_add_f32 v%d, v%d, v%d" % (T, T, T + 2))
    a("v_add_f32 v%d, v%d, v%d" % (T + 4, T + 4, T + 6))
    a("v_add_f32 v%d, v%d, v%d" % (T + 9, T + 8, T))
    a("v_cmp_u_f32 vcc, v%d, v%d" % (T + 9, T + 4))
    rawbr("s_cbranch_vccz HB_P")
    exact_check(range(U0, U0 + 20), cX)
    a("s_cbranch_vccz HB_P")
    budget("HB_P", None)
    hb_issue(k)
a("s_branch HB_R")
a.label("HB_P")
if DIAG != 2:
    stamp()
a("v_cvt_pk_bf16_f32 v%d, v%d, v%d" % (T + 8, T + 8, T + 8))
a("v_cvt_pk_bf16_f32 v%d, v%d, v%d" % (T, T, T + 4))
a("v_lshlrev_b32 v%d, 16, v%d" % (T + 8, T + 8))
a("v_lshlrev_b32 v%d, 16, v%d" % (T + 1, T))
a("v_and_b32 v%d, 0xffff0000, v%d" % (T + 2, T))
a("v_add_f32 v%d, v%d, v%d" % (T + 8, T + 8, xo + 2))
a("v_add_f32 v%d, v%d, v%d" % (T + 1, T + 1, xo))
a("v_add_f32 v%d, v%d, v%d" % (T + 2, T + 2, xo + 1))
a("v_cvt_pk_bf16_f32 v%d, v%d, v%d" % (cA + 1, T + 8, T + 8))
a("v_cvt_pk_bf16_f32 v%d, v%d, v%d" % (cA, T + 1, T + 2))
a("s_cmp_eq_u32 s%d, 16" % sN)
rawbr("s_cbranch_scc1 L_OUT")
a("ds_write_b16 v%d, v%d" % (tx3, cA + 1))
a("ds_write_b16 v%d, v%d" % (tx1, cA))
a("ds_write_b16_d16_hi v%d, v%d offset:8" % (tx1, cA))
a("s_waitcnt lgkmcnt(0)")
fstamp()
a("s_barrier")
fstamp()
a("s_call_b64 %s, R_WQ" % S(RA, 2))
stamp()
a("s_add_u32 s%d, s%d, 1" % (sN, sN))
a("s_branch L_CH")
a.label("L_FINAL")
a("s_barrier")
stamp()
a("s_add_u32 s%d, s%d, 1" % (sN, sN))
a("s_cmp_lt_u32 s%d, 16" % sN)
a("s_cbranch_scc1 L_CH")
a("s_cmp_gt_u32 s%d, 3" % sH)
a("s_cbranch_scc1 L_FIN")
a("s_cmp_eq_u32 s%d, 3" % sH)
a("s_cbranch_scc1 HB_L")
a("s_lshl_b32 s%d, s%d, 2" % (sT, sH))
a("s_add_u32 s%d, s%d, 3" % (sT, sT))
a("s_mul_i32 s%d, s%d, %d" % (sT, sT, PH))
a("s_add_u32 s%d, s%d, s%d" % (sHB, sT, sHBo))
a("s_mul_i32 s%d, s%d, 1280" % (sX, sH))
a("v_add_u32 v%d, s%d, v%d" % (tx1, sX, vX1))
a("v_add_u32 v%d, s%d, v%d" % (tx3, sX, vX3))
a("ds_read_u16 v%d, v%d" % (xo, tx1))
a("ds_read_u16 v%d, v%d offset:8" % (xo + 1, tx1))
a("ds_read_u16 v%d, v%d" % (xo + 2, tx3))
a("s_waitcnt lgkmcnt(0)")
for r in range(3):
    a("v_lshlrev_b32 v%d, 16, v%d" % (xo + r, xo + r))
a("s_branch HB_L")
a.label("L_OUT")
a("buffer_store_short v%d, v%d, %s, s%d offen" % (cA + 1, vX3, S(OUT, 4), sX))
a("buffer_store_short v%d, v%d, %s, s%d offen" % (cA, vX1, S(OUT, 4), sX))
a("buffer_store_short_d16_hi v%d, v%d, %s, s%d offen offset:8" % (cA, vX1, S(OUT, 4), sX))
a("s_branch L_FIN")

a.label("R_WQ")
lgq.clear()
ta, ts = TMP + 14, TMP + 15
DQ, XS, s2, s1, su, one = AC, AF, AF + 6, AF + 7, AF + 8, AF + 9
a("v_add_u32 v%d, s%d, v%d" % (ta, sX, vG16))
a("v_add_u32 v%d, s%d, v%d" % (ts, sX, vL4))
for k in range(6):
    ds("ds_read_b128 %s, v%d offset:%d" % (V(SLOT[k % 8], 4), ta, 64 * k), "xf%d" % k)
for r in range(5):
    ds("ds_read_b32 v%d, v%d offset:%d" % (XS + r, ts, 256 * r), "xs")
a("v_mov_b32 v%d, 0" % s2)
a("v_mov_b32 v%d, 0" % s1)
a("v_mov_b32 v%d, 0x3f803f80" % one)
a("s_cmp_eq_u32 s%d, 0" % sTy)
rawbr("s_cbranch_scc1 WQ_B")
lg_save = list(lgq)


def stats_ops():
    ops = []
    for r in range(5):
        ops.append("v_dot2c_f32_bf16 v%d, v%d, v%d" % (s2, XS + r, XS + r))
        ops.append("v_dot2c_f32_bf16 v%d, v%d, v%d" % (s1, XS + r, one))
    for q in QP:
        ops.append("v_add_f32_dpp v%d, v%d, v%d %s %s" % (s2, s2, s2, q, DPPM))
        ops.append("v_add_f32_dpp v%d, v%d, v%d %s %s" % (s1, s1, s1, q, DPPM))
    for sw in ("v_permlane16_swap_b32", "v_permlane32_swap_b32"):
        ops.append("v_mov_b32 v%d, v%d" % (su, s2))
        ops.append("v_mov_b32 v%d, v%d" % (XS, s1))
        ops.append("%s v%d, v%d" % (sw, s2, su))
        ops.append("%s v%d, v%d" % (sw, s1, XS))
        ops.append("v_add_f32 v%d, v%d, v%d" % (s2, s2, su))
        ops.append("v_add_f32 v%d, v%d, v%d" % (s1, s1, XS))
    ops += [
        "v_mul_f32 v%d, 0x%08x, v%d" % (s1, f32(1.0 / 640), s1),
        "v_mul_f32 v%d, 0x%08x, v%d" % (s2, f32(1.0 / 640), s2),
        "v_fma_f32 v%d, -v%d, v%d, v%d" % (s2, s1, s1, s2),
        "v_max_f32 v%d, 0, v%d" % (s2, s2),
        "v_cvt_pk_bf16_f32 v%d, v%d, v%d" % (s2, s1, s2),
        "v_lshlrev_b32 v%d, 16, v%d" % (s1, s2),
        "v_and_b32 v%d, 0xffff0000, v%d" % (s2, s2),
        "v_add_f32 v%d, 0x%08x, v%d" % (s2, f32(1e-5), s2),
        "v_cvt_pk_bf16_f32 v%d, v%d, v%d" % (s2, s2, s2),
        "v_and_b32 v%d, 0xffff0000, v%d" % (s2, s2),
        "v_sqrt_f32 v%d, v%d" % (s2, s2),
        "v_cvt_pk_bf16_f32 v%d, v%d, v%d" % (s2, s2, s2),
        "v_and_b32 v%d, 0xffff0000, v%d" % (s2, s2),
        "v_rcp_f32 v%d, v%d" % (s2, s2),
    ]
    return ops


for mat in (0, 1):
    if mat == 1:
        a.label("WQ_B")
        lgq[:] = lg_save
    so = stats_ops()
    for k in range(20):
        wait_lg("xf%d" % k)
        for ct in range(2):
            mfma(DQ + 4 * ct, SLOT[k % 8], WQF(mat, k, ct), "0" if k == 0 else V(DQ + 4 * ct, 4))
            if ct == 0 and k + 6 < 20:
                ds("ds_read_b128 %s, v%d offset:%d" % (V(SLOT[(k + 6) % 8], 4), ta, 64 * (k + 6)), "xf%d" % (k + 6))
            if k >= 3:
                if k == 3 and ct == 0:
                    wait_lg("xs")
                for _ in range((1 if (ct == 0 and k + 6 < 20) else 2)):
                    if so:
                        a(so.pop(0))
    for op in so:
        a(op)
    Cr = vC + 2 * mat
    lab = a.newlabel("WQC")
    a("s_cmp_eq_u32 s%d, 0" % sMode)
    rawbr("s_cbranch_scc0 %s" % lab)
    a("v_fma_f32 v%d, -v%d, v%d, v%d" % (DQ, s1, Cr, DQ))
    a("v_fma_f32 v%d, -v%d, v%d, v%d" % (DQ + 4, s1, Cr + 1, DQ + 4))
    a("v_mul_f32 v%d, v%d, v%d" % (DQ, DQ, s2))
    a("v_mul_f32 v%d, v%d, v%d" % (DQ + 4, DQ + 4, s2))
    a("v_cvt_pk_bf16_f32 v%d, v%d, v%d" % (DQ, DQ, DQ + 4))
    a("v_min_u32 v%d, -2, v%d" % (DQ, DQ))
    lab2 = a.newlabel("QLOC")
    a("s_mov_b64 exec, 0xffff")
    a("s_cmp_eq_u32 s%d, 0" % sLoc)
    rawbr("s_cbranch_scc1 %s" % lab2)
    a("buffer_store_dword v%d, v%d, %s, s%d offen" % (DQ, vL4, S(WS, 4), sHC))
    a("s_mov_b64 exec, -1")
    a("s_setpc_b64 %s" % S(RA, 2))
    a.label(lab2)
    a("buffer_store_dword v%d, v%d, %s, s%d offen sc1" % (DQ, vL4, S(WS, 4), sHC))
    a("s_mov_b64 exec, -1")
    a("s_setpc_b64 %s" % S(RA, 2))
    a.label(lab)
    a.nop(8)
    a("v_mov_b32 v%d, v%d" % (Cr, DQ))
    a("v_mov_b32 v%d, v%d" % (Cr + 1, DQ + 4))
    a("s_setpc_b64 %s" % S(RA, 2))

a.label("L_FIN")
if DIAG:
    stamp()
    a("v_mbcnt_lo_u32_b32 v1, -1, 0")
    a("v_mbcnt_hi_u32_b32 v1, -1, v1")
    a("v_lshlrev_b32 v1, 2, v1")
    a("s_lshl_b32 s%d, s%d, 3" % (sT, sH))
    a("s_add_u32 s%d, s%d, s%d" % (sT, sT, sS))
    a("s_lshl_b32 s%d, s%d, 2" % (sT, sT))
    a("s_add_u32 s%d, s%d, s%d" % (sT, sT, sWv))
    a("s_lshl_b32 s%d, s%d, 8" % (sT, sT))
    a("s_add_u32 s%d, s%d, 0x%x" % (sT, sT, WS_DIAG))
    a("buffer_store_dword v0, v1, %s, s%d offen" % (S(WS, 4), sT))
a.label("L_END")
a("s_endpgm")

ref = open(os.path.join(os.path.dirname(__file__), "..", "cdna_kernels", NAME + ".s.ref")).read().splitlines()
head = [l for l in ref if l.startswith(";") and "@launch" not in l and not l.startswith("; Override") and not l.startswith("; grid=")]
out = "\n".join(head) + "\n"
out += "; @launch grid=(256,1,1) block=(256,1,1) lds=%d\n" % LDS_BYTES
out += '.amdgcn_target "amdgcn-amd-amdhsa--gfx950"\n.text\n.globl %s_kernel\n.p2align 8\n.type %s_kernel,@function\n%s_kernel:\n' % (NAME, NAME, NAME)
out += a.text()
out += """.section .rodata,"a"
.p2align 6
.amdhsa_kernel %s_kernel
  .amdhsa_next_free_vgpr 512
  .amdhsa_next_free_sgpr 102
  .amdhsa_accum_offset 256
  .amdhsa_group_segment_fixed_size 0
  .amdhsa_kernarg_size 104
  .amdhsa_user_sgpr_count 2
  .amdhsa_user_sgpr_kernarg_segment_ptr 1
  .amdhsa_system_sgpr_workgroup_id_x 1
  .amdhsa_float_denorm_mode_32 3
.end_amdhsa_kernel
""" % NAME
open(sys.argv[1], "w").write(out)
print("wrote", sys.argv[1], len(a.lines), "lines")
```

```python
import sys, os, math, struct
from collections import deque
sys.path.insert(0, os.path.dirname(__file__))
from asmlib import Asm, V, S

NAME = "interleave_layers__gqa_block_cached__gqa_block_cached__decode"

P = dict(W=6, DIAG=0, PF=28, NVJ=24, L2B=0, L2R=8, PBAR=1, TCH=0, EGB=0, WOT=2, ORD=1, PF4=16, Q2POS=34, WPF=1, SCALE=1000, W0=6, CUD=0, ROT=0, CPF=1, WQNT=0, CDEL=1, LOCAL=1, HBS=1, HBSL=3, APF=4, WCU=6, XB=1, HLP=0, WH=4, B4R=4, WPFW=4, WEND=6, NEND=12)
for arg in sys.argv[2:]:
    k, v = arg.split("=")
    P[k] = int(v)
W = P["W"]
DIAG = P["DIAG"]
PF = P["PF"]
NVJ = P["NVJ"]


def f32(x):
    return struct.unpack("<I", struct.pack("<f", x))[0]


LDS_BYTES = 163840
L_CNT = [0, 4]
L_PART = [64, 64 + 2112]
L_VA = 8192
L_X = 0
L_YB = 5120
L_WO = 8192
PH = 184320
HB0 = 147456
HC0 = 167936
WF0 = 4 << 20
WS_DIAG = 12 << 20
WS_BYTES = 13 << 20
BATCH = 1 << 25
TENSOR = 1 << 27
DPPM = "row_mask:0xf bank_mask:0xf"
QP = ["quad_perm:[1,0,3,2]", "quad_perm:[2,3,0,1]", "row_half_mirror", "row_mirror"]

a = Asm()

sH, sS, sWv = 3, 4, 5
KA, VA, KB, VB, WS, DBG, WT, OUT = 44, 48, 52, 56, 80, 84, 88, 92
sNRK, sNRV = 60, 61
sTO, sC, sT, sT2, sLB, sTv = 62, 63, 64, 65, 66, 67
sQM = 70
sDI = 98
sXc, sLoc = 99, 79
RA = 100


def stamp():
    if not DIAG:
        return
    a("s_memrealtime s[96:97]")
    a("s_waitcnt lgkmcnt(0)")
    lgq.clear()
    a("s_lshl_b64 exec, 1, s%d" % sDI)
    a("v_mov_b32 v0, s96")
    a("s_mov_b64 exec, -1")
    a("s_add_u32 s%d, s%d, 1" % (sDI, sDI))


def fstamp():
    if DIAG != 3:
        return
    lab = a.newlabel("FS")
    a("s_cmp_lt_u32 s9, 11")
    a("s_cbranch_scc1 %s" % lab)
    sv = list(lgq)
    stamp()
    lgq[:] = sv
    a.label(lab)


def budget(done, loop, sleep=None):
    a("s_cmp_eq_u32 s%d, 0" % sTO)
    a("s_cbranch_scc1 %s" % done)
    a("s_sub_u32 s%d, s%d, 1" % (sTO, sTO))
    if sleep:
        a("s_sleep %d" % sleep)
    if loop:
        a("s_branch %s" % loop)


def rawbr(text):
    a.raw("    " + text)
    a.st += 1


def mfma(d, x, y, c):
    a("v_mfma_f32_16x16x32_bf16 %s, %s, %s, %s" % (V(d, 4), V(x, 4), V(y, 4), c))


def pk(d, x, y):
    a("v_pk_add_f32 %s, %s, %s" % (V(d, 2), V(x, 2), V(y, 2)))


def srd(dst, ptr, nrec):
    a("s_mov_b32 s%d, s%d" % (dst, ptr))
    a("s_and_b32 s%d, s%d, 0xffff" % (dst + 1, ptr + 1))
    a("s_mov_b32 s%d, %s" % (dst + 2, nrec))
    a("s_mov_b32 s%d, 0x20000" % (dst + 3))


lgq = []


def ds(text, tag=None):
    a(text)
    lgq.append(tag)


def wait_lg(tag=None):
    if tag is None:
        a("s_waitcnt lgkmcnt(0)")
        lgq.clear()
        return
    if tag not in lgq:
        return
    idx = max(i for i, t in enumerate(lgq) if t == tag)
    n = len(lgq) - 1 - idx
    a("s_waitcnt lgkmcnt(%d)" % min(n, 15))
    del lgq[:len(lgq) - min(n, 15)]


def exact_check(regs, t):
    regs = list(regs)
    a("v_max3_u32 v%d, v%d, v%d, v%d" % (t, regs[0], regs[1], regs[2]))
    i = 3
    while i < len(regs):
        r2 = regs[i + 1] if i + 1 < len(regs) else regs[i]
        a("v_max3_u32 v%d, v%d, v%d, v%d" % (t, t, regs[i], r2))
        i += 2
    a("v_cmp_eq_u32 vcc, -1, v%d" % t)


a("s_cmp_ge_u32 s2, 256")
a("s_cbranch_scc1 L_END")
a("s_load_dwordx16 s[16:31], s[0:1], 0")
a("s_load_dwordx8 s[32:39], s[0:1], 64")
a("s_load_dwordx2 s[40:41], s[0:1], 96")
a("v_lshrrev_b32 v1, 6, v0")
a("v_and_b32 v47, 63, v0")
a("v_readfirstlane_b32 s%d, v1" % sWv)
a("v_mov_b32 v0, 0")
a("s_and_b32 s%d, s2, 7" % sH)
a("s_lshl_b32 s%d, s%d, 2" % (sH, sH))
a("s_lshr_b32 s6, s2, 3")
a("s_and_b32 s6, s6, 3")
a("s_add_u32 s%d, s%d, s6" % (sH, sH))
a("s_lshr_b32 s%d, s2, 5" % sS)
a("s_mov_b32 s%d, 200000" % sTO)
a("s_mov_b32 s%d, 0" % sDI)
a("s_getreg_b32 s%d, hwreg(HW_REG_XCC_ID, 0, 4)" % sXc)
a("s_or_b32 s%d, s%d, 0x80" % (sXc, sXc))
a("s_mov_b32 s%d, 0" % sLoc)
a("v_and_b32 v46, 15, v47")
a("v_lshrrev_b32 v45, 4, v47")
a("s_waitcnt lgkmcnt(0)")
srd(WS, 40, "0x%x" % WS_BYTES)
srd(DBG, 38, "256")
a("s_cmp_eq_u32 s%d, 7" % sS)
a("s_cbranch_scc1 L_COMM")

vK, vL, vPt, MK, vBias = 1, 2, 3, 4, 8
SS = list(range(9, 19))
vQa = 19
ML, vT, vU = 20, 22, 23
D2, D1, D3 = 20, 24, 28
QF = 32
ACC = 32
QR = 48
sB, sCur, sNxt, sHas, sPq, sPa, sWi = 6, 7, 8, 9, 10, 11, 12
GO = 16


def home(kind, i):
    if kind == "KA":
        return 68 + 4 * i
    if kind == "KB":
        return 216 + 4 * i
    if kind == "VB":
        return 216 + 148 + 4 * i
    raise KeyError


assert home("VB", 36) + 4 == 512

a("s_mov_b32 s%d, 0x%08x" % (sC, f32(128 ** -0.5 * math.log2(math.e) * P["SCALE"] / 1000.0)))
for t in range(4):
    m = 0x000F000F << (4 * t)
    a("s_mov_b32 s%d, 0x%08x" % (sQM + 2 * t, m))
    a("s_mov_b32 s%d, 0x%08x" % (sQM + 2 * t + 1, m))
a("s_mul_i32 s%d, s%d, 7" % (sWi, sWv))
a("s_add_u32 s%d, s%d, s%d" % (sWi, sWi, sS))
a("s_cmp_lt_u32 s%d, 16" % sWi)
a("s_cselect_b32 s%d, 1, 0" % sHas)
a("s_min_u32 s13, s%d, 16" % sWi)
a("s_mul_i32 s14, s%d, 36" % sWi)
a("s_add_u32 s13, s13, s14")
a("s_lshl_b32 s13, s13, 10")
a("s_lshl_b32 s14, s%d, 20" % sH)
a("s_add_u32 s13, s13, s14")
a("s_mul_i32 s%d, s%d, 37888" % (sLB, sWv))
a("s_add_u32 s%d, s%d, %d" % (sLB, sLB, L_VA))
a("s_sub_u32 s%d, 0x%x, s13" % (sNRK, TENSOR))
a("s_add_u32 s%d, s%d, s%d" % (sNRV, sNRK, sLB))
for dst, ptr, isv in ((KA, 18, 0), (VA, 20, 1), (KB, 28, 0), (VB, 30, 1)):
    a("s_add_u32 s%d, s%d, s13" % (dst, ptr))
    a("s_addc_u32 s%d, s%d, 0" % (dst + 1, ptr + 1))
    if isv:
        a("s_sub_u32 s%d, s%d, s%d" % (dst, dst, sLB))
        a("s_subb_u32 s%d, s%d, 0" % (dst + 1, dst + 1))
    a("s_and_b32 s%d, s%d, 0xffff" % (dst + 1, dst + 1))
    a("s_mov_b32 s%d, s%d" % (dst + 2, sNRV if isv else sNRK))
    a("s_mov_b32 s%d, 0x20000" % (dst + 3))
if P["HLP"]:
    a("s_add_u32 s14, s%d, 1" % sS)
    a("s_cmp_eq_u32 s14, 7")
    a("s_cselect_b32 s14, 0, s14")
    a("s_mul_i32 s15, s%d, 7" % sWv)
    a("s_add_u32 s14, s14, s15")
    a("s_min_u32 s15, s14, 16")
    a("s_mul_i32 s14, s14, 36")
    a("s_add_u32 s14, s14, s15")
    a("s_lshl_b32 s14, s14, 10")
    a("s_lshl_b32 s15, s%d, 20" % sH)
    a("s_add_u32 s14, s14, s15")
    a("s_add_u32 s%d, s30, s14" % OUT)
    a("s_addc_u32 s%d, s31, 0" % (OUT + 1))
    a("s_sub_u32 s%d, s%d, s%d" % (OUT, OUT, sLB))
    a("s_subb_u32 s%d, s%d, 0" % (OUT + 1, OUT + 1))
    a("s_and_b32 s%d, s%d, 0xffff" % (OUT + 1, OUT + 1))
    a("s_sub_u32 s%d, 0x%x, s14" % (OUT + 2, TENSOR))
    a("s_add_u32 s%d, s%d, s%d" % (OUT + 2, OUT + 2, sLB))
    a("s_mov_b32 s%d, 0x20000" % (OUT + 3))
a("v_and_b32 v44, 3, v47")
a("v_lshlrev_b32 v%d, 4, v44" % vQa)
a("v_lshl_add_u32 v%d, v45, 6, v%d" % (vQa, vQa))
a("v_bfe_u32 v44, v47, 2, 2")
a("v_lshl_add_u32 v%d, v44, 8, v%d" % (vK, vQa))
a("v_lshl_add_u32 v%d, v45, 6, v%d" % (vQa, vQa))
a("v_lshlrev_b32 v43, 4, v47")
a("v_add_u32 v%d, s%d, v43" % (vL, sLB))
a("s_lshl_b32 s%d, s%d, 9" % (sPq, sH))
a("s_add_u32 s%d, s%d, %d" % (sPq, sPq, HC0))
a("s_mul_i32 s%d, s%d, 4608" % (sPa, sH))
a("s_mov_b32 s%d, 0" % sB)
a("s_mov_b32 s%d, 0" % sCur)
stamp()

wpf = []
if P["WPF"]:
    a("s_and_b32 s15, s%d, 3" % sH)
    a("s_mul_i32 s15, s15, 28")
    a("s_add_u32 s15, s15, s%d" % sWi)
    a("s_lshr_b32 s42, s%d, 2" % sH)
    a("s_mul_i32 s43, s42, 655360")
    a("s_lshl_b32 s42, s42, 10")

    def wpf_load(ptr, isq, r):
        def fn():
            if r == 0:
                srd(WT, ptr, "0x%x" % (640 * 8192))
            a("s_add_u32 s%d, s15, %d" % (sT2, 112 * r))
            a("s_min_u32 s%d, s%d, 639" % (sT2, sT2))
            a("s_lshl_b32 s%d, s%d, %d" % (sT2, sT2, 13 if isq else 10))
            a("s_add_u32 s%d, s%d, s%d" % (sT2, sT2, 42 if isq else 43))
            a("buffer_load_dwordx4 %s, v43, %s, s%d offen" % (V(QR, 4), S(WT, 4), sT2), tag="wpf")
        return fn
    for ptr, isq in ((22, 1), (24, 0), (34, 0), (32, 1)):
        for r in range(6):
            wpf.append(wpf_load(ptr, isq, r))

curh = {"K": None, "V": None, "m0": None}
fab = []
done_idx = [-1]
live = {}


def waitvm(n):
    assert n <= 63, n
    a("s_waitcnt vmcnt(%d)" % n)
    i, c = len(a.vmq) - 1, 0
    while i >= 0 and c < n:
        if i not in a.vmopt:
            c += 1
        i -= 1
    done_idx[0] = max(done_idx[0], i)


def tag_idx(tag):
    return max(i for i, t in enumerate(a.vmq) if t == tag)


def landed(tag):
    return tag_idx(tag) <= done_idx[0]


def wait_tag(tag):
    if not landed(tag):
        waitvm(a.vm_after_idx(tag_idx(tag)))


WIN = [P["W0"]]


def pace():
    w = WIN[0]
    if len(fab) >= w and fab[-w] > done_idx[0]:
        waitvm(a.vm_after_idx(fab[-w]))


def reset_vm():
    a.vmq[:] = ["old"] * W
    a.vmopt.clear()
    fab[:] = list(range(W))
    done_idx[0] = -1
    curh.update(K=None, V=None, m0=None)


def load_tile(kind, off, i, mode, fabric, paced):
    g, t = i // 4, i % 4
    srdn = {"KA": KA, "VA": VA, "KB": KB, "VB": VB, "VN": OUT}[kind]
    c = kind[0]
    vo, so = (vK, sT) if c == "K" else (vL, sTv)
    if mode == "home":
        assert not live.get((kind, i), False), ("slot busy", kind, i)
        live[(kind, i)] = True
    if curh[c] != (kind, off, g):
        a("s_add_u32 s%d, s%d, s%d" % (so, off, GO + g))
        curh[c] = (kind, off, g)
    lds = kind == "VA" and mode == "home"
    if lds and curh["m0"] != g:
        a("s_add_u32 m0, s%d, %d" % (sLB, g * 4096))
        curh["m0"] = g
    if fabric and paced:
        pace()
    opt = i == 36
    if opt:
        lab = a.newlabel("NT")
        a("s_cmp_eq_u32 s%d, 0" % sHas)
        rawbr("s_cbranch_scc1 %s" % lab)
    tag = "%s%d" % (kind, g) if mode == "home" else "pf"
    if lds:
        a("buffer_load_dwordx4 v%d, %s, s%d offen offset:%d nt lds" % (vo, S(srdn, 4), so, t * 1024), tag=tag)
    elif mode == "home":
        a("buffer_load_dwordx4 %s, v%d, %s, s%d offen offset:%d nt" % (V(home(kind, i), 4), vo, S(srdn, 4), so, t * 1024), tag=tag)
    else:
        a("buffer_load_dwordx4 %s, v%d, %s, s%d offen offset:%d" % (V(QR, 4), vo, S(srdn, 4), so, t * 1024), tag=tag)
    if opt:
        a.label(lab)
        a.st -= 1
        a.vmopt.add(len(a.vmq) - 1)
    elif fabric:
        fab.append(len(a.vmq) - 1)


Q = deque()


def pump(n=1, paced=True):
    while n > 0 and Q:
        it = Q.popleft()
        if callable(it):
            it()
            continue
        load_tile(*it, paced)
        n -= 1
        while Q and (callable(Q[0]) or not Q[0][4]):
            it = Q.popleft()
            if callable(it):
                it()
            else:
                load_tile(*it, paced)


def free(kind, g):
    for i in range(4 * g, min(4 * g + 4, 37)):
        live[(kind, i)] = False


def qload(blk_off):
    a("s_add_u32 s%d, s%d, %d" % (sT2, sPq, blk_off * PH))
    a("buffer_load_dwordx4 %s, v%d, %s, s%d offen sc1" % (V(QR, 4), vQa, S(WS, 4), sT2), tag="q")


def qcheck(blk_off, early, QR=QR, dn=None):
    lp, dn = a.newlabel("QL"), dn or a.newlabel("QD")
    if early:
        wait_tag("q")
        exact_check(range(QR, QR + 4), vT)
        a("s_cbranch_vccz %s" % dn)
    a("s_add_u32 s%d, s%d, %d" % (sT2, sPq, blk_off * PH))
    a.label(lp)
    a("buffer_load_dwordx4 %s, v%d, %s, s%d offen sc1" % (V(QR, 4), vQa, S(WS, 4), sT2), tag="qspin")
    if early:
        a.vmopt.add(len(a.vmq) - 1)
        a("s_waitcnt vmcnt(0)")
    else:
        waitvm(0)
    exact_check(range(QR, QR + 4), vT)
    a("s_cbranch_vccz %s" % dn)
    budget(dn, lp)
    a.label(dn)
    for t in range(4):
        for r in range(4):
            a("v_cndmask_b32 %s, 0, %s, %s" % (V(QF + 4 * t + r), V(QR + r), S(sQM + 2 * t, 2)))


def red_ops(D, g):
    Sr = SS[g]
    first = ("v_mov_b32_dpp %s, %s quad_perm:[0,0,0,0] %s" % (V(Sr), V(D), DPPM) if g < 9 else
             "v_add_f32_dpp %s, %s, %s quad_perm:[0,0,0,0] %s" % (V(Sr), V(D), V(vBias), DPPM))
    return [first] + [
        "v_add_f32_dpp %s, %s, %s quad_perm:[%d,%d,%d,%d] %s" % (V(Sr), V(D + r), V(Sr), r, r, r, r, DPPM)
        for r in (1, 2, 3)]


def qk_burst(kind, order, hook=None, release=False):
    Ds = [D1, D2, D3]
    n = len(order)
    for i, g in enumerate(order):
        D = Ds[i % 3]
        r = red_ops(Ds[(i - 2) % 3], order[i - 2]) if i >= 2 else [None] * 4
        for t in range(4):
            if g < 9 or t == 0:
                mfma(D, home(kind, 4 * g + t), QF + 4 * t, "0" if t == 0 else V(D, 4))
            if r[t]:
                a(r[t])
        if release:
            free(kind, g)
        if hook:
            hook(i)
    ra, rb = red_ops(Ds[(n - 2) % 3], order[n - 2]), red_ops(Ds[(n - 1) % 3], order[n - 1])
    for x, y in zip(ra, rb):
        a(x)
        a(y)


def xlane(op, X, U):
    a("%s_dpp %s, %s, %s row_ror:4 %s" % (op, V(X), V(X), V(X), DPPM))
    a("%s_dpp %s, %s, %s row_ror:8 %s" % (op, V(X), V(X), V(X), DPPM))
    a("v_mov_b32 %s, %s" % (V(U), V(X)))
    a("v_permlane16_swap_b32 %s, %s" % (V(X), V(U)))
    a("%s %s, %s, %s" % (op, V(X), V(X), V(U)))
    a("v_mov_b32 %s, %s" % (V(U), V(X)))
    a("v_permlane32_swap_b32 %s, %s" % (V(X), V(U)))
    a("%s %s, %s, %s" % (op, V(X), V(X), V(U)))


def softmax():
    M, L = ML, ML + 1
    a("v_max3_f32 %s, %s, %s, %s" % (V(M), V(SS[0]), V(SS[1]), V(SS[2])))
    a("v_max3_f32 %s, %s, %s, %s" % (V(L), V(SS[3]), V(SS[4]), V(SS[5])))
    a("v_max3_f32 %s, %s, %s, %s" % (V(M), V(M), V(SS[6]), V(SS[7])))
    a("v_max3_f32 %s, %s, %s, %s" % (V(L), V(L), V(SS[8]), V(SS[9])))
    a("v_max_f32 %s, %s, %s" % (V(M), V(M), V(L)))
    xlane("v_max_f32", M, vU)
    a("v_mul_f32 %s, s%d, %s" % (V(M), sC, V(M)))
    for s_ in SS:
        a("v_fma_f32 %s, %s, s%d, -%s" % (V(s_), V(s_), sC, V(M)))
    for s_ in SS:
        a("v_exp_f32 %s, %s" % (V(s_), V(s_)))
    a("v_add_f32 %s, %s, %s" % (V(L), V(SS[0]), V(SS[1])))
    for s_ in SS[2:]:
        a("v_add_f32 %s, %s, %s" % (V(L), V(L), V(s_)))
    for s_ in SS:
        a("v_cvt_pk_bf16_f32 %s, %s, %s" % (V(s_), V(s_), V(s_)))


def pv_ops(Pr, AX, AY):
    ax = ["v_and_b32 %s, %s, %s" % (V(AX), V(Pr), V(MK)),
          "v_and_b32 %s, %s, %s" % (V(AX + 1), V(Pr), V(MK + 1)),
          "v_and_b32_dpp %s, %s, %s row_ror:4 %s" % (V(AX + 2), V(Pr), V(MK + 2), DPPM),
          "v_and_b32_dpp %s, %s, %s row_ror:4 %s" % (V(AX + 3), V(Pr), V(MK + 3), DPPM)]
    ay = ["v_and_b32_dpp %s, %s, %s row_ror:12 %s" % (V(AY), V(Pr), V(MK), DPPM),
          "v_and_b32_dpp %s, %s, %s row_ror:12 %s" % (V(AY + 1), V(Pr), V(MK + 1), DPPM),
          "v_and_b32 %s, %s, %s" % (V(AY + 2), V(Pr), V(MK + 2)),
          "v_and_b32 %s, %s, %s" % (V(AY + 3), V(Pr), V(MK + 3))]
    return ax, ay


def pv_seq(groups, first, pre=None, post=None):
    lo, hi, AX, AY = ACC, ACC + 4, ACC + 8, ACC + 12
    n = len(groups)
    ops = [pv_ops(SS[g], AX, AY) for g, _ in groups]
    for o in ops[0][0]:
        a(o)
    for i in range(n):
        g, Vr = groups[i]
        ax, ay = ops[i]
        z = first and i == 0
        nx = ops[i + 1][0] if i + 1 < n else [None] * 4
        if g == 9:
            assert i == n - 1 and not z
            if pre:
                pre(i)
            mfma(lo, AX, Vr, V(lo, 4))
        else:
            a(ay[0]); a(ay[1])
            if pre:
                pre(i)
            mfma(lo, AX, Vr, "0" if z else V(lo, 4))
            a(ay[2]); a(ay[3])
            mfma(hi, AX, Vr + 8, "0" if z else V(hi, 4))
            if nx[0]:
                a(nx[0]); a(nx[1])
            mfma(lo, AY, Vr + 4, V(lo, 4))
            if nx[2]:
                a(nx[2]); a(nx[3])
            mfma(hi, AY, Vr + 12, V(hi, 4))
        if post:
            post(i)


def publish(typ, blk_off):
    lo, hi = ACC, ACC + 4
    tA, tO, tR, tE = D1, D1 + 1, D1 + 2, D1 + 3
    tM, tW = D3, D3 + 1
    mlr = D3 + 2
    OB = ACC + 8
    part = L_PART[typ]
    a("v_mov_b32 %s, 0" % V(tA))
    a("v_mov_b32 %s, 1" % V(tO))
    a("v_subrev_u32 %s, s%d, %s" % (V(tE), sLB, V(vL)))
    a("v_lshrrev_b32 %s, 1, %s" % (V(tE), V(tE)))
    a("v_and_b32 %s, 24, %s" % (V(tW), V(tE)))
    a("v_mov_b32 %s, s13" % V(tM))
    xlane("v_add_f32", ML + 1, vU)
    a("v_permlane32_swap_b32 %s, %s" % (V(lo), V(lo + 2)))
    a("v_permlane32_swap_b32 %s, %s" % (V(lo + 1), V(lo + 3)))
    a("v_permlane32_swap_b32 %s, %s" % (V(hi), V(hi + 2)))
    a("v_permlane32_swap_b32 %s, %s" % (V(hi + 1), V(hi + 3)))
    a("v_add_f32 %s, %s, %s" % (V(lo), V(lo), V(hi + 2)))
    a("v_add_f32 %s, %s, %s" % (V(lo + 1), V(lo + 1), V(hi + 3)))
    ds("ds_write_b64 %s, %s offset:%d" % (V(vPt), V(lo, 2), part))
    a("s_mov_b64 exec, 1")
    ds("ds_write_b64 %s, %s offset:%d" % (V(tM), V(ML, 2), part + 2048))
    ds("ds_add_rtn_u32 %s, %s, %s offset:%d" % (V(tR), V(tA), V(tO), L_CNT[typ]), "cnt")
    a("s_mov_b64 exec, -1")
    ds("ds_read_b64 %s, %s offset:%d" % (V(mlr, 2), V(tW), part + 2048), "ml")
    for p in range(4):
        ds("ds_read_b64 %s, %s offset:%d" % (V(OB + 2 * p, 2), V(tE), part + 512 * p))
    a("s_add_u32 s%d, s%d, %d" % (sT2, sPa, blk_off * PH))
    wait_lg("ml")
    a("v_readfirstlane_b32 s15, %s" % V(tR))
    cM, cL, cW = ML, ML + 1, vT
    a("v_max_f32_dpp v%d, v%d, v%d %s %s" % (cM, mlr, mlr, QP[0], DPPM))
    a("s_and_b32 s15, s15, 3")
    a("s_cmp_lg_u32 s15, 3")
    lab = a.newlabel("NOTLAST")
    rawbr("s_cbranch_scc1 %s" % lab)
    a("v_max_f32_dpp v%d, v%d, v%d %s %s" % (cM, cM, cM, QP[1], DPPM))
    a("v_sub_f32 v%d, v%d, v%d" % (cW, mlr, cM))
    a("v_exp_f32 v%d, v%d" % (cW, cW))
    a("v_mul_f32 v%d, v%d, v%d" % (cL, mlr + 1, cW))
    a("s_waitcnt lgkmcnt(0)")
    lsum = ["v_add_f32_dpp v%d, v%d, v%d %s %s" % (cL, cL, cL, q, DPPM) for q in QP[:2]]
    for p in range(4):
        for c in range(2):
            d = lo + 2 * (p & 1) + c
            op = "v_mul_f32_dpp" if p < 2 else "v_fmac_f32_dpp"
            a("%s v%d, v%d, v%d row_newbcast:%d %s" % (op, d, cW, OB + 2 * p + c, p, DPPM))
        if p in (0, 2):
            a(lsum[p // 2])
    pk(lo, lo, lo + 2)
    a("v_min_u32 v%d, -2, v%d" % (cM, cM))
    a("v_min_u32 v%d, -2, v%d" % (cL, cL))
    a("v_min_u32 v%d, -2, v%d" % (lo, lo))
    a("v_min_u32 v%d, -2, v%d" % (lo + 1, lo + 1))
    a("s_add_u32 s15, s%d, s14" % sT2)
    a("s_add_u32 s%d, s%d, s68" % (sT2, sT2))
    lab2 = a.newlabel("PLOC")
    a("s_cmp_eq_u32 s%d, 0" % sLoc)
    rawbr("s_cbranch_scc0 %s" % lab2)
    for sc in (" sc1", ""):
        a("buffer_store_dwordx2 %s, %s, %s, s15 offen%s" % (V(lo, 2), V(tE), S(WS, 4), sc))
        a.vmopt.add(len(a.vmq) - 1)
        a("s_mov_b64 exec, 1")
        a("buffer_store_dwordx2 %s, %s, %s, s%d offen%s" % (V(cM, 2), V(tE), S(WS, 4), sT2, sc))
        a.vmopt.add(len(a.vmq) - 1)
        a("s_mov_b64 exec, -1")
        if sc:
            rawbr("s_branch %s" % lab)
            a.label(lab2)
    a.label(lab)
    a("s_waitcnt lgkmcnt(0)")
    lgq.clear()
    a.nop(2)


def stage(g, dst):
    for t in range(4 if g < 9 else 1):
        ds("ds_read_b128 %s, v%d offset:%d" % (V(dst + 4 * t, 4), vL, g * 4096 + t * 1024), "st%d" % g)


reset_vm()
a.vmq[:] = []
fab[:] = []
if P["CPF"]:
    a("s_getpc_b64 %s" % S(WT, 2))
    a.label("L_PC")
    a("s_sub_u32 s%d, s%d, L_PC-%s_kernel" % (WT, WT, NAME))
    a("s_subb_u32 s%d, s%d, 0" % (WT + 1, WT + 1))
    a("s_and_b32 s%d, s%d, 0xffff" % (WT + 1, WT + 1))
    a("s_mov_b32 s%d, L_END-%s_kernel" % (WT + 2, NAME))
    a("s_mov_b32 s%d, 0x20000" % (WT + 3))
    a("s_lshl_b32 s%d, s15, 10" % sT2)
    a("v_add_u32 v42, s%d, v43" % sT2)
    a("buffer_load_dwordx4 %s, v42, %s, 0 offen" % (V(QR, 4), S(WT, 4)))
for fn in wpf[:6]:
    fn()
    fab.append(len(a.vmq) - 1)
a("s_lshl_b32 s14, s%d, 9" % sS)
a("s_lshl_b32 s68, s%d, 7" % sS)
a("s_add_u32 s68, s68, 3584")
a("s_lshl_b32 s13, s%d, 3" % sWv)
a("s_cmp_lg_u32 s%d, 0" % sWv)
a("s_cbranch_scc1 L_NOCLR")
a("v_add_u32 v40, s14, v43")
a("v_subrev_u32 v41, 512, v43")
a("v_add_u32 v41, s68, v41")
a("v_cmp_gt_u32 vcc, 32, v47")
a("v_cndmask_b32 v40, v41, v40, vcc")
for r in range(4):
    a("v_mov_b32 v%d, -1" % (QF + r))
a("v_mov_b32 v41, 0")
a("v_mov_b32 v36, 0")
a("v_mov_b32 v37, 0")
a("ds_write_b64 v41, v[36:37]")
a("s_mov_b32 exec_hi, 0xff")
for p in range(16):
    a("s_add_u32 s%d, s%d, %d" % (sT2, sPa, p * PH))
    a("buffer_store_dwordx4 %s, v40, %s, s%d offen sc1" % (V(QF, 4), S(WS, 4), sT2), tag="clr")
    a.vmopt.add(len(a.vmq) - 1)
a("s_mov_b64 exec, -1")
a("s_waitcnt lgkmcnt(0)")
a.label("L_NOCLR")
a("s_barrier")
for fn in wpf[6:]:
    pace()
    fn()
    fab.append(len(a.vmq) - 1)
if P["WOT"]:
    srd(WT, 24, "0x%x" % (4096 * 1280))
    a("s_sub_u32 s%d, s%d, s%d" % (WT, WT, sLB))
    a("s_subb_u32 s%d, s%d, 0" % (WT + 1, WT + 1))
    a("s_and_b32 s%d, s%d, 0xffff" % (WT + 1, WT + 1))
    a("s_add_u32 s%d, s%d, s%d" % (WT + 2, WT + 2, sLB))
    assert not P["HLP"]
    srd(OUT, 34, "s%d" % (WT + 2))
    a("s_sub_u32 s%d, s%d, s%d" % (OUT, OUT, sLB))
    a("s_subb_u32 s%d, s%d, 0" % (OUT + 1, OUT + 1))
    a("s_and_b32 s%d, s%d, 0xffff" % (OUT + 1, OUT + 1))
    a("s_mul_i32 s15, s%d, 163840" % sH)
    for r in range(3):
        a("s_add_u32 s%d, s%d, %d" % (29 + r, sWi, 28 * r))
        a("s_min_u32 s%d, s%d, 79" % (29 + r, 29 + r))
        a("s_cmp_lt_u32 s%d, 40" % (29 + r))
        a("s_cselect_b32 s%d, 0, 40" % sT2)
        a("s_add_u32 s%d, s%d, s%d" % (29 + r, 29 + r, sT2))
        a("s_lshl_b32 s%d, s%d, 10" % (29 + r, 29 + r))
        a("s_add_u32 s%d, s%d, s15" % (29 + r, 29 + r))
a("s_and_b32 s15, s%d, 3" % sH)
a("s_lshl_b32 s15, s15, 2")
a("s_add_u32 s15, s15, s%d" % sWv)
a("s_mul_i32 s15, s15, %d" % P["ROT"])
a("s_mul_hi_u32 s%d, s15, 0x%x" % (sT2, (1 << 32) // 9 + 1))
a("s_mul_i32 s%d, s%d, 9" % (sT2, sT2))
a("s_sub_u32 s15, s15, s%d" % sT2)
a("s_lshl_b32 s15, s15, 12")
for g in range(9):
    a("s_mov_b32 s%d, s15" % (GO + g))
    a("s_add_u32 s15, s15, 4096")
    a("s_cmp_eq_u32 s15, %d" % (9 * 4096))
    a("s_cselect_b32 s15, 0, s15")
a("s_mov_b32 s%d, %d" % (GO + 9, 9 * 4096))
for i in range(37):
    Q.append(("KA", sCur, i, "home", True))
pump(4)
a("v_and_b32 v44, 1, v47")
a("v_lshlrev_b32 v44, 4, v44")
a("v_mov_b32 v%d, 0xffff" % (MK + 3))
a("v_lshlrev_b32 v%d, v44, v%d" % (MK + 3, MK + 3))
a("v_bfe_u32 v44, v47, 1, 2")
for r in range(4):
    a("v_cmp_eq_u32 vcc, %d, v44" % r)
    a("v_cndmask_b32 v%d, 0, v%d, vcc" % (MK + r, MK + 3))
a("v_lshlrev_b32 v%d, 5, v46" % vPt)
a("v_and_b32 v44, 1, v45")
a("v_lshl_add_u32 v%d, v44, 4, v%d" % (vPt, vPt))
a("v_lshrrev_b32 v44, 1, v45")
a("v_lshl_add_u32 v%d, v44, 3, v%d" % (vPt, vPt))
a("s_lshl_b32 s69, s%d, 9" % sWv)
a("v_add_u32 v%d, s69, v%d" % (vPt, vPt))
a("v_mov_b32 v44, 0xff800000")
a("v_cndmask_b32 v%d, v44, 0, %s" % (vBias, S(sQM, 2)))
a("s_cmp_lg_u32 s%d, 0" % sHas)
a("s_cbranch_scc1 L_HAS")
a("v_mov_b32 v%d, v44" % vBias)
for r in range(4):
    a("v_mov_b32 v%d, 0" % (home("KA", 36) + r))
    a("v_mov_b32 v%d, 0" % (36 + r))
    a("v_accvgpr_write_b32 %s, 0" % V(home("KB", 36) + r))
    a("v_accvgpr_write_b32 %s, 0" % V(home("VB", 36) + r))
a("ds_write_b128 v%d, v[36:39] offset:%d" % (vL, 36 * 1024))
a("s_waitcnt lgkmcnt(0)")
a.label("L_HAS")
pump(8)
wait_tag("clr")
a("s_cmp_lg_u32 s%d, 0" % sWv)
a("s_cbranch_scc1 L_NOFLAG")
a("s_lshl_b32 s%d, s%d, 3" % (sT2, sH))
a("s_add_u32 s%d, s%d, s%d" % (sT2, sT2, sS))
a("v_mov_b32 v40, s%d" % sXc)
a("v_mov_b32 v41, 0")
a("s_mov_b64 exec, 1")
a("buffer_store_byte v40, v41, %s, s%d offen sc1" % (S(DBG, 4), sT2))
a.vmopt.add(len(a.vmq) - 1)
a("s_mov_b64 exec, -1")
a.label("L_NOFLAG")
pump(100)
for i in range(NVJ):
    Q.append(("VA", sCur, i, "home", True))
a("v_and_b32 v41, 31, v47")
a("v_lshlrev_b32 v41, 3, v41")
a("buffer_load_ubyte v40, v41, %s, 0 offen offset:7 sc1" % S(DBG, 4), tag="fl")
pump(WIN[0] + 1)
wait_tag("fl")
a("v_cmp_eq_u32 vcc, 0, v40")
a("s_cbranch_vccz L_FLD")
a.label("L_FLW")
a("buffer_load_ubyte v40, v41, %s, 0 offen offset:7 sc1" % S(DBG, 4))
a.vmopt.add(len(a.vmq) - 1)
a("s_waitcnt vmcnt(0)")
a("v_cmp_eq_u32 vcc, 0, v40")
a("s_cbranch_vccz L_FLD")
budget("L_FLD", "L_FLW", 2)
a.label("L_FLD")
if P["LOCAL"]:
    a("v_cmp_eq_u32 vcc, s%d, v40" % sXc)
    a("s_andn2_b32 s15, s%d, 3" % sH)
    a("s_nop 3")
    a("s_lshr_b32 s15, vcc_lo, s15")
    a("s_and_b32 s15, s15, 15")
    a("s_cmp_eq_u32 s15, 15")
    a("s_cselect_b32 s%d, 1, 0" % sLoc)
pump(100)
stamp()

QR2 = 52
sPf, sPe, sFl = 26, 27, 28
assert P["ROT"] == 0 and PF % 2 == 0


def qbuild(R):
    for t in range(4):
        for r in range(4):
            a("v_cndmask_b32 %s, 0, %s, %s" % (V(QF + 4 * t + r), V(R + r), S(sQM + 2 * t, 2)))


def qwait_pf(dn, srdn=KA, win=None, wot=False):
    la, lb = a.newlabel("QA"), a.newlabel("QB")
    n0 = len(a.vmq)
    a.label(la)
    a("s_cmp_ge_u32 s%d, s%d" % (sPf, sPe))
    a("s_cbranch_scc1 %s" % lb)
    a("buffer_load_dwordx4 %s, v%d, %s, s15 offen sc1" % (V(QR2, 4), vQa, S(WS, 4)))
    for t in range(2):
        a("s_waitcnt vmcnt(%d)" % ((win or P["WPFW"]) * 3 // 2))
        a("buffer_load_dwordx4 %s, v%d, %s, s%d offen offset:%d" % (V(QR, 4), vK, S(srdn, 4), sPf, t * 1024))
    a("s_add_u32 s%d, s%d, 2048" % (sPf, sPf))
    exact_check(range(QR2, QR2 + 4), vT)
    a("s_cbranch_vccnz %s" % la)
    a("s_branch %s" % dn)
    a.label(lb)
    if wot:
        for d_ in (WT, OUT)[:P["WOT"]]:
            for r in range(3):
                a("buffer_load_dwordx4 %s, v%d, %s, s%d offen sc1" % (V(QR, 4), vL, S(d_, 4), 29 + r))
        lb = a.newlabel("QC")
        a.label(lb)
    a("buffer_load_dwordx4 %s, v%d, %s, s15 offen sc1" % (V(QR2, 4), vQa, S(WS, 4)))
    a("s_waitcnt vmcnt(0)")
    exact_check(range(QR2, QR2 + 4), vT)
    a("s_cbranch_vccz %s" % dn)
    budget(dn, lb)
    for i in range(n0, len(a.vmq)):
        a.vmopt.add(i)


a.drain()
a.label("L_J")
WIN[0] = W
reset_vm()
lgq.clear()
for i in range(37):
    live[("KA", i)] = live[("KB", i)] = live[("VB", i)] = True
    live[("VA", i)] = i < NVJ
for i in range(NVJ, 37):
    Q.append(("VA", sCur, i, "home", True))
nva = 37 - NVJ
nva -= P["B4R"]
pump(max(0, nva - W))
a("s_cmp_eq_u32 s%d, 0" % sB)
a("s_cselect_b32 s15, 0, %d" % PH)
a("s_sub_u32 s15, s%d, s15" % sPq)
a("buffer_load_dwordx4 %s, v%d, %s, s15 offen sc1" % (V(QR2, 4), vQa, S(WS, 4)), tag="q4")
pump(min(W, nva))
for i in range(37):
    Q.append(("KB", sCur, i, "home", True))
a("s_cmp_eq_u32 s%d, 0" % sB)
a("s_cbranch_scc1 L_B0")
sav = (list(a.vmq), set(a.vmopt), list(fab), done_idx[0], dict(curh), deque(Q), dict(live))
stamp()
wait_tag("q4")
exact_check(range(QR2, QR2 + 4), vT)
a("s_cbranch_vccz L_Q4D")
a("s_mov_b32 s%d, s%d" % (sPf, sCur))
a("s_add_u32 s%d, s%d, %d" % (sPe, sCur, P["PF4"] * 1024))
qwait_pf("L_Q4D", KB, W)
a.label("L_Q4D")
qbuild(QR2)
stamp()
qload(0)
NB4 = [0]


def _h4(i):
    n = ({0: 2, 2: 1, 5: 1, 8: 1} if P["XB"] else {0: 2, 3: 1, 7: 1}).get(i, 0)
    pump(n, paced=False)
    NB4[0] += n


qk_burst("KB", list(range(10)), hook=_h4, release=True)
softmax()


def _p4(i):
    free("VB", i)
    if i in ((0, 3, 6, 9) if P["XB"] else (0, 4, 8)):
        pump(1, paced=False)
        NB4[0] += 1


pv_seq([(g, home("VB", 4 * g)) for g in range(10)], True, post=_p4)
publish(1, -1)
stamp()
a("s_cmp_eq_u32 s%d, 4" % sB)
a("s_cbranch_scc1 L_FIN")
a("s_branch L_B1")
a.label("L_B0")
end_state = (list(a.vmq), set(a.vmopt), list(fab), done_idx[0], dict(curh), deque(Q), dict(live))
a.vmq[:], a.vmopt, fab[:], done_idx[0] = sav[0], sav[1], sav[2], sav[3]
curh.update(sav[4]); Q.clear(); Q.extend(sav[5]); live.update(sav[6])
for g in range(10):
    free("KB", g); free("VB", g)
qload(0)
pump(NB4[0])
a.drain()
a.label("L_B1")
a.vmq[:], a.vmopt, fab[:] = end_state[0], end_state[1], end_state[2]
done_idx[0] = sav[3]
Q.clear(); Q.extend(end_state[5]); live.update(end_state[6])
curh.update(K=None, V=None, m0=None)
lgq.clear()

STG1 = [home("VB", 24), home("VB", 28), home("VB", 32)]
for g in (6, 7, 8):
    for i in range(4 * g, 4 * g + 4):
        live[("VB", i)] = True
pump(1)
qcheck(0, True)
stamp()
wait_tag("old")


def va_ready(g):
    while any((not callable(it)) and it[0] == "VA" and it[2] // 4 == g for it in Q):
        pump(1)
    if 4 * g + 3 >= NVJ:
        wait_tag("VA%d" % g)


for g in range(3):
    va_ready(g)
    stage(g, STG1[g])
qk_burst("KA", list(range(10)), hook=lambda i: pump(1) if i in ((0, 3, 6, 9) if P["XB"] else (2, 6)) else None)
softmax()
pump(1)


def _pre1(i):
    wait_lg("st%d" % i)


def _post1(i):
    if i + 3 < 10:
        va_ready(i + 3)
        stage(i + 3, STG1[i % 3])
    if i in ((2, 5, 8) if P["XB"] else (3, 7)):
        pump(1)


pv_seq([(g, STG1[g % 3]) for g in range(10)], True, pre=_pre1, post=_post1)
publish(0, 0)
stamp()
for g in (6, 7, 8):
    free("VB", g)

a("s_add_u32 s%d, s%d, 0x%x" % (sNxt, sCur, BATCH))
a("s_cmp_lt_u32 s%d, 3" % sB)
a("s_cselect_b32 s%d, s%d, 0" % (KA + 2, sNRK))
a("s_cselect_b32 s%d, s%d, 0" % (VA + 2, sNRV))
pump(100)
Q2POS = P["Q2POS"]
for i in range(37):
    if i == 37 - P["NEND"]:
        Q.append(lambda: WIN.__setitem__(0, P["WEND"]))
    Q.append(("VB", sCur, i, "home", True))
a("s_add_u32 s%d, s%d, %d" % (sPf, sNxt, (36 - PF) * 1024))
a("s_add_u32 s%d, s%d, %d" % (sPe, sNxt, 36 * 1024))
a("s_mov_b32 s%d, 0" % sFl)
pump(Q2POS - W)
a("s_add_u32 s15, s%d, %d" % (sPq, PH))
a("buffer_load_dwordx4 %s, v%d, %s, s15 offen sc1" % (V(QR2, 4), vQa, S(WS, 4)), tag="q")
pump(W)
stamp()
wait_tag("q")
exact_check(range(QR2, QR2 + 4), vT)
a("s_cbranch_vccz L_Q2D")
sav = (list(a.vmq), set(a.vmopt), list(fab), done_idx[0], dict(curh), deque(Q), dict(live))
pump(100)
a("s_mov_b32 s%d, 1" % sFl)
qwait_pf("L_Q2D")
a.vmq[:], a.vmopt, fab[:], done_idx[0] = sav[0], sav[1], sav[2], sav[3]
Q.clear(); Q.extend(sav[5]); live.update(sav[6])
curh.update(K=None, V=None, m0=None)
a.label("L_Q2D")
qbuild(QR2)
stamp()
wait_tag("KB9")


def _h2(i):
    if Q and i in (1, 4, 7, 9):
        lab = a.newlabel("H2")
        a("s_cmp_eq_u32 s%d, 1" % sFl)
        rawbr("s_cbranch_scc1 %s" % lab)
        st0 = a.st
        pump(100 if i == 9 else -(-len(Q) // 3) if i == 1 else -(-len(Q) // 2), paced=False)
        a.st = st0
        a.label(lab)


qk_burst("KB", list(range(10)), hook=_h2)
softmax()
pv_seq([(x, home("VB", 4 * x)) for x in range(10)], True, pre=lambda i: wait_tag("VB%d" % i))
assert done_idx[0] == len(a.vmq) - 1
publish(1, 1)
stamp()
a("s_cmp_lt_u32 s%d, 3" % sB)
a("s_cselect_b32 s%d, s%d, 0" % (KB + 2, sNRK))
a("s_add_u32 s15, s%d, %d" % (sPq, 2 * PH))
for r in range(4):
    a("v_mov_b32 %s, -1" % V(QR2 + r))
qwait_pf("L_Q3D", wot=P["WOT"])
a.label("L_Q3D")

WIN[0] = W
qbuild(QR2)
done_idx[0] = len(a.vmq) - 1
curh.update(K=None, V=None, m0=None)
stamp()
STG3 = [home("KA", 24), home("KA", 28), home("KA", 32)]
F0 = 36 - PF
FQ = deque([("KA", sNxt, i, "home", True) for i in list(range(min(F0, 4))) + [36] + list(range(4, F0))] +
           [("VA", sNxt, i, "home", True) for i in range(NVJ)])
LQ = deque([("KA", sNxt, i, "home", False) for i in range(F0, 36)])
order3 = [0, 6, 9, 7, 8, 1, 2, 3, 4, 5]
assert F0 <= 24


def take(q, n):
    for it in list(q):
        if n == 0:
            break
        if not live.get((it[0], it[2]), False):
            q.remove(it)
            load_tile(*it, False)
            n -= 1


def _h3(i):
    g = order3[i]
    if g in (6, 7, 8):
        for x in range(4 * g, 4 * g + 4):
            live[("KA", x)] = True
        stage(g - 6, STG3[g - 6])
    if i in (4, 5, 6):
        wait_lg("st%d" % (i - 4))
        free("VA", i - 4)
    take(FQ, {0: 4, 2: 1, 4: W - 5, 7: 1, 9: 1}.get(i, 0))
    if P["L2B"] == 1:
        take(LQ, 2)


qk_burst("KA", order3, hook=_h3, release=True)
softmax()


def _post3(i):
    if i >= 3:
        free("VA", i)
    if i + 3 < 10:
        stage(i + 3, STG3[i % 3])
    if i in (0, 3, 6, 9):
        take(FQ, 1)
    if P["L2B"] and i < 8:
        take(LQ, 1)


pv_seq([(g, STG3[g % 3]) for g in range(10)], True, pre=_pre1, post=_post3)
publish(0, 2)
if P["PBAR"]:
    a("s_barrier")
stamp()
for g in (6, 7, 8):
    free("KA", g)
assert not Q
for n_, it in enumerate(FQ):
    if n_ == P["CUD"]:
        Q.append(lambda: WIN.__setitem__(0, P["WCU"]))
    Q.append(it)
    if n_ >= P["CUD"] and LQ:
        for _ in range(P["L2R"]):
            if LQ:
                Q.append(LQ.popleft())
        if not LQ:
            assert len(FQ) - n_ > W
            Q.append(lambda: WIN.__setitem__(0, W))
assert not LQ
pump(100)
a("s_add_u32 s%d, s%d, 1" % (sB, sB))
a("s_mov_b32 s%d, s%d" % (sCur, sNxt))
a("s_add_u32 s%d, s%d, %d" % (sPq, sPq, 4 * PH))
a("s_add_u32 s%d, s%d, %d" % (sPa, sPa, 4 * PH))
stamp()
a("s_branch L_J")

a.label("L_COMM")
lgq.clear()
vL8, vML, vM01, vHa, vHc, vOw, vOr, vX1, vX3, vG16, vL4, vC, vWL, vL16, vY1, vY2 = 1, 2, 3, 4, 5, 6, 7, 8, 9, 10, 11, 12, 16, 17, 18, 19
SET, TMP, AF, AC, STG, XF, G, XC = 20, 36, 52, 68, 84, 100, 108, 188
sP, sHA, sHB, sN, sHBm, sHC, sX, sTy, sMode, sGty, sWF, sHAo, sHBo, sHCo = 6, 7, 8, 9, 10, 11, 12, 13, 14, 15, 42, 43, 68, 69
SEL_LO, SEL_HI = 78, 77


def WQF(mat, k, ct):
    n = mat * 40 + 2 * k + ct
    return 256 + 4 * n if n < 64 else 192 + 4 * (n - 64)


def in_lds(i):
    return (i & 1) and i < 38


def greg(i):
    t, k = i // 4, i % 4
    return XC if i == 39 else G + 40 * (k // 2) + 4 * t


a("s_mov_b32 s%d, 0x05040100" % SEL_LO)
a("s_mov_b32 s%d, 0x07060302" % SEL_HI)
srd(OUT, 36, "5120")
a("v_lshlrev_b32 v%d, 2, v47" % vL4)
a("v_lshlrev_b32 v%d, 4, v47" % vL16)
a("v_lshrrev_b32 v44, 2, v47")
a("v_lshlrev_b32 v44, 13, v44")
a("v_and_b32 v43, 3, v47")
a("v_lshl_add_u32 v44, v43, 4, v44")
a("s_lshl_b32 s76, s%d, 8" % sH)
a("s_lshl_b32 s%d, s%d, 6" % (sT, sWv))
a("s_add_u32 s76, s76, s%d" % sT)
a("s_mul_i32 s71, s%d, 38912" % sWv)
a("s_add_u32 s71, s71, %d" % L_WO)
a("v_lshlrev_b32 v48, 9, v45")
a("v_lshl_add_u32 v48, v46, 2, v48")
a("v_add_u32 v48, s71, v48")
RAW = [52, 92, 132]
WT2 = 44


def wq_issue(n):
    mat, bt = n // 4, n % 4
    for r in range(10):
        a("s_add_u32 s%d, s76, %d" % (sT, (160 * bt + 16 * r) * 8192))
        a("s_add_u32 m0, s71, %d" % ((n % 3) * 10240 + r * 1024))
        a("buffer_load_dwordx4 v44, %s, s%d offen %slds" % (S(WT2 + 4 * mat, 4), sT, "nt " if P["WQNT"] else ""), tag="wq%d" % n)


def wq_read(n):
    for kk in range(5):
        a("v_add_u32 v49, %d, v48" % ((n % 3) * 10240 + kk * 2048))
        for e in range(0, 8, 2):
            a("ds_read2_b32 %s, v49 offset0:%d offset1:%d" % (V(RAW[0] + 8 * kk + e, 2), 16 * e, 16 * e + 16))
        if kk == 2:
            a("s_waitcnt lgkmcnt(6)")


def wq_perm(n):
    mat, bt = n // 4, n % 4
    tq = 92
    c = 0
    for kk in range(5):
        a("s_waitcnt lgkmcnt(%d)" % min(15, 4 * (4 - kk)))
        for ct in range(2):
            for e in range(0, 8, 2):
                r0 = RAW[0] + 8 * kk + e
                dst = WQF(mat, 5 * bt + kk, ct) + e // 2
                sel = SEL_HI if ct else SEL_LO
                if dst < 256:
                    a("v_perm_b32 v%d, v%d, v%d, s%d" % (dst, r0 + 1, r0, sel))
                else:
                    a("v_perm_b32 v%d, v%d, v%d, s%d" % (tq + c % 4, r0 + 1, r0, sel))
                    a("v_accvgpr_write_b32 %s, v%d" % (V(dst), tq + c % 4))
                    c += 1


def wq_step(n):
    a.wait_tag("wq%d" % n)
    wq_read(n)
    wq_perm(n)
    if n + 3 < 8:
        wq_issue(n + 3)


def comm_setup():
    a("v_lshlrev_b32 v%d, 3, v47" % vL8)
    a("v_and_b32 v43, 7, v47")
    a("v_cmp_eq_u32 vcc, 7, v43")
    a("v_min_u32 v43, 6, v43")
    a("v_lshlrev_b32 v%d, 7, v43" % vML)
    a("v_add_u32 v%d, 3584, v%d" % (vML, vML))
    a("v_cndmask_b32 v%d, 1.0, 0, vcc" % vM01)
    a("v_mul_u32_u24 v43, 1280, v45")
    a("v_lshl_add_u32 v%d, v46, 4, v43" % vHa)
    a("v_lshl_add_u32 v%d, v46, 3, v43" % vHc)
    a("v_add_u32 v%d, 512, v%d" % (vHc, vHc))
    a("s_mul_i32 s%d, s%d, 640" % (sT2, sWv))
    a("s_add_u32 s%d, s%d, %d" % (sT2, sT2, L_YB))
    a("v_add_u32 v%d, s%d, v%d" % (vOw, sT2, vL4))
    a("v_add_u32 v%d, s%d, v%d" % (vY1, sT2, vL16))
    a("v_add_u32 v%d, s%d, v%d" % (vY2, sT2, vL8))
    a("v_lshlrev_b32 v%d, 4, v45" % vG16)
    a("v_add_u32 v%d, s%d, v%d" % (vOr, sT2, vG16))
    a("s_mul_i32 s%d, s%d, 320" % (sT2, sWv))
    a("v_lshlrev_b32 v%d, 4, v46" % vX1)
    a("v_and_b32 v43, 1, v45")
    a("v_lshl_add_u32 v%d, v43, 2, v%d" % (vX1, vX1))
    a("v_lshrrev_b32 v43, 1, v45")
    a("v_lshl_add_u32 v%d, v43, 1, v%d" % (vX1, vX1))
    a("v_add_u32 v%d, s%d, v%d" % (vX1, sT2, vX1))
    a("v_lshlrev_b32 v%d, 2, v46" % vX3)
    a("v_lshl_add_u32 v%d, v43, 1, v%d" % (vX3, vX3))
    a("s_add_u32 s%d, s%d, 256" % (sT2, sT2))
    a("v_add_u32 v%d, s%d, v%d" % (vX3, sT2, vX3))
    a("v_add_u32 v%d, s71, v%d" % (vWL, vL16))
    a("s_mul_i32 s%d, s73, 163840" % sWF)
    a("s_mul_i32 s%d, s72, 320" % sT2)
    a("s_add_u32 s%d, s%d, s%d" % (sWF, sWF, sT2))
    a("s_movk_i32 s74, 560")
    a("s_movk_i32 s70, 640")
    for r in range(4):
        a("v_mov_b32 v%d, 0" % (vC + r))


stamp()
a("s_andn2_b32 s73, s%d, 3" % sH)
a("s_add_u32 s73, s73, s%d" % sWv)
a("s_and_b32 s72, s%d, 3" % sH)
a("s_mul_i32 s%d, s73, 4608" % sHAo)
a("s_mul_i32 s%d, s%d, 5120" % (sHBo, sWv))
a("s_add_u32 s%d, s%d, %d" % (sHBo, sHBo, HB0))
a("s_lshl_b32 s%d, s76, 1" % sHCo)
a("s_add_u32 s%d, s%d, %d" % (sHCo, sHCo, HC0))
a("s_mul_i32 s75, s72, 5120")
a("s_lshr_b32 s%d, s%d, 2" % (sT2, sH))
a("s_mul_i32 s%d, s%d, 640" % (sT2, sT2))
a("s_add_u32 s75, s75, s%d" % sT2)
a("s_add_u32 s75, s75, %d" % HB0)
a("v_add_u32 v40, s75, v%d" % vL16)
a("v_subrev_u32 v41, 640, v%d" % vL16)
a("v_add_u32 v41, s%d, v41" % sHCo)
a("v_cmp_gt_u32 vcc, 40, v47")
a("v_cndmask_b32 v40, v41, v40, vcc")
for r in range(4):
    a("v_mov_b32 v%d, -1" % (36 + r))
a("s_mov_b32 exec_hi, 0xfff")
for p in range(16):
    a("s_mov_b32 s%d, %d" % (sT, p * PH))
    a("buffer_store_dwordx4 v[36:39], v40, %s, s%d offen sc1" % (S(WS, 4), sT))
a("s_mov_b64 exec, -1")
srd(WT, 16, "5120")
a("s_mul_i32 s%d, s%d, 1280" % (sT, sWv))
for r in range(5):
    a("buffer_load_dword v%d, v%d, %s, s%d offen offset:%d" % (20 + r, vL4, S(WT, 4), sT, 256 * r))


def _between():
    comm_setup()
    a("s_waitcnt vmcnt(%d)" % (0 if P["CDEL"] else 30))
    a("s_mul_i32 s%d, s%d, 1280" % (sT2, sWv))
    a("v_add_u32 v43, s%d, v%d" % (sT2, vL4))
    a("v_mov_b32 v42, 0x3f803f80")
    for r in range(5):
        a("ds_write_b32 v43, v%d offset:%d" % (20 + r, L_X + 256 * r))
        a("ds_write_b32 v%d, v42 offset:%d" % (vL4, L_X + 4 * 1280 + 256 * r))
    a("s_waitcnt lgkmcnt(0)")
    a("s_barrier")
    a("s_cmp_lg_u32 s%d, 0" % sWv)
    a("s_cbranch_scc1 L_CNF")
    a("s_lshl_b32 s%d, s%d, 3" % (sT2, sH))
    a("s_add_u32 s%d, s%d, 7" % (sT2, sT2))
    a("v_mov_b32 v42, s%d" % sXc)
    a("s_mov_b64 exec, 1")
    a("buffer_store_byte v42, v%d, %s, s%d offen sc1" % (vL4, S(DBG, 4), sT2))
    a.vmopt.add(len(a.vmq) - 1)
    a("s_mov_b64 exec, -1")
    a.label("L_CNF")


WOS = [52, 56]
wa, wb = TMP + 4, TMP + 5


def wo_addr():
    a("v_mad_u32_u24 v%d, v%d, s74, v%d" % (wa, vG16, vHa))
    a("v_and_b32 v%d, 63, v%d" % (wb, vL4))
    a("v_add_u32 v%d, 256, v%d" % (wb, wb))
    a("v_mad_u32_u24 v%d, v%d, s70, v%d" % (wb, vG16, wb))


def wo_issue(srdn, k, R, tag=None):
    for e in range(8):
        if e % 4 == 0:
            a("s_add_u32 s%d, s%d, %d" % (sT, sWF, (32 * k + e) * 1280))
        a("buffer_load_dwordx4 %s, v%d, %s, s%d offen offset:%d" % (V(R + 4 * e, 4), wa, S(srdn, 4), sT, (e % 4) * 1280), tag=tag)
        a("buffer_load_dword v%d, v%d, %s, s%d offen offset:%d" % (R + 32 + e, wb, S(srdn, 4), sT, (e % 4) * 1280), tag=tag)


def wo_perm(R, dst_of):
    for t in range(10):
        for e in range(0, 8, 2):
            if t < 8:
                r0, r1 = R + 4 * e + t // 2, R + 4 * e + 4 + t // 2
            else:
                r0, r1 = R + 32 + e, R + 33 + e
            a("v_perm_b32 v%d, v%d, v%d, s%d" % (dst_of(t) + e // 2, r1, r0, SEL_HI if t & 1 else SEL_LO))


def wo_to_lds(mat):
    FO = 52
    for n_, k in enumerate((1, 3)):
        a.wait_tag("wo%d_%d" % (mat, k))
        wo_perm(G + 40 * n_, lambda t: XF + 4 * mat if (t == 9 and k == 3) else FO + 4 * t)
        for t in range(10):
            i = 4 * t + k
            if in_lds(i):
                a("ds_write_b128 v%d, %s offset:%d" % (vWL, V(FO + 4 * t, 4), mat * 19456 + (i // 2) * 1024))
        a("s_waitcnt lgkmcnt(0)")


def call_wq(ty, slot, mode, blk):
    a("s_mov_b32 s%d, %d" % (sTy, ty))
    a("s_mov_b32 s%d, %d" % (sX, L_X + 1280 * slot))
    a("s_mov_b32 s%d, %d" % (sMode, mode))
    a("s_add_u32 s%d, s%d, %d" % (sHC, sHCo, blk * PH))
    a("s_call_b64 %s, R_WQ" % S(RA, 2))


a.vmq[:] = []
a.vmopt.clear()
srd(WT2, 22, "0x%x" % (640 * 8192))
srd(WT2 + 4, 32, "0x%x" % (640 * 8192))
srd(WOS[0], 24, "0x%x" % (4096 * 1280))
srd(WOS[1], 34, "0x%x" % (4096 * 1280))
if P["CDEL"]:
    _between()
for n in range(3):
    wq_issue(n)
if not P["CDEL"]:
    _between()
wo_addr()
for n in range(4):
    wq_step(n)
    if n == 0:
        wo_issue(WOS[0], 1, G, "wo0_1")
        wo_issue(WOS[0], 3, G + 40, "wo0_3")
stamp()
call_wq(1, 4, 1, 0)
call_wq(1, 0, 0, 0)
stamp()
for n in range(4, 8):
    wq_step(n)
stamp()
wo_to_lds(0)
wo_issue(WOS[1], 1, G, "wo1_1")
wo_issue(WOS[1], 3, G + 40, "wo1_3")
call_wq(0, 4, 1, 0)
for b in range(1, 4):
    call_wq(1, b, 0, 4 * b)
stamp()
wo_to_lds(1)
a("s_barrier")
stamp()

a("s_mov_b32 s%d, 0x80808080" % sT2)
a.label("L_AFW")
a("buffer_load_dword v42, v%d, %s, 0 offen sc1" % (vL4, S(DBG, 4)))
a("s_waitcnt vmcnt(0)")
a("v_and_b32 v43, s%d, v42" % sT2)
a("v_cmp_ne_u32 vcc, s%d, v43" % sT2)
a("s_cbranch_vccz L_AFD")
budget("L_AFD", "L_AFW", 2)
a.label("L_AFD")
if P["LOCAL"]:
    a("s_mul_i32 s%d, s%d, 0x01010101" % (sT2, sXc))
    a("v_cmp_eq_u32 vcc, s%d, v42" % sT2)
    a("s_lshl_b32 s%d, s%d, 1" % (sT, sH))
    a("s_nop 3")
    a("s_lshr_b64 s[16:17], vcc, s%d" % sT)
    a("s_and_b32 s16, s16, 3")
    a("s_cmp_eq_u32 s16, 3")
    a("s_cselect_b32 s%d, 1, 0" % sLoc)
a("s_mov_b32 s%d, 0" % sN)
a("s_mov_b32 s%d, 0" % sMode)
a("s_mov_b32 s%d, 2" % sGty)
TAB = 0xfedbca9786534210 if P["ORD"] else 0xfbedc7a983654210
a("s_mov_b32 s18, 0x%08x" % (TAB & 0xffffffff))
a("s_mov_b32 s19, 0x%08x" % (TAB >> 32))
a("s_mov_b32 s%d, 0x%x" % (WT + 2, 4096 * 1280))

cM, cL, cW, cX, cA = TMP, TMP + 1, TMP + 2, TMP + 3, TMP + 4
tLW, tx1, tx3, xo = TMP + 8, TMP + 9, TMP + 10, TMP + 11
a.label("L_CH")
lgq.clear()
a("s_lshl_b32 s%d, s%d, 2" % (sT, sN))
a("s_lshr_b64 s[16:17], s[18:19], s%d" % sT)
a("s_and_b32 s%d, s16, 15" % sP)
a("s_and_b32 s%d, s%d, 1" % (sTy, sP))


def g_issue(ty):
    a("s_cmp_eq_u32 s%d, 0" % ty)
    a("s_cselect_b32 s%d, s%d, s%d" % (WT, WOS[0], WOS[1]))
    a("s_cselect_b32 s%d, s%d, s%d" % (WT + 1, WOS[0] + 1, WOS[1] + 1))
    wo_addr()
    wo_issue(WT, 2, G)
    wo_issue(WT, 0, G + 40)


a("s_cmp_eq_u32 s%d, s%d" % (sTy, sGty))
a("s_cbranch_scc1 L_GOK")
a("s_cmp_eq_u32 s%d, 3" % sGty)
a("s_cbranch_scc1 L_GIS")
g_issue(sTy)
a.label("L_GIS")
a("s_mov_b32 s%d, s%d" % (sGty, sTy))
a("s_cmp_eq_u32 s%d, 0" % sTy)
a("s_cselect_b64 vcc, -1, 0")
for r in range(4):
    a("v_cndmask_b32 v%d, v%d, v%d, vcc" % (XC + r, XF + 4 + r, XF + r))
a("s_waitcnt vmcnt(16)")
wo_perm(G, lambda t: AF + 4 * t)
a("s_waitcnt vmcnt(0)")
wo_perm(G + 40, lambda t: G + 4 * t)
for r in range(0, 40, 2):
    a("v_mov_b64 %s, %s" % (V(G + 40 + r, 2), V(AF + r, 2)))
a.label("L_GOK")
if DIAG == 2:
    stamp()
a("s_mul_i32 s%d, s%d, %d" % (sT, sP, PH))
a("s_add_u32 s%d, s%d, s%d" % (sHA, sT, sHAo))
a("s_add_u32 s%d, s%d, s%d" % (sHB, sT, sHBo))
a("s_add_u32 s%d, s%d, s75" % (sHBm, sT))
a("s_add_u32 s%d, s%d, s%d" % (sHC, sT, sHCo))
a("s_add_u32 s%d, s%d, %d" % (sHC, sHC, PH))
a("s_lshr_b32 s%d, s%d, 2" % (sX, sP))
a("s_mul_i32 s%d, s%d, 1280" % (sX, sX))
a("s_mul_i32 s%d, s%d, 19456" % (sT, sTy))
a("v_add_u32 v%d, s%d, v%d" % (tLW, sT, vWL))
a("v_add_u32 v%d, s%d, v%d" % (tx1, sX, vX1))
a("v_add_u32 v%d, s%d, v%d" % (tx3, sX, vX3))
ds("ds_read_u16 v%d, v%d" % (xo, tx1))
ds("ds_read_u16 v%d, v%d offset:8" % (xo + 1, tx1))
ds("ds_read_u16 v%d, v%d" % (xo + 2, tx3))
SLOT = [STG, STG + 4, STG + 8, STG + 12, SET, SET + 4, SET + 8, SET + 12]


def lfrag(n):
    ds("ds_read_b128 %s, v%d offset:%d" % (V(SLOT[n % 8], 4), tLW, n * 1024), "lf%d" % n)


for n in range(4):
    lfrag(n)
wait_lg()
for r in range(3):
    a("v_lshlrev_b32 v%d, 16, v%d" % (xo + r, xo + r))
if P["TCH"]:
    a("v_lshrrev_b32 v%d, 2, v%d" % (AF, vL4))
    a("v_and_b32 v%d, 32, v%d" % (AF + 1, AF))
    a("v_add_u32 v%d, v%d, v%d" % (AF, AF, AF + 1))
    a("v_mul_u32_u24 v%d, 1280, v%d" % (AF, AF))
    a("s_mov_b32 s21, 0")
a.label("HA_L")
a("buffer_load_dwordx2 %s, v%d, %s, s%d offen sc1" % (V(SET + 14, 2), vML, S(WS, 4), sHA))
for p in range(7):
    a("buffer_load_dwordx2 %s, v%d, %s, s%d offen offset:%d sc1" % (V(SET + 2 * p, 2), vL8, S(WS, 4), sHA, p * 512))
ml = SET + 14
a("s_waitcnt vmcnt(7)")
a("v_max_f32_dpp v%d, v%d, v%d %s %s" % (cM, ml, ml, QP[0], DPPM))
a("v_mul_f32 v%d, v%d, v%d" % (cL, ml + 1, vM01))
a("v_max_f32_dpp v%d, v%d, v%d %s %s" % (cM, cM, cM, QP[1], DPPM))
a("v_max_f32_dpp v%d, v%d, v%d %s %s" % (cM, cM, cM, QP[2], DPPM))
a("v_sub_f32 v%d, v%d, v%d" % (cW, ml, cM))
a("v_exp_f32 v%d, v%d" % (cW, cW))
a("v_mul_f32 v%d, v%d, v%d" % (cL, cL, cW))
a("s_waitcnt vmcnt(0)")
lsum = ["v_add_f32_dpp v%d, v%d, v%d %s %s" % (cL, cL, cL, q, DPPM) for q in QP[:3]]
for p in range(7):
    for c in range(2):
        d = cA + 2 * (p & 1) + c
        op = "v_mul_f32_dpp" if p < 2 else "v_fmac_f32_dpp"
        a("%s v%d, v%d, v%d row_newbcast:%d %s" % (op, d, cW, SET + 2 * p + c, p, DPPM))
    if p in (0, 2, 4):
        a(lsum[p // 2])
    if p == 5:
        a("v_rcp_f32 v%d, v%d" % (cL, cL))
pk(cA, cA, cA + 2)
a("v_mul_f32 v%d, v%d, v%d" % (cA, cA, cL))
a("v_mul_f32 v%d, v%d, v%d" % (cA + 1, cA + 1, cL))
a("v_cmp_u_f32 vcc, v%d, v%d" % (cA, cA + 1))
a("v_cvt_pk_bf16_f32 v%d, v%d, v%d" % (cA, cA, cA + 1))
rawbr("s_cbranch_vccz HA_P")
exact_check(range(SET, SET + 16), cX)
a("s_cbranch_vccz HA_P")
if P["TCH"]:
    budget("HA_P", None)
    a("s_add_u32 s21, s21, 1")
    a("s_and_b32 s%d, s21, %d" % (sT, P["TCH"] - 1))
    a("s_cmp_lg_u32 s%d, 1" % sT)
    a("s_cbranch_scc1 HA_L")
    for m_ in range(2):
        for o in (0, 128, 256, 316):
            a("buffer_load_dword v%d, v%d, %s, s%d offen offset:%d" % (AF + 1, AF, S(WOS[m_], 4), sWF, o))
    a("s_branch HA_L")
else:
    budget("HA_P", "HA_L")
a.label("HA_P")
stamp()
ds("ds_write_b32 v%d, v%d" % (vOw, cA))
for k in range(4):
    ds("ds_read_b128 %s, v%d offset:%d" % (V(AF + 4 * k, 4), vOr, 64 * k), "af%d" % k)
for n in range(4, 8):
    lfrag(n)
ASL = [0, 1, 2, 3, 0, 1, 2, 3, 0, 1]


def ywrite(t):
    a("s_mov_b64 exec, 0xffff")
    if t < 8:
        o = 64 * (t // 4) + t % 4
        ds("ds_write2_b32 v%d, v%d, v%d offset0:%d offset1:%d" % (vY1, AC + 4 * ASL[t], AC + 4 * ASL[t + 1], o, o + 1))
    else:
        ds("ds_write2_b32 v%d, v%d, v%d offset0:128 offset1:129" % (vY2, AC + 4 * ASL[t], AC + 4 * ASL[t + 1]))
    a("s_mov_b64 exec, -1")


for i in range(40):
    t, k = i // 4, i % 4
    D = AC + 4 * ASL[t]
    wait_lg("af%d" % k)
    if in_lds(i):
        n = i // 2
        wait_lg("lf%d" % n)
        src = SLOT[n % 8]
    else:
        src = greg(i)
    mfma(D, AF + 4 * k, src, "0" if k == 0 else V(D, 4))
    if in_lds(i) and i // 2 + 8 < 19:
        lfrag(i // 2 + 8)
    if i in (13, 21, 29, 37):
        ywrite((i - 13) // 4)
ywrite(8)
wait_lg()
fstamp()
a("s_barrier")
fstamp()
a("s_cmp_lg_u32 s%d, 0" % sWv)
rawbr("s_cbranch_scc1 HB_0")
YR = SET
a("s_mov_b32 exec_hi, 0xff")
for w_ in range(4):
    a("ds_read_b128 %s, v%d offset:%d" % (V(YR + 4 * w_, 4), vY1, 640 * w_))
a("s_waitcnt lgkmcnt(2)")
pk(YR, YR, YR + 4); pk(YR + 2, YR + 2, YR + 6)
a("s_waitcnt lgkmcnt(0)")
pk(YR + 8, YR + 8, YR + 12); pk(YR + 10, YR + 10, YR + 14)
pk(YR, YR, YR + 8); pk(YR + 2, YR + 2, YR + 10)
for r in range(4):
    a("v_min_u32 v%d, -2, v%d" % (YR + r, YR + r))
a("buffer_store_dwordx4 %s, v%d, %s, s%d offen sc1" % (V(YR, 4), vL16, S(WS, 4), sHBm))
a("s_mov_b64 exec, -1")
a.label("HB_0")
fstamp()
a("s_and_b32 s%d, s%d, 3" % (sT, sP))
a("s_cmp_eq_u32 s%d, 3" % sT)
rawbr("s_cbranch_scc1 L_FINAL")
a.label("HB_L")
NS = P["HBS"]
T = AF
UB = G if NS > 1 else AF + 10


def hb_issue(k):
    for p in range(2):
        U = UB + 20 * k + 10 * p
        a("buffer_load_dwordx4 %s, v%d, %s, s%d offen offset:%d sc1" % (V(U, 4), vHa, S(WS, 4), sHB, p * 640))
        a("buffer_load_dwordx4 %s, v%d, %s, s%d offen offset:%d sc1" % (V(U + 4, 4), vHa, S(WS, 4), sHB, p * 640 + 256))
        a("buffer_load_dwordx2 %s, v%d, %s, s%d offen offset:%d sc1" % (V(U + 8, 2), vHc, S(WS, 4), sHB, p * 640))


if NS > 1:
    a("s_mov_b32 s%d, 2" % sGty)
for k in range(NS):
    if k and P["HBSL"]:
        a("s_sleep %d" % P["HBSL"])
    hb_issue(k)
a.label("HB_R")
for k in range(NS):
    U0 = UB + 20 * k
    a("s_waitcnt vmcnt(%d)" % (6 * (NS - 1)))
    for r in range(0, 10, 2):
        pk(T + r, U0 + r, U0 + 10 + r)
    for r in (0, 2, 4, 6, 8):
        a("v_permlane32_swap_b32 v%d, v%d" % (T + r, T + r + 1))
    for r in (8, 0, 2, 4, 6):
        a("v_add_f32 v%d, v%d, v%d" % (T + r, T + r, T + r + 1))
        if r == 8:
            a("v_mov_b32 v%d, v%d" % (T + 9, T + 8))
    a("v_permlane16_swap_b32 v%d, v%d" % (T + 8, T + 9))
    a("v_permlane16_swap_b32 v%d, v%d" % (T, T + 2))
    a("v_permlane16_swap_b32 v%d, v%d" % (T + 4, T + 6))
    a("v_add_f32 v%d, v%d, v%d" % (T + 8, T + 8, T + 9))
    a("v_add_f32 v%d, v%d, v%d" % (T, T, T + 2))
    a("v_add_f32 v%d, v%d, v%d" % (T + 4, T + 4, T + 6))
    a("v_add_f32 v%d, v%d, v%d" % (T + 9, T + 8, T))
    a("v_cmp_u_f32 vcc, v%d, v%d" % (T + 9, T + 4))
    rawbr("s_cbranch_vccz HB_P")
    exact_check(range(U0, U0 + 20), cX)
    a("s_cbranch_vccz HB_P")
    budget("HB_P", None)
    hb_issue(k)
a("s_branch HB_R")
a.label("HB_P")
if DIAG != 2:
    stamp()
a("v_cvt_pk_bf16_f32 v%d, v%d, v%d" % (T + 8, T + 8, T + 8))
a("v_cvt_pk_bf16_f32 v%d, v%d, v%d" % (T, T, T + 4))
a("v_lshlrev_b32 v%d, 16, v%d" % (T + 8, T + 8))
a("v_lshlrev_b32 v%d, 16, v%d" % (T + 1, T))
a("v_and_b32 v%d, 0xffff0000, v%d" % (T + 2, T))
a("v_add_f32 v%d, v%d, v%d" % (T + 8, T + 8, xo + 2))
a("v_add_f32 v%d, v%d, v%d" % (T + 1, T + 1, xo))
a("v_add_f32 v%d, v%d, v%d" % (T + 2, T + 2, xo + 1))
a("v_cvt_pk_bf16_f32 v%d, v%d, v%d" % (cA + 1, T + 8, T + 8))
a("v_cvt_pk_bf16_f32 v%d, v%d, v%d" % (cA, T + 1, T + 2))
a("s_cmp_eq_u32 s%d, 16" % sN)
rawbr("s_cbranch_scc1 L_OUT")
a("ds_write_b16 v%d, v%d" % (tx3, cA + 1))
a("ds_write_b16 v%d, v%d" % (tx1, cA))
a("ds_write_b16_d16_hi v%d, v%d offset:8" % (tx1, cA))
a("s_waitcnt lgkmcnt(0)")
fstamp()
a("s_barrier")
fstamp()
if P["EGB"]:
    a("s_add_u32 s%d, s%d, 1" % (sT, sN))
    a("s_lshl_b32 s%d, s%d, 2" % (sT, sT))
    a("s_lshr_b64 s[16:17], s[18:19], s%d" % sT)
    a("s_and_b32 s20, s16, 1")
    a("s_mov_b32 s%d, 2" % sMode)
    a("s_mov_b32 s%d, 3" % sGty)
a("s_call_b64 %s, R_WQ" % S(RA, 2))
a("s_mov_b32 s%d, 0" % sMode)
stamp()
a("s_add_u32 s%d, s%d, 1" % (sN, sN))
a("s_branch L_CH")
a.label("L_FINAL")
a("s_barrier")
stamp()
a("s_add_u32 s%d, s%d, 1" % (sN, sN))
a("s_cmp_lt_u32 s%d, 16" % sN)
a("s_cbranch_scc1 L_CH")
a("s_cmp_gt_u32 s%d, 3" % sH)
a("s_cbranch_scc1 L_FIN")
a("s_cmp_eq_u32 s%d, 3" % sH)
a("s_cbranch_scc1 HB_L")
a("s_lshl_b32 s%d, s%d, 2" % (sT, sH))
a("s_add_u32 s%d, s%d, 3" % (sT, sT))
a("s_mul_i32 s%d, s%d, %d" % (sT, sT, PH))
a("s_add_u32 s%d, s%d, s%d" % (sHB, sT, sHBo))
a("s_mul_i32 s%d, s%d, 1280" % (sX, sH))
a("v_add_u32 v%d, s%d, v%d" % (tx1, sX, vX1))
a("v_add_u32 v%d, s%d, v%d" % (tx3, sX, vX3))
a("ds_read_u16 v%d, v%d" % (xo, tx1))
a("ds_read_u16 v%d, v%d offset:8" % (xo + 1, tx1))
a("ds_read_u16 v%d, v%d" % (xo + 2, tx3))
a("s_waitcnt lgkmcnt(0)")
for r in range(3):
    a("v_lshlrev_b32 v%d, 16, v%d" % (xo + r, xo + r))
a("s_branch HB_L")
a.label("L_OUT")
a("buffer_store_short v%d, v%d, %s, s%d offen" % (cA + 1, vX3, S(OUT, 4), sX))
a("buffer_store_short v%d, v%d, %s, s%d offen" % (cA, vX1, S(OUT, 4), sX))
a("buffer_store_short_d16_hi v%d, v%d, %s, s%d offen offset:8" % (cA, vX1, S(OUT, 4), sX))
a("s_branch L_FIN")

a.label("R_WQ")
lgq.clear()
ta, ts = TMP + 14, TMP + 15
DQ, XS, s2, s1, su, one = AC, AF, AF + 6, AF + 7, AF + 8, AF + 9
a("v_add_u32 v%d, s%d, v%d" % (ta, sX, vG16))
a("v_add_u32 v%d, s%d, v%d" % (ts, sX, vL4))
for k in range(6):
    ds("ds_read_b128 %s, v%d offset:%d" % (V(SLOT[k % 8], 4), ta, 64 * k), "xf%d" % k)
for r in range(5):
    ds("ds_read_b32 v%d, v%d offset:%d" % (XS + r, ts, 256 * r), "xs")
a("v_mov_b32 v%d, 0" % s2)
a("v_mov_b32 v%d, 0" % s1)
a("v_mov_b32 v%d, 0x3f803f80" % one)
if P["EGB"]:
    a("s_cmp_lg_u32 s%d, 2" % sMode)
    rawbr("s_cbranch_scc1 WQ_NG")
    g_issue(20)
    a.label("WQ_NG")
a("s_cmp_eq_u32 s%d, 0" % sTy)
rawbr("s_cbranch_scc1 WQ_B")
lg_save = list(lgq)


def stats_ops():
    ops = []
    for r in range(5):
        ops.append("v_dot2c_f32_bf16 v%d, v%d, v%d" % (s2, XS + r, XS + r))
        ops.append("v_dot2c_f32_bf16 v%d, v%d, v%d" % (s1, XS + r, one))
    for q in QP:
        ops.append("v_add_f32_dpp v%d, v%d, v%d %s %s" % (s2, s2, s2, q, DPPM))
        ops.append("v_add_f32_dpp v%d, v%d, v%d %s %s" % (s1, s1, s1, q, DPPM))
    for sw in ("v_permlane16_swap_b32", "v_permlane32_swap_b32"):
        ops.append("v_mov_b32 v%d, v%d" % (su, s2))
        ops.append("v_mov_b32 v%d, v%d" % (XS, s1))
        ops.append("%s v%d, v%d" % (sw, s2, su))
        ops.append("%s v%d, v%d" % (sw, s1, XS))
        ops.append("v_add_f32 v%d, v%d, v%d" % (s2, s2, su))
        ops.append("v_add_f32 v%d, v%d, v%d" % (s1, s1, XS))
    ops += [
        "v_mul_f32 v%d, 0x%08x, v%d" % (s1, f32(1.0 / 640), s1),
        "v_mul_f32 v%d, 0x%08x, v%d" % (s2, f32(1.0 / 640), s2),
        "v_fma_f32 v%d, -v%d, v%d, v%d" % (s2, s1, s1, s2),
        "v_max_f32 v%d, 0, v%d" % (s2, s2),
        "v_cvt_pk_bf16_f32 v%d, v%d, v%d" % (s2, s1, s2),
        "v_lshlrev_b32 v%d, 16, v%d" % (s1, s2),
        "v_and_b32 v%d, 0xffff0000, v%d" % (s2, s2),
        "v_add_f32 v%d, 0x%08x, v%d" % (s2, f32(1e-5), s2),
        "v_cvt_pk_bf16_f32 v%d, v%d, v%d" % (s2, s2, s2),
        "v_and_b32 v%d, 0xffff0000, v%d" % (s2, s2),
        "v_sqrt_f32 v%d, v%d" % (s2, s2),
        "v_cvt_pk_bf16_f32 v%d, v%d, v%d" % (s2, s2, s2),
        "v_and_b32 v%d, 0xffff0000, v%d" % (s2, s2),
        "v_rcp_f32 v%d, v%d" % (s2, s2),
    ]
    return ops


for mat in (0, 1):
    if mat == 1:
        a.label("WQ_B")
        lgq[:] = lg_save
    so = stats_ops()
    for k in range(20):
        if k == 20 - 1 - P["EGB"] and P["EGB"] == -5:
            pass
        wait_lg("xf%d" % k)
        for ct in range(2):
            mfma(DQ + 4 * ct, SLOT[k % 8], WQF(mat, k, ct), "0" if k == 0 else V(DQ + 4 * ct, 4))
            if ct == 0 and k + 6 < 20:
                ds("ds_read_b128 %s, v%d offset:%d" % (V(SLOT[(k + 6) % 8], 4), ta, 64 * (k + 6)), "xf%d" % (k + 6))
            if k >= 3:
                if k == 3 and ct == 0:
                    wait_lg("xs")
                for _ in range((1 if (ct == 0 and k + 6 < 20) else 2)):
                    if so:
                        a(so.pop(0))
    for op in so:
        a(op)
    Cr = vC + 2 * mat
    lab = a.newlabel("WQC")
    a("s_cmp_eq_u32 s%d, 1" % sMode)
    rawbr("s_cbranch_scc1 %s" % lab)
    a("v_fma_f32 v%d, -v%d, v%d, v%d" % (DQ, s1, Cr, DQ))
    a("v_fma_f32 v%d, -v%d, v%d, v%d" % (DQ + 4, s1, Cr + 1, DQ + 4))
    a("v_mul_f32 v%d, v%d, v%d" % (DQ, DQ, s2))
    a("v_mul_f32 v%d, v%d, v%d" % (DQ + 4, DQ + 4, s2))
    a("v_cvt_pk_bf16_f32 v%d, v%d, v%d" % (DQ, DQ, DQ + 4))
    a("v_min_u32 v%d, -2, v%d" % (DQ, DQ))
    lab2 = a.newlabel("QLOC")
    a("s_mov_b64 exec, 0xffff")
    a("s_cmp_eq_u32 s%d, 0" % sLoc)
    rawbr("s_cbranch_scc1 %s" % lab2)
    a("buffer_store_dword v%d, v%d, %s, s%d offen" % (DQ, vL4, S(WS, 4), sHC))
    a("s_mov_b64 exec, -1")
    a("s_setpc_b64 %s" % S(RA, 2))
    a.label(lab2)
    a("buffer_store_dword v%d, v%d, %s, s%d offen sc1" % (DQ, vL4, S(WS, 4), sHC))
    a("s_mov_b64 exec, -1")
    a("s_setpc_b64 %s" % S(RA, 2))
    a.label(lab)
    a.nop(8)
    a("v_mov_b32 v%d, v%d" % (Cr, DQ))
    a("v_mov_b32 v%d, v%d" % (Cr + 1, DQ + 4))
    a("s_setpc_b64 %s" % S(RA, 2))

a.label("L_FIN")
if DIAG:
    stamp()
    a("v_mbcnt_lo_u32_b32 v1, -1, 0")
    a("v_mbcnt_hi_u32_b32 v1, -1, v1")
    a("v_lshlrev_b32 v1, 2, v1")
    a("s_lshl_b32 s%d, s%d, 3" % (sT, sH))
    a("s_add_u32 s%d, s%d, s%d" % (sT, sT, sS))
    a("s_lshl_b32 s%d, s%d, 2" % (sT, sT))
    a("s_add_u32 s%d, s%d, s%d" % (sT, sT, sWv))
    a("s_lshl_b32 s%d, s%d, 8" % (sT, sT))
    a("s_add_u32 s%d, s%d, 0x%x" % (sT, sT, WS_DIAG))
    a("buffer_store_dword v0, v1, %s, s%d offen" % (S(WS, 4), sT))
a.label("L_END")
a("s_endpgm")

ref = open(os.path.join(os.path.dirname(__file__), "..", "cdna_kernels", NAME + ".s.ref")).read().splitlines()
head = [l for l in ref if l.startswith(";") and "@launch" not in l and not l.startswith("; Override") and not l.startswith("; grid=")]
out = "\n".join(head) + "\n"
out += "; @launch grid=(256,1,1) block=(256,1,1) lds=%d\n" % LDS_BYTES
out += '.amdgcn_target "amdgcn-amd-amdhsa--gfx950"\n.text\n.globl %s_kernel\n.p2align 8\n.type %s_kernel,@function\n%s_kernel:\n' % (NAME, NAME, NAME)
out += a.text()
out += """.section .rodata,"a"
.p2align 6
.amdhsa_kernel %s_kernel
  .amdhsa_next_free_vgpr 512
  .amdhsa_next_free_sgpr 102
  .amdhsa_accum_offset 256
  .amdhsa_group_segment_fixed_size 0
  .amdhsa_kernarg_size 104
  .amdhsa_user_sgpr_count 2
  .amdhsa_user_sgpr_kernarg_segment_ptr 1
  .amdhsa_system_sgpr_workgroup_id_x 1
  .amdhsa_float_denorm_mode_32 3
.end_amdhsa_kernel
""" % NAME
open(sys.argv[1], "w").write(out)
print("wrote", sys.argv[1], len(a.lines), "lines")
```

```python
import sys, os, math, struct
from collections import deque
sys.path.insert(0, os.path.dirname(__file__))
from asmlib import Asm, V, S

NAME = "interleave_layers__gqa_block_cached__gqa_block_cached__decode"

P = dict(W=6, DIAG=0, PF=20, NG=0, SPR=3, ALN=1, HBD=10, HBW=4, WG3=6, NVJ=24, L2B=0, L2R=8, PBAR=1, TCH=0, EGB=0, WOT=2, ORD=1, PF4=16, Q2POS=34, WPF=1, SCALE=1000, W0=6, CUD=0, ROT=0, CPF=1, WQNT=0, CDEL=1, LOCAL=1, HBS=1, HBSL=3, APF=4, WCU=6, XB=1, HLP=0, WH=4, B4R=4, WPFW=2, WEND=6, NEND=12)
for arg in sys.argv[2:]:
    k, v = arg.split("=")
    P[k] = int(v)
W = P["W"]
DIAG = P["DIAG"]
PF = P["PF"]
NG = P["NG"]
NVJ = P["NVJ"]


def f32(x):
    return struct.unpack("<I", struct.pack("<f", x))[0]


LDS_BYTES = 163840
L_CNT = [0, 4]
L_PART = [64, 64 + 2112]
L_VA = 8192
L_X = 0
L_YB = 5120
L_WO = 8192
PH = 184320
HB0 = 147456
HC0 = 167936
WF0 = 4 << 20
WS_DIAG = 12 << 20
WS_BYTES = 13 << 20
BATCH = 1 << 25
TENSOR = 1 << 27
DPPM = "row_mask:0xf bank_mask:0xf"
QP = ["quad_perm:[1,0,3,2]", "quad_perm:[2,3,0,1]", "row_half_mirror", "row_mirror"]

a = Asm()

sH, sS, sWv = 3, 4, 5
KA, VA, KB, VB, WS, DBG, WT, OUT = 44, 48, 52, 56, 80, 84, 88, 92
sNRK, sNRV = 60, 61
sTO, sC, sT, sT2, sLB, sTv = 62, 63, 64, 65, 66, 67
sQM = 70
sDI = 98
sXc, sLoc = 99, 79
RA = 100


def stamp():
    if not DIAG:
        return
    a("s_memrealtime s[96:97]")
    a("s_waitcnt lgkmcnt(0)")
    lgq.clear()
    a("s_lshl_b64 exec, 1, s%d" % sDI)
    a("v_mov_b32 v0, s96")
    a("s_mov_b64 exec, -1")
    a("s_add_u32 s%d, s%d, 1" % (sDI, sDI))


def fstamp():
    if DIAG != 3:
        return
    lab = a.newlabel("FS")
    a("s_cmp_lt_u32 s9, 11")
    a("s_cbranch_scc1 %s" % lab)
    sv = list(lgq)
    stamp()
    lgq[:] = sv
    a.label(lab)


def budget(done, loop, sleep=None):
    a("s_cmp_eq_u32 s%d, 0" % sTO)
    a("s_cbranch_scc1 %s" % done)
    a("s_sub_u32 s%d, s%d, 1" % (sTO, sTO))
    if sleep:
        a("s_sleep %d" % sleep)
    if loop:
        a("s_branch %s" % loop)


def rawbr(text):
    a.raw("    " + text)
    a.st += 1


def mfma(d, x, y, c):
    a("v_mfma_f32_16x16x32_bf16 %s, %s, %s, %s" % (V(d, 4), V(x, 4), V(y, 4), c))


def pk(d, x, y):
    a("v_pk_add_f32 %s, %s, %s" % (V(d, 2), V(x, 2), V(y, 2)))


def srd(dst, ptr, nrec):
    a("s_mov_b32 s%d, s%d" % (dst, ptr))
    a("s_and_b32 s%d, s%d, 0xffff" % (dst + 1, ptr + 1))
    a("s_mov_b32 s%d, %s" % (dst + 2, nrec))
    a("s_mov_b32 s%d, 0x20000" % (dst + 3))


lgq = []


def ds(text, tag=None):
    a(text)
    lgq.append(tag)


def wait_lg(tag=None):
    if tag is None:
        a("s_waitcnt lgkmcnt(0)")
        lgq.clear()
        return
    if tag not in lgq:
        return
    idx = max(i for i, t in enumerate(lgq) if t == tag)
    n = len(lgq) - 1 - idx
    a("s_waitcnt lgkmcnt(%d)" % min(n, 15))
    del lgq[:len(lgq) - min(n, 15)]


def exact_check(regs, t):
    regs = list(regs)
    a("v_max3_u32 v%d, v%d, v%d, v%d" % (t, regs[0], regs[1], regs[2]))
    i = 3
    while i < len(regs):
        r2 = regs[i + 1] if i + 1 < len(regs) else regs[i]
        a("v_max3_u32 v%d, v%d, v%d, v%d" % (t, t, regs[i], r2))
        i += 2
    a("v_cmp_eq_u32 vcc, -1, v%d" % t)


a("s_cmp_ge_u32 s2, 256")
a("s_cbranch_scc1 L_END")
a("s_load_dwordx16 s[16:31], s[0:1], 0")
a("s_load_dwordx8 s[32:39], s[0:1], 64")
a("s_load_dwordx2 s[40:41], s[0:1], 96")
a("v_lshrrev_b32 v1, 6, v0")
a("v_and_b32 v47, 63, v0")
a("v_readfirstlane_b32 s%d, v1" % sWv)
a("v_mov_b32 v0, 0")
a("s_and_b32 s%d, s2, 7" % sH)
a("s_lshl_b32 s%d, s%d, 2" % (sH, sH))
a("s_lshr_b32 s6, s2, 3")
a("s_and_b32 s6, s6, 3")
a("s_add_u32 s%d, s%d, s6" % (sH, sH))
a("s_lshr_b32 s%d, s2, 5" % sS)
a("s_mov_b32 s%d, 200000" % sTO)
a("s_mov_b32 s%d, 0" % sDI)
a("s_getreg_b32 s%d, hwreg(HW_REG_XCC_ID, 0, 4)" % sXc)
a("s_or_b32 s%d, s%d, 0x80" % (sXc, sXc))
a("s_mov_b32 s%d, 0" % sLoc)
a("v_and_b32 v46, 15, v47")
a("v_lshrrev_b32 v45, 4, v47")
a("s_waitcnt lgkmcnt(0)")
srd(WS, 40, "0x%x" % WS_BYTES)
srd(DBG, 38, "256")
a("s_cmp_eq_u32 s%d, 7" % sS)
a("s_cbranch_scc1 L_COMM")

vK, vL, vPt, MK, vBias = 1, 2, 3, 4, 8
SS = list(range(9, 19))
vQa = 19
ML, vT, vU = 20, 22, 23
D2, D1, D3 = 20, 24, 28
QF = 32
ACC = 32
QR = 48
sB, sCur, sNxt, sHas, sPq, sPa, sWi = 6, 7, 8, 9, 10, 11, 12
GO = 16


def home(kind, i):
    if kind == "KS":
        return 56 + 4 * (i - (36 - P["SPR"]))
    if kind == "KA":
        return 68 + 4 * i
    if kind == "KB":
        return 216 + 4 * i
    if kind == "VB":
        return 216 + 148 + 4 * i
    raise KeyError


assert home("VB", 36) + 4 == 512

a("s_mov_b32 s%d, 0x%08x" % (sC, f32(128 ** -0.5 * math.log2(math.e) * P["SCALE"] / 1000.0)))
for t in range(4):
    m = 0x000F000F << (4 * t)
    a("s_mov_b32 s%d, 0x%08x" % (sQM + 2 * t, m))
    a("s_mov_b32 s%d, 0x%08x" % (sQM + 2 * t + 1, m))
a("s_mul_i32 s%d, s%d, 7" % (sWi, sWv))
a("s_add_u32 s%d, s%d, s%d" % (sWi, sWi, sS))
a("s_cmp_lt_u32 s%d, 16" % sWi)
a("s_cselect_b32 s%d, 1, 0" % sHas)
a("s_min_u32 s13, s%d, 16" % sWi)
a("s_mul_i32 s14, s%d, 36" % sWi)
a("s_add_u32 s13, s13, s14")
a("s_lshl_b32 s13, s13, 10")
a("s_lshl_b32 s14, s%d, 20" % sH)
a("s_add_u32 s13, s13, s14")
a("s_mul_i32 s%d, s%d, 37888" % (sLB, sWv))
a("s_add_u32 s%d, s%d, %d" % (sLB, sLB, L_VA))
a("s_sub_u32 s%d, 0x%x, s13" % (sNRK, TENSOR))
a("s_add_u32 s%d, s%d, s%d" % (sNRV, sNRK, sLB))
for dst, ptr, isv in ((KA, 18, 0), (VA, 20, 1), (KB, 28, 0), (VB, 30, 1)):
    a("s_add_u32 s%d, s%d, s13" % (dst, ptr))
    a("s_addc_u32 s%d, s%d, 0" % (dst + 1, ptr + 1))
    if isv:
        a("s_sub_u32 s%d, s%d, s%d" % (dst, dst, sLB))
        a("s_subb_u32 s%d, s%d, 0" % (dst + 1, dst + 1))
    a("s_and_b32 s%d, s%d, 0xffff" % (dst + 1, dst + 1))
    a("s_mov_b32 s%d, s%d" % (dst + 2, sNRV if isv else sNRK))
    a("s_mov_b32 s%d, 0x20000" % (dst + 3))
if P["HLP"]:
    a("s_add_u32 s14, s%d, 1" % sS)
    a("s_cmp_eq_u32 s14, 7")
    a("s_cselect_b32 s14, 0, s14")
    a("s_mul_i32 s15, s%d, 7" % sWv)
    a("s_add_u32 s14, s14, s15")
    a("s_min_u32 s15, s14, 16")
    a("s_mul_i32 s14, s14, 36")
    a("s_add_u32 s14, s14, s15")
    a("s_lshl_b32 s14, s14, 10")
    a("s_lshl_b32 s15, s%d, 20" % sH)
    a("s_add_u32 s14, s14, s15")
    a("s_add_u32 s%d, s30, s14" % OUT)
    a("s_addc_u32 s%d, s31, 0" % (OUT + 1))
    a("s_sub_u32 s%d, s%d, s%d" % (OUT, OUT, sLB))
    a("s_subb_u32 s%d, s%d, 0" % (OUT + 1, OUT + 1))
    a("s_and_b32 s%d, s%d, 0xffff" % (OUT + 1, OUT + 1))
    a("s_sub_u32 s%d, 0x%x, s14" % (OUT + 2, TENSOR))
    a("s_add_u32 s%d, s%d, s%d" % (OUT + 2, OUT + 2, sLB))
    a("s_mov_b32 s%d, 0x20000" % (OUT + 3))
a("v_and_b32 v44, 3, v47")
a("v_lshlrev_b32 v%d, 4, v44" % vQa)
a("v_lshl_add_u32 v%d, v45, 6, v%d" % (vQa, vQa))
a("v_bfe_u32 v44, v47, 2, 2")
a("v_lshl_add_u32 v%d, v44, 8, v%d" % (vK, vQa))
a("v_lshl_add_u32 v%d, v45, 6, v%d" % (vQa, vQa))
a("v_lshlrev_b32 v43, 4, v47")
a("v_add_u32 v%d, s%d, v43" % (vL, sLB))
a("s_lshl_b32 s%d, s%d, 9" % (sPq, sH))
a("s_add_u32 s%d, s%d, %d" % (sPq, sPq, HC0))
a("s_mul_i32 s%d, s%d, 4608" % (sPa, sH))
a("s_mov_b32 s%d, 0" % sB)
a("s_mov_b32 s%d, 0" % sCur)
stamp()

wpf = []
if P["WPF"]:
    a("s_and_b32 s15, s%d, 3" % sH)
    a("s_mul_i32 s15, s15, 28")
    a("s_add_u32 s15, s15, s%d" % sWi)
    a("s_lshr_b32 s42, s%d, 2" % sH)
    a("s_mul_i32 s43, s42, 655360")
    a("s_lshl_b32 s42, s42, 10")

    def wpf_load(ptr, isq, r):
        def fn():
            if r == 0:
                srd(WT, ptr, "0x%x" % (640 * 8192))
            a("s_add_u32 s%d, s15, %d" % (sT2, 112 * r))
            a("s_min_u32 s%d, s%d, 639" % (sT2, sT2))
            a("s_lshl_b32 s%d, s%d, %d" % (sT2, sT2, 13 if isq else 10))
            a("s_add_u32 s%d, s%d, s%d" % (sT2, sT2, 42 if isq else 43))
            a("buffer_load_dwordx4 %s, v43, %s, s%d offen" % (V(QR, 4), S(WT, 4), sT2), tag="wpf")
        return fn
    for ptr, isq in ((22, P["WPF"] != 3), (24, 0), (34, 0), (32, P["WPF"] < 3)):
        for r in range(6):
            wpf.append(wpf_load(ptr, isq, r))

curh = {"K": None, "V": None, "m0": None}
fab = []
done_idx = [-1]
live = {}


def waitvm(n):
    assert n <= 63, n
    a("s_waitcnt vmcnt(%d)" % n)
    i, c = len(a.vmq) - 1, 0
    while i >= 0 and c < n:
        if i not in a.vmopt:
            c += 1
        i -= 1
    done_idx[0] = max(done_idx[0], i)


def tag_idx(tag):
    return max(i for i, t in enumerate(a.vmq) if t == tag)


def landed(tag):
    return tag_idx(tag) <= done_idx[0]


def wait_tag(tag):
    if not landed(tag):
        waitvm(a.vm_after_idx(tag_idx(tag)))


WIN = [P["W0"]]


def pace():
    w = WIN[0]
    if len(fab) >= w and fab[-w] > done_idx[0]:
        waitvm(a.vm_after_idx(fab[-w]))


def reset_vm():
    a.vmq[:] = ["old"] * W
    a.vmopt.clear()
    fab[:] = list(range(W))
    done_idx[0] = -1
    curh.update(K=None, V=None, m0=None)


def load_tile(kind, off, i, mode, fabric, paced):
    g, t = i // 4, i % 4
    srdn = {"KA": KA, "VA": VA, "KB": KB, "VB": VB, "VN": OUT, "KS": KA}[kind]
    c = kind[0]
    vo, so = (vK, sT) if c == "K" else (vL, sTv)
    if mode == "home":
        assert not live.get((kind, i), False), ("slot busy", kind, i)
        live[(kind, i)] = True
    if curh[c] != (kind, off, g):
        a("s_add_u32 s%d, s%d, s%d" % (so, off, GO + g))
        curh[c] = (kind, off, g)
    lds = kind == "VA" and mode == "home"
    if lds and curh["m0"] != g:
        a("s_add_u32 m0, s%d, %d" % (sLB, g * 4096))
        curh["m0"] = g
    if fabric and paced:
        pace()
    opt = i == 36
    if opt:
        lab = a.newlabel("NT")
        a("s_cmp_eq_u32 s%d, 0" % sHas)
        rawbr("s_cbranch_scc1 %s" % lab)
    tag = "%s%d" % (kind, g) if mode == "home" else "pf"
    if lds:
        a("buffer_load_dwordx4 v%d, %s, s%d offen offset:%d nt lds" % (vo, S(srdn, 4), so, t * 1024), tag=tag)
    elif mode == "home":
        a("buffer_load_dwordx4 %s, v%d, %s, s%d offen offset:%d nt" % (V(home(kind, i), 4), vo, S(srdn, 4), so, t * 1024), tag=tag)
    else:
        a("buffer_load_dwordx4 %s, v%d, %s, s%d offen offset:%d" % (V(QR, 4), vo, S(srdn, 4), so, t * 1024), tag=tag)
    if opt:
        a.label(lab)
        a.st -= 1
        a.vmopt.add(len(a.vmq) - 1)
    elif fabric:
        fab.append(len(a.vmq) - 1)


Q = deque()


def pump(n=1, paced=True):
    while n > 0 and Q:
        it = Q.popleft()
        if callable(it):
            it()
            continue
        load_tile(*it, paced)
        n -= 1
        while Q and (callable(Q[0]) or not Q[0][4]):
            it = Q.popleft()
            if callable(it):
                it()
            else:
                load_tile(*it, paced)


def free(kind, g):
    for i in range(4 * g, min(4 * g + 4, 37)):
        live[(kind, i)] = False


def qload(blk_off):
    a("s_add_u32 s%d, s%d, %d" % (sT2, sPq, blk_off * PH))
    a("buffer_load_dwordx4 %s, v%d, %s, s%d offen sc1" % (V(QR, 4), vQa, S(WS, 4), sT2), tag="q")


def qcheck(blk_off, early, QR=QR, dn=None):
    lp, dn = a.newlabel("QL"), dn or a.newlabel("QD")
    if early:
        wait_tag("q")
        exact_check(range(QR, QR + 4), vT)
        a("s_cbranch_vccz %s" % dn)
    a("s_add_u32 s%d, s%d, %d" % (sT2, sPq, blk_off * PH))
    a.label(lp)
    a("buffer_load_dwordx4 %s, v%d, %s, s%d offen sc1" % (V(QR, 4), vQa, S(WS, 4), sT2), tag="qspin")
    if early:
        a.vmopt.add(len(a.vmq) - 1)
        a("s_waitcnt vmcnt(0)")
    else:
        waitvm(0)
    exact_check(range(QR, QR + 4), vT)
    a("s_cbranch_vccz %s" % dn)
    budget(dn, lp)
    a.label(dn)
    for t in range(4):
        for r in range(4):
            a("v_cndmask_b32 %s, 0, %s, %s" % (V(QF + 4 * t + r), V(QR + r), S(sQM + 2 * t, 2)))


SDST = {}


def red_ops(D, g):
    Sr = SDST.get(g, SS[g])
    first = ("v_mov_b32_dpp %s, %s quad_perm:[0,0,0,0] %s" % (V(Sr), V(D), DPPM) if g < 9 else
             "v_add_f32_dpp %s, %s, %s quad_perm:[0,0,0,0] %s" % (V(Sr), V(D), V(vBias), DPPM))
    return [first] + [
        "v_add_f32_dpp %s, %s, %s quad_perm:[%d,%d,%d,%d] %s" % (V(Sr), V(D + r), V(Sr), r, r, r, r, DPPM)
        for r in (1, 2, 3)]


SX = [56, 57, 58, 59, 60]


def qk_early():
    for g in range(NG):
        SDST[g] = SX[g]
    qk_burst("KA", list(range(NG)), release=True)
    SDST.clear()


def qk_burst(kind, order, hook=None, release=False, pre=None):
    Ds = [D1, D2, D3]
    n = len(order)
    for i, g in enumerate(order):
        if pre:
            pre(g)
        D = Ds[i % 3]
        r = red_ops(Ds[(i - 2) % 3], order[i - 2]) if i >= 2 else [None] * 4
        for t in range(4):
            if g < 9 or t == 0:
                mfma(D, home(kind, 4 * g + t), QF + 4 * t, "0" if t == 0 else V(D, 4))
            if r[t]:
                a(r[t])
        if release:
            free(kind, g)
        if hook:
            hook(i)
    assert n >= 2
    ra, rb = red_ops(Ds[(n - 2) % 3], order[n - 2]), red_ops(Ds[(n - 1) % 3], order[n - 1])
    for x, y in zip(ra, rb):
        a(x)
        a(y)


def xlane(op, X, U):
    a("%s_dpp %s, %s, %s row_ror:4 %s" % (op, V(X), V(X), V(X), DPPM))
    a("%s_dpp %s, %s, %s row_ror:8 %s" % (op, V(X), V(X), V(X), DPPM))
    a("v_mov_b32 %s, %s" % (V(U), V(X)))
    a("v_permlane16_swap_b32 %s, %s" % (V(X), V(U)))
    a("%s %s, %s, %s" % (op, V(X), V(X), V(U)))
    a("v_mov_b32 %s, %s" % (V(U), V(X)))
    a("v_permlane32_swap_b32 %s, %s" % (V(X), V(U)))
    a("%s %s, %s, %s" % (op, V(X), V(X), V(U)))


def softmax():
    M, L = ML, ML + 1
    a("v_max3_f32 %s, %s, %s, %s" % (V(M), V(SS[0]), V(SS[1]), V(SS[2])))
    a("v_max3_f32 %s, %s, %s, %s" % (V(L), V(SS[3]), V(SS[4]), V(SS[5])))
    a("v_max3_f32 %s, %s, %s, %s" % (V(M), V(M), V(SS[6]), V(SS[7])))
    a("v_max3_f32 %s, %s, %s, %s" % (V(L), V(L), V(SS[8]), V(SS[9])))
    a("v_max_f32 %s, %s, %s" % (V(M), V(M), V(L)))
    xlane("v_max_f32", M, vU)
    a("v_mul_f32 %s, s%d, %s" % (V(M), sC, V(M)))
    for s_ in SS:
        a("v_fma_f32 %s, %s, s%d, -%s" % (V(s_), V(s_), sC, V(M)))
    for s_ in SS:
        a("v_exp_f32 %s, %s" % (V(s_), V(s_)))
    a("v_add_f32 %s, %s, %s" % (V(L), V(SS[0]), V(SS[1])))
    for s_ in SS[2:]:
        a("v_add_f32 %s, %s, %s" % (V(L), V(L), V(s_)))
    for s_ in SS:
        a("v_cvt_pk_bf16_f32 %s, %s, %s" % (V(s_), V(s_), V(s_)))


def pv_ops(Pr, AX, AY):
    ax = ["v_and_b32 %s, %s, %s" % (V(AX), V(Pr), V(MK)),
          "v_and_b32 %s, %s, %s" % (V(AX + 1), V(Pr), V(MK + 1)),
          "v_and_b32_dpp %s, %s, %s row_ror:4 %s" % (V(AX + 2), V(Pr), V(MK + 2), DPPM),
          "v_and_b32_dpp %s, %s, %s row_ror:4 %s" % (V(AX + 3), V(Pr), V(MK + 3), DPPM)]
    ay = ["v_and_b32_dpp %s, %s, %s row_ror:12 %s" % (V(AY), V(Pr), V(MK), DPPM),
          "v_and_b32_dpp %s, %s, %s row_ror:12 %s" % (V(AY + 1), V(Pr), V(MK + 1), DPPM),
          "v_and_b32 %s, %s, %s" % (V(AY + 2), V(Pr), V(MK + 2)),
          "v_and_b32 %s, %s, %s" % (V(AY + 3), V(Pr), V(MK + 3))]
    return ax, ay


def pv_seq(groups, first, pre=None, post=None):
    lo, hi, AX, AY = ACC, ACC + 4, ACC + 8, ACC + 12
    n = len(groups)
    ops = [pv_ops(SS[g], AX, AY) for g, _ in groups]
    for o in ops[0][0]:
        a(o)
    for i in range(n):
        g, Vr = groups[i]
        ax, ay = ops[i]
        z = first and i == 0
        nx = ops[i + 1][0] if i + 1 < n else [None] * 4
        if g == 9:
            assert i == n - 1 and not z
            if pre:
                pre(i)
            mfma(lo, AX, Vr, V(lo, 4))
        else:
            a(ay[0]); a(ay[1])
            if pre:
                pre(i)
            mfma(lo, AX, Vr, "0" if z else V(lo, 4))
            a(ay[2]); a(ay[3])
            mfma(hi, AX, Vr + 8, "0" if z else V(hi, 4))
            if nx[0]:
                a(nx[0]); a(nx[1])
            mfma(lo, AY, Vr + 4, V(lo, 4))
            if nx[2]:
                a(nx[2]); a(nx[3])
            mfma(hi, AY, Vr + 12, V(hi, 4))
        if post:
            post(i)


def publish(typ, blk_off):
    lo, hi = ACC, ACC + 4
    tA, tO, tR, tE = D1, D1 + 1, D1 + 2, D1 + 3
    tM, tW = D3, D3 + 1
    mlr = D3 + 2
    OB = ACC + 8
    part = L_PART[typ]
    a("v_mov_b32 %s, 0" % V(tA))
    a("v_mov_b32 %s, 1" % V(tO))
    a("v_subrev_u32 %s, s%d, %s" % (V(tE), sLB, V(vL)))
    a("v_lshrrev_b32 %s, 1, %s" % (V(tE), V(tE)))
    a("v_and_b32 %s, 24, %s" % (V(tW), V(tE)))
    a("v_mov_b32 %s, s13" % V(tM))
    xlane("v_add_f32", ML + 1, vU)
    a("v_permlane32_swap_b32 %s, %s" % (V(lo), V(lo + 2)))
    a("v_permlane32_swap_b32 %s, %s" % (V(lo + 1), V(lo + 3)))
    a("v_permlane32_swap_b32 %s, %s" % (V(hi), V(hi + 2)))
    a("v_permlane32_swap_b32 %s, %s" % (V(hi + 1), V(hi + 3)))
    a("v_add_f32 %s, %s, %s" % (V(lo), V(lo), V(hi + 2)))
    a("v_add_f32 %s, %s, %s" % (V(lo + 1), V(lo + 1), V(hi + 3)))
    ds("ds_write_b64 %s, %s offset:%d" % (V(vPt), V(lo, 2), part))
    a("s_mov_b64 exec, 1")
    ds("ds_write_b64 %s, %s offset:%d" % (V(tM), V(ML, 2), part + 2048))
    ds("ds_add_rtn_u32 %s, %s, %s offset:%d" % (V(tR), V(tA), V(tO), L_CNT[typ]), "cnt")
    a("s_mov_b64 exec, -1")
    ds("ds_read_b64 %s, %s offset:%d" % (V(mlr, 2), V(tW), part + 2048), "ml")
    for p in range(4):
        ds("ds_read_b64 %s, %s offset:%d" % (V(OB + 2 * p, 2), V(tE), part + 512 * p))
    a("s_add_u32 s%d, s%d, %d" % (sT2, sPa, blk_off * PH))
    wait_lg("ml")
    a("v_readfirstlane_b32 s15, %s" % V(tR))
    cM, cL, cW = ML, ML + 1, vT
    a("v_max_f32_dpp v%d, v%d, v%d %s %s" % (cM, mlr, mlr, QP[0], DPPM))
    a("s_and_b32 s15, s15, 3")
    a("s_cmp_lg_u32 s15, 3")
    lab = a.newlabel("NOTLAST")
    rawbr("s_cbranch_scc1 %s" % lab)
    a("v_max_f32_dpp v%d, v%d, v%d %s %s" % (cM, cM, cM, QP[1], DPPM))
    a("v_sub_f32 v%d, v%d, v%d" % (cW, mlr, cM))
    a("v_exp_f32 v%d, v%d" % (cW, cW))
    a("v_mul_f32 v%d, v%d, v%d" % (cL, mlr + 1, cW))
    a("s_waitcnt lgkmcnt(0)")
    lsum = ["v_add_f32_dpp v%d, v%d, v%d %s %s" % (cL, cL, cL, q, DPPM) for q in QP[:2]]
    for p in range(4):
        for c in range(2):
            d = lo + 2 * (p & 1) + c
            op = "v_mul_f32_dpp" if p < 2 else "v_fmac_f32_dpp"
            a("%s v%d, v%d, v%d row_newbcast:%d %s" % (op, d, cW, OB + 2 * p + c, p, DPPM))
        if p in (0, 2):
            a(lsum[p // 2])
    pk(lo, lo, lo + 2)
    a("v_min_u32 v%d, -2, v%d" % (cM, cM))
    a("v_min_u32 v%d, -2, v%d" % (cL, cL))
    a("v_min_u32 v%d, -2, v%d" % (lo, lo))
    a("v_min_u32 v%d, -2, v%d" % (lo + 1, lo + 1))
    a("s_add_u32 s15, s%d, s14" % sT2)
    a("s_add_u32 s%d, s%d, s68" % (sT2, sT2))
    lab2 = a.newlabel("PLOC")
    a("s_cmp_eq_u32 s%d, 0" % sLoc)
    rawbr("s_cbranch_scc0 %s" % lab2)
    for sc in (" sc1", ""):
        a("buffer_store_dwordx2 %s, %s, %s, s15 offen%s" % (V(lo, 2), V(tE), S(WS, 4), sc))
        a.vmopt.add(len(a.vmq) - 1)
        a("s_mov_b64 exec, 1")
        a("buffer_store_dwordx2 %s, %s, %s, s%d offen%s" % (V(cM, 2), V(tE), S(WS, 4), sT2, sc))
        a.vmopt.add(len(a.vmq) - 1)
        a("s_mov_b64 exec, -1")
        if sc:
            rawbr("s_branch %s" % lab)
            a.label(lab2)
    a.label(lab)
    a("s_waitcnt lgkmcnt(0)")
    lgq.clear()
    a.nop(2)


def stage(g, dst):
    for t in range(4 if g < 9 else 1):
        ds("ds_read_b128 %s, v%d offset:%d" % (V(dst + 4 * t, 4), vL, g * 4096 + t * 1024), "st%d" % g)


reset_vm()
a.vmq[:] = []
fab[:] = []
if P["CPF"]:
    a("s_getpc_b64 %s" % S(WT, 2))
    a.label("L_PC")
    a("s_sub_u32 s%d, s%d, L_PC-%s_kernel" % (WT, WT, NAME))
    a("s_subb_u32 s%d, s%d, 0" % (WT + 1, WT + 1))
    a("s_and_b32 s%d, s%d, 0xffff" % (WT + 1, WT + 1))
    a("s_mov_b32 s%d, L_END-%s_kernel" % (WT + 2, NAME))
    a("s_mov_b32 s%d, 0x20000" % (WT + 3))
    a("s_lshl_b32 s%d, s15, 10" % sT2)
    a("v_add_u32 v42, s%d, v43" % sT2)
    a("buffer_load_dwordx4 %s, v42, %s, 0 offen" % (V(QR, 4), S(WT, 4)))
for fn in wpf[:6]:
    fn()
    fab.append(len(a.vmq) - 1)
a("s_lshl_b32 s14, s%d, 9" % sS)
a("s_lshl_b32 s68, s%d, 7" % sS)
a("s_add_u32 s68, s68, 3584")
a("s_lshl_b32 s13, s%d, 3" % sWv)
a("s_cmp_lg_u32 s%d, 0" % sWv)
a("s_cbranch_scc1 L_NOCLR")
a("v_add_u32 v40, s14, v43")
a("v_subrev_u32 v41, 512, v43")
a("v_add_u32 v41, s68, v41")
a("v_cmp_gt_u32 vcc, 32, v47")
a("v_cndmask_b32 v40, v41, v40, vcc")
for r in range(4):
    a("v_mov_b32 v%d, -1" % (QF + r))
a("v_mov_b32 v41, 0")
a("v_mov_b32 v36, 0")
a("v_mov_b32 v37, 0")
a("ds_write_b64 v41, v[36:37]")
a("s_mov_b32 exec_hi, 0xff")
for p in range(16):
    a("s_add_u32 s%d, s%d, %d" % (sT2, sPa, p * PH))
    a("buffer_store_dwordx4 %s, v40, %s, s%d offen sc1" % (V(QF, 4), S(WS, 4), sT2), tag="clr")
    a.vmopt.add(len(a.vmq) - 1)
a("s_mov_b64 exec, -1")
a("s_waitcnt lgkmcnt(0)")
a.label("L_NOCLR")
a("s_barrier")
for fn in wpf[6:]:
    pace()
    fn()
    fab.append(len(a.vmq) - 1)
if P["WOT"]:
    srd(WT, 24, "0x%x" % (4096 * 1280))
    a("s_sub_u32 s%d, s%d, s%d" % (WT, WT, sLB))
    a("s_subb_u32 s%d, s%d, 0" % (WT + 1, WT + 1))
    a("s_and_b32 s%d, s%d, 0xffff" % (WT + 1, WT + 1))
    a("s_add_u32 s%d, s%d, s%d" % (WT + 2, WT + 2, sLB))
    assert not P["HLP"]
    srd(OUT, 34, "s%d" % (WT + 2))
    a("s_sub_u32 s%d, s%d, s%d" % (OUT, OUT, sLB))
    a("s_subb_u32 s%d, s%d, 0" % (OUT + 1, OUT + 1))
    a("s_and_b32 s%d, s%d, 0xffff" % (OUT + 1, OUT + 1))
    a("s_mul_i32 s15, s%d, 163840" % sH)
    for r in range(3):
        a("s_add_u32 s%d, s%d, %d" % (29 + r, sWi, 28 * r))
        a("s_min_u32 s%d, s%d, 79" % (29 + r, 29 + r))
        a("s_cmp_lt_u32 s%d, 40" % (29 + r))
        a("s_cselect_b32 s%d, 0, 40" % sT2)
        a("s_add_u32 s%d, s%d, s%d" % (29 + r, 29 + r, sT2))
        a("s_lshl_b32 s%d, s%d, 10" % (29 + r, 29 + r))
        a("s_add_u32 s%d, s%d, s15" % (29 + r, 29 + r))
a("s_and_b32 s15, s%d, 3" % sH)
a("s_lshl_b32 s15, s15, 2")
a("s_add_u32 s15, s15, s%d" % sWv)
a("s_mul_i32 s15, s15, %d" % P["ROT"])
a("s_mul_hi_u32 s%d, s15, 0x%x" % (sT2, (1 << 32) // 9 + 1))
a("s_mul_i32 s%d, s%d, 9" % (sT2, sT2))
a("s_sub_u32 s15, s15, s%d" % sT2)
a("s_lshl_b32 s15, s15, 12")
for g in range(9):
    a("s_mov_b32 s%d, s15" % (GO + g))
    a("s_add_u32 s15, s15, 4096")
    a("s_cmp_eq_u32 s15, %d" % (9 * 4096))
    a("s_cselect_b32 s15, 0, s15")
a("s_mov_b32 s%d, %d" % (GO + 9, 9 * 4096))
for i in range(37):
    Q.append(("KA", sCur, i, "home", True))
pump(4)
a("v_and_b32 v44, 1, v47")
a("v_lshlrev_b32 v44, 4, v44")
a("v_mov_b32 v%d, 0xffff" % (MK + 3))
a("v_lshlrev_b32 v%d, v44, v%d" % (MK + 3, MK + 3))
a("v_bfe_u32 v44, v47, 1, 2")
for r in range(4):
    a("v_cmp_eq_u32 vcc, %d, v44" % r)
    a("v_cndmask_b32 v%d, 0, v%d, vcc" % (MK + r, MK + 3))
a("v_lshlrev_b32 v%d, 5, v46" % vPt)
a("v_and_b32 v44, 1, v45")
a("v_lshl_add_u32 v%d, v44, 4, v%d" % (vPt, vPt))
a("v_lshrrev_b32 v44, 1, v45")
a("v_lshl_add_u32 v%d, v44, 3, v%d" % (vPt, vPt))
a("s_lshl_b32 s69, s%d, 9" % sWv)
a("v_add_u32 v%d, s69, v%d" % (vPt, vPt))
a("v_mov_b32 v44, 0xff800000")
a("v_cndmask_b32 v%d, v44, 0, %s" % (vBias, S(sQM, 2)))
a("s_cmp_lg_u32 s%d, 0" % sHas)
a("s_cbranch_scc1 L_HAS")
a("v_mov_b32 v%d, v44" % vBias)
for r in range(4):
    a("v_mov_b32 v%d, 0" % (home("KA", 36) + r))
    a("v_mov_b32 v%d, 0" % (36 + r))
    a("v_accvgpr_write_b32 %s, 0" % V(home("KB", 36) + r))
    a("v_accvgpr_write_b32 %s, 0" % V(home("VB", 36) + r))
a("ds_write_b128 v%d, v[36:39] offset:%d" % (vL, 36 * 1024))
a("s_waitcnt lgkmcnt(0)")
a.label("L_HAS")
pump(8)
wait_tag("clr")
a("s_cmp_lg_u32 s%d, 0" % sWv)
a("s_cbranch_scc1 L_NOFLAG")
a("s_lshl_b32 s%d, s%d, 3" % (sT2, sH))
a("s_add_u32 s%d, s%d, s%d" % (sT2, sT2, sS))
a("v_mov_b32 v40, s%d" % sXc)
a("v_mov_b32 v41, 0")
a("s_mov_b64 exec, 1")
a("buffer_store_byte v40, v41, %s, s%d offen sc1" % (S(DBG, 4), sT2))
a.vmopt.add(len(a.vmq) - 1)
a("s_mov_b64 exec, -1")
a.label("L_NOFLAG")
pump(100)
for i in range(NVJ):
    Q.append(("VA", sCur, i, "home", True))
a("v_and_b32 v41, 31, v47")
a("v_lshlrev_b32 v41, 3, v41")
a("buffer_load_ubyte v40, v41, %s, 0 offen offset:7 sc1" % S(DBG, 4), tag="fl")
pump(WIN[0] + 1)
wait_tag("fl")
a("v_cmp_eq_u32 vcc, 0, v40")
a("s_cbranch_vccz L_FLD")
a.label("L_FLW")
a("buffer_load_ubyte v40, v41, %s, 0 offen offset:7 sc1" % S(DBG, 4))
a.vmopt.add(len(a.vmq) - 1)
a("s_waitcnt vmcnt(0)")
a("v_cmp_eq_u32 vcc, 0, v40")
a("s_cbranch_vccz L_FLD")
budget("L_FLD", "L_FLW", 2)
a.label("L_FLD")
if P["LOCAL"]:
    a("v_cmp_eq_u32 vcc, s%d, v40" % sXc)
    a("s_andn2_b32 s15, s%d, 3" % sH)
    a("s_nop 3")
    a("s_lshr_b32 s15, vcc_lo, s15")
    a("s_and_b32 s15, s15, 15")
    a("s_cmp_eq_u32 s15, 15")
    a("s_cselect_b32 s%d, 1, 0" % sLoc)
pump(100)
stamp()

QR2 = 52
sPf, sPe, sFl = 26, 27, 28
assert P["ROT"] == 0 and PF % 2 == 0


def qbuild(R):
    for t in range(4):
        for r in range(4):
            a("v_cndmask_b32 %s, 0, %s, %s" % (V(QF + 4 * t + r), V(R + r), S(sQM + 2 * t, 2)))


def qwait_pf(dn, srdn=KA, win=None, wot=False):
    la, lb = a.newlabel("QA"), a.newlabel("QB")
    n0 = len(a.vmq)
    a.label(la)
    a("s_cmp_ge_u32 s%d, s%d" % (sPf, sPe))
    a("s_cbranch_scc1 %s" % lb)
    a("buffer_load_dwordx4 %s, v%d, %s, s15 offen sc1" % (V(QR2, 4), vQa, S(WS, 4)))
    for t in range(2):
        a("s_waitcnt vmcnt(%d)" % ((win or P["WPFW"]) * 3 // 2))
        a("buffer_load_dwordx4 %s, v%d, %s, s%d offen offset:%d" % (V(QR, 4), vK, S(srdn, 4), sPf, t * 1024))
    a("s_add_u32 s%d, s%d, 2048" % (sPf, sPf))
    exact_check(range(QR2, QR2 + 4), vT)
    a("s_cbranch_vccnz %s" % la)
    a("s_branch %s" % dn)
    a.label(lb)
    if wot:
        for d_ in (WT, OUT)[:P["WOT"]]:
            for r in range(3):
                a("buffer_load_dwordx4 %s, v%d, %s, s%d offen sc1" % (V(QR, 4), vL, S(d_, 4), 29 + r))
        lb = a.newlabel("QC")
        a.label(lb)
    a("buffer_load_dwordx4 %s, v%d, %s, s15 offen sc1" % (V(QR2, 4), vQa, S(WS, 4)))
    a("s_waitcnt vmcnt(0)")
    exact_check(range(QR2, QR2 + 4), vT)
    a("s_cbranch_vccz %s" % dn)
    budget(dn, lb)
    for i in range(n0, len(a.vmq)):
        a.vmopt.add(i)


a.drain()
a.label("L_J")
WIN[0] = W
reset_vm()
lgq.clear()
for i in range(37):
    live[("KA", i)] = live[("KB", i)] = live[("VB", i)] = True
    live[("VA", i)] = i < NVJ
    live[("KA", i)] = i >= 4 * NG
for i in range(NVJ, 37):
    Q.append(("VA", sCur, i, "home", True))
nva = 37 - NVJ
nva -= P["B4R"]
pump(max(0, nva - W))
a("s_cmp_eq_u32 s%d, 0" % sB)
a("s_cselect_b32 s15, 0, %d" % PH)
a("s_sub_u32 s15, s%d, s15" % sPq)
a("buffer_load_dwordx4 %s, v%d, %s, s15 offen sc1" % (V(QR2, 4), vQa, S(WS, 4)), tag="q4")
pump(min(W, nva))
for i in range(37):
    Q.append(("KB", sCur, i, "home", True))
a("s_cmp_eq_u32 s%d, 0" % sB)
a("s_cbranch_scc1 L_B0")
sav = (list(a.vmq), set(a.vmopt), list(fab), done_idx[0], dict(curh), deque(Q), dict(live))
stamp()
wait_tag("q4")
exact_check(range(QR2, QR2 + 4), vT)
a("s_cbranch_vccz L_Q4D")
a("s_mov_b32 s%d, s%d" % (sPf, sCur))
a("s_add_u32 s%d, s%d, %d" % (sPe, sCur, P["PF4"] * 1024))
qwait_pf("L_Q4D", KB, W)
a.label("L_Q4D")
qbuild(QR2)
stamp()
qload(0)
NB4 = [0]


def _h4(i):
    n = ({0: 2, 2: 1, 5: 1, 8: 1} if P["XB"] else {0: 2, 3: 1, 7: 1}).get(i, 0)
    pump(n, paced=False)
    NB4[0] += n


qk_burst("KB", list(range(10)), hook=_h4, release=True)
softmax()


def _p4(i):
    free("VB", i)
    if i in ((0, 3, 6, 9) if P["XB"] else (0, 4, 8)):
        pump(1, paced=False)
        NB4[0] += 1


pv_seq([(g, home("VB", 4 * g)) for g in range(10)], True, post=_p4)
publish(1, -1)
stamp()
a("s_cmp_eq_u32 s%d, 4" % sB)
a("s_cbranch_scc1 L_FIN")
a("s_branch L_B1")
a.label("L_B0")
end_state = (list(a.vmq), set(a.vmopt), list(fab), done_idx[0], dict(curh), deque(Q), dict(live))
a.vmq[:], a.vmopt, fab[:], done_idx[0] = sav[0], sav[1], sav[2], sav[3]
curh.update(sav[4]); Q.clear(); Q.extend(sav[5]); live.update(sav[6])
for g in range(10):
    free("KB", g); free("VB", g)
qload(0)
pump(NB4[0])
if NG:
    qcheck(0, True)
    wait_tag("old")
    qk_early()
a.drain()
a.label("L_B1")
a.vmq[:], a.vmopt, fab[:] = end_state[0], end_state[1], end_state[2]
done_idx[0] = sav[3]
Q.clear(); Q.extend(end_state[5]); live.update(end_state[6])
curh.update(K=None, V=None, m0=None)
lgq.clear()

STG1 = [home("VB", 24), home("VB", 28), home("VB", 32)]
for g in (6, 7, 8):
    for i in range(4 * g, 4 * g + 4):
        live[("VB", i)] = True
pump(1)
qcheck(0, True)
stamp()
wait_tag("old")


def va_ready(g):
    while any((not callable(it)) and it[0] == "VA" and it[2] // 4 == g for it in Q):
        pump(1)
    if 4 * g + 3 >= NVJ:
        wait_tag("VA%d" % g)


for g in range(3):
    va_ready(g)
    stage(g, STG1[g])
qk_burst("KA", list(range(NG, 10)), hook=lambda i: pump(1) if i in (0, 3, 6, 9) else None)
for g in range(NG):
    a("v_mov_b32 %s, %s" % (V(SS[g]), V(SX[g])))
softmax()
pump(1)


def _pre1(i):
    wait_lg("st%d" % i)


def _post1(i):
    if i + 3 < 10:
        va_ready(i + 3)
        stage(i + 3, STG1[i % 3])
    if i in ((2, 5, 8) if P["XB"] else (3, 7)):
        pump(1)


pv_seq([(g, STG1[g % 3]) for g in range(10)], True, pre=_pre1, post=_post1)
publish(0, 0)
stamp()
for g in (6, 7, 8):
    free("VB", g)

a("s_add_u32 s%d, s%d, 0x%x" % (sNxt, sCur, BATCH))
a("s_cmp_lt_u32 s%d, 3" % sB)
a("s_cselect_b32 s%d, s%d, 0" % (KA + 2, sNRK))
a("s_cselect_b32 s%d, s%d, 0" % (VA + 2, sNRV))
pump(100)
Q2POS = P["Q2POS"]
for i in range(37):
    if i == 37 - P["NEND"]:
        Q.append(lambda: WIN.__setitem__(0, P["WEND"]))
    Q.append(("VB", sCur, i, "home", True))
for i in range(4 * NG):
    Q.append(("KA", sNxt, i, "home", True))
SPR = P["SPR"]
assert not (SPR and NG)
for i in range(36 - SPR, 36):
    live[("KS", i)] = False
    Q.append(("KS", sNxt, i, "home", True))
a("s_add_u32 s%d, s%d, %d" % (sPf, sNxt, (36 - SPR - PF) * 1024))
a("s_add_u32 s%d, s%d, %d" % (sPe, sNxt, (36 - SPR) * 1024))
a("s_mov_b32 s%d, 0" % sFl)
pump(Q2POS - W)
a("s_add_u32 s15, s%d, %d" % (sPq, PH))
a("buffer_load_dwordx4 %s, v%d, %s, s15 offen sc1" % (V(QR2, 4), vQa, S(WS, 4)), tag="q")
pump(W)
stamp()
wait_tag("q")
exact_check(range(QR2, QR2 + 4), vT)
a("s_cbranch_vccz L_Q2D")
sav = (list(a.vmq), set(a.vmopt), list(fab), done_idx[0], dict(curh), deque(Q), dict(live))
pump(100)
a("s_mov_b32 s%d, 1" % sFl)
qwait_pf("L_Q2D")
a.vmq[:], a.vmopt, fab[:], done_idx[0] = sav[0], sav[1], sav[2], sav[3]
Q.clear(); Q.extend(sav[5]); live.update(sav[6])
curh.update(K=None, V=None, m0=None)
a.label("L_Q2D")
qbuild(QR2)
stamp()
wait_tag("KB9")


if NG:
    qload(4)


def cpump(n, paced=False):
    if not Q:
        return
    lab = a.newlabel("H2")
    a("s_cmp_eq_u32 s%d, 1" % sFl)
    rawbr("s_cbranch_scc1 %s" % lab)
    st0, dn0 = a.st, done_idx[0]
    pump(n, paced=paced)
    a.st, done_idx[0] = st0, dn0
    a.label(lab)


NREST = 37 - Q2POS
qk_burst("KB", list(range(10)), hook=lambda i: cpump(-(-NREST // 3)) if i in (1, 4, 7) else None)
softmax()
assert not any((not callable(it)) and it[0] == "VB" for it in Q)
pv_seq([(x, home("VB", 4 * x)) for x in range(10)], True, pre=lambda i: wait_tag("VB%d" % i),
       post=lambda i: cpump(1) if i in (0, 3, 6) else None)
publish(1, 1)
stamp()
cpump(100, paced=True)
curh.update(K=None, V=None, m0=None)
a("s_cmp_lt_u32 s%d, 3" % sB)
a("s_cselect_b32 s%d, s%d, 0" % (KB + 2, sNRK))
waitvm(0)
for r in range(4):
    a("v_mov_b32 %s, -1" % V(QR2 + r))
if NG:
    a("s_cmp_eq_u32 s%d, 3" % sB)
    a("s_cbranch_scc1 L_NOG2")
    qcheck(4, True)
    qk_early()
    a.drain()
    a.label("L_NOG2")
    a("s_mov_b32 s15, s%d" % (KA + 2))
    a("s_mov_b32 s%d, s%d" % (KA + 2, sNRK))
    WIN[0] = P["WG3"]
    for i in range(4 * NG):
        Q.append(("KA", sCur, i, "home", True))
    pump(100)
    a("s_mov_b32 s%d, s15" % (KA + 2))
a("s_add_u32 s15, s%d, %d" % (sPq, 2 * PH))
qwait_pf("L_Q3D", wot=P["WOT"])
a.label("L_Q3D")

WIN[0] = W
qbuild(QR2)
curh.update(K=None, V=None, m0=None)
stamp()
STG3 = [home("KA", 24), home("KA", 28), home("KA", 32)]
F0 = 36 - SPR - PF
FQ = deque([("KA", sNxt, i, "home", True) for i in list(range(4 * NG, min(F0, 4 * NG + 4))) + [36] + list(range(4 * NG + 4, F0))] +
           [("VA", sNxt, i, "home", True) for i in range(NVJ)])
LQ = deque([("KA", sNxt, i, "home", False) for i in range(F0, 36 - SPR)])
order3 = [NG, 6, 9, 7, 8] + list(range(NG + 1, 6)) + list(range(NG))
assert F0 >= 4 * NG


def take(q, n):
    for it in list(q):
        if n == 0:
            break
        if not live.get((it[0], it[2]), False):
            q.remove(it)
            load_tile(*it, False)
            n -= 1


def _h3(i):
    g = order3[i]
    if g in (6, 7, 8):
        for x in range(4 * g, 4 * g + 4):
            live[("KA", x)] = True
        stage(g - 6, STG3[g - 6])
    if i in (4, 5, 6):
        wait_lg("st%d" % (i - 4))
        free("VA", i - 4)
    take(FQ, {0: 4, 2: 1, 4: W - 5, 7: 1, 9: 1}.get(i, 0))
    if P["L2B"] == 1:
        take(LQ, 2)


qk_burst("KA", order3, hook=_h3, release=True, pre=lambda g: wait_tag("KA%d" % g) if g < NG else None)
softmax()


def _post3(i):
    if i >= 3:
        free("VA", i)
    if i + 3 < 10:
        stage(i + 3, STG3[i % 3])
    if i in (0, 3, 6, 9):
        take(FQ, 1)
    if P["L2B"] and i < 8:
        take(LQ, 1)


pv_seq([(g, STG3[g % 3]) for g in range(10)], True, pre=_pre1, post=_post3)
publish(0, 2)
if P["PBAR"]:
    a("s_barrier")
stamp()
for g in (6, 7, 8):
    free("KA", g)
for i in range(36 - SPR, 36):
    assert landed("KS8")
    for r in (0, 2):
        a("v_mov_b64 %s, %s" % (V(home("KA", i) + r, 2), V(home("KS", i) + r, 2)))
assert not Q
for n_, it in enumerate(FQ):
    if n_ == P["CUD"]:
        Q.append(lambda: WIN.__setitem__(0, P["WCU"]))
    Q.append(it)
    if n_ >= P["CUD"] and LQ:
        for _ in range(P["L2R"]):
            if LQ:
                Q.append(LQ.popleft())
        if not LQ:
            assert len(FQ) - n_ > W
            Q.append(lambda: WIN.__setitem__(0, W))
assert not LQ
pump(100)
a("s_add_u32 s%d, s%d, 1" % (sB, sB))
a("s_mov_b32 s%d, s%d" % (sCur, sNxt))
a("s_add_u32 s%d, s%d, %d" % (sPq, sPq, 4 * PH))
a("s_add_u32 s%d, s%d, %d" % (sPa, sPa, 4 * PH))
stamp()
a("s_branch L_J")

a.label("L_COMM")
lgq.clear()
vL8, vML, vM01, vHa, vHc, vOw, vOr, vX1, vX3, vG16, vL4, vC, vWL, vL16, vY1, vY2 = 1, 2, 3, 4, 5, 6, 7, 8, 9, 10, 11, 12, 16, 17, 18, 19
SET, TMP, AF, AC, STG, XF, G, XC = 20, 36, 52, 68, 84, 100, 108, 188
sP, sHA, sHB, sN, sHBm, sHC, sX, sTy, sMode, sGty, sWF, sHAo, sHBo, sHCo = 6, 7, 8, 9, 10, 11, 12, 13, 14, 15, 42, 43, 68, 69
SEL_LO, SEL_HI = 78, 77


def WQF(mat, k, ct):
    n = mat * 40 + 2 * k + ct
    return 256 + 4 * n if n < 64 else 192 + 4 * (n - 64)


def in_lds(i):
    return (i & 1) and i < 38


def greg(i):
    t, k = i // 4, i % 4
    return XC if i == 39 else G + 40 * (k // 2) + 4 * t


a("s_mov_b32 s%d, 0x05040100" % SEL_LO)
a("s_mov_b32 s%d, 0x07060302" % SEL_HI)
srd(OUT, 36, "5120")
a("v_lshlrev_b32 v%d, 2, v47" % vL4)
a("v_lshlrev_b32 v%d, 4, v47" % vL16)
a("v_lshrrev_b32 v44, 2, v47")
a("v_lshlrev_b32 v44, 13, v44")
a("v_and_b32 v43, 3, v47")
a("v_lshl_add_u32 v44, v43, 4, v44")
a("s_lshl_b32 s76, s%d, 8" % sH)
a("s_lshl_b32 s%d, s%d, 6" % (sT, sWv))
a("s_add_u32 s76, s76, s%d" % sT)
a("s_mul_i32 s71, s%d, 38912" % sWv)
a("s_add_u32 s71, s71, %d" % L_WO)
a("v_lshlrev_b32 v48, 9, v45")
a("v_lshl_add_u32 v48, v46, 2, v48")
a("v_add_u32 v48, s71, v48")
RAW = [52, 92, 132]
WT2 = 44


def wq_issue(n):
    mat, bt = n // 4, n % 4
    for r in range(10):
        a("s_add_u32 s%d, s76, %d" % (sT, (160 * bt + 16 * r) * 8192))
        a("s_add_u32 m0, s71, %d" % ((n % 3) * 10240 + r * 1024))
        a("buffer_load_dwordx4 v44, %s, s%d offen %slds" % (S(WT2 + 4 * mat, 4), sT, "nt " if P["WQNT"] else ""), tag="wq%d" % n)


def wq_read(n):
    for kk in range(5):
        a("v_add_u32 v49, %d, v48" % ((n % 3) * 10240 + kk * 2048))
        for e in range(0, 8, 2):
            a("ds_read2_b32 %s, v49 offset0:%d offset1:%d" % (V(RAW[0] + 8 * kk + e, 2), 16 * e, 16 * e + 16))
        if kk == 2:
            a("s_waitcnt lgkmcnt(6)")


def wq_perm(n):
    mat, bt = n // 4, n % 4
    tq = 92
    c = 0
    for kk in range(5):
        a("s_waitcnt lgkmcnt(%d)" % min(15, 4 * (4 - kk)))
        for ct in range(2):
            for e in range(0, 8, 2):
                r0 = RAW[0] + 8 * kk + e
                dst = WQF(mat, 5 * bt + kk, ct) + e // 2
                sel = SEL_HI if ct else SEL_LO
                if dst < 256:
                    a("v_perm_b32 v%d, v%d, v%d, s%d" % (dst, r0 + 1, r0, sel))
                else:
                    a("v_perm_b32 v%d, v%d, v%d, s%d" % (tq + c % 4, r0 + 1, r0, sel))
                    a("v_accvgpr_write_b32 %s, v%d" % (V(dst), tq + c % 4))
                    c += 1


def wq_step(n):
    a.wait_tag("wq%d" % n)
    wq_read(n)
    wq_perm(n)
    if n + 3 < 8:
        wq_issue(n + 3)


def comm_setup():
    a("v_lshlrev_b32 v%d, 3, v47" % vL8)
    a("v_and_b32 v43, 7, v47")
    a("v_cmp_eq_u32 vcc, 7, v43")
    a("v_min_u32 v43, 6, v43")
    a("v_lshlrev_b32 v%d, 7, v43" % vML)
    a("v_add_u32 v%d, 3584, v%d" % (vML, vML))
    a("v_cndmask_b32 v%d, 1.0, 0, vcc" % vM01)
    a("v_mul_u32_u24 v43, 1280, v45")
    a("v_lshl_add_u32 v%d, v46, 4, v43" % vHa)
    a("v_lshl_add_u32 v%d, v46, 3, v43" % vHc)
    a("v_add_u32 v%d, 512, v%d" % (vHc, vHc))
    a("s_mul_i32 s%d, s%d, 640" % (sT2, sWv))
    a("s_add_u32 s%d, s%d, %d" % (sT2, sT2, L_YB))
    a("v_add_u32 v%d, s%d, v%d" % (vOw, sT2, vL4))
    a("v_add_u32 v%d, s%d, v%d" % (vY1, sT2, vL16))
    a("v_add_u32 v%d, s%d, v%d" % (vY2, sT2, vL8))
    a("v_lshlrev_b32 v%d, 4, v45" % vG16)
    a("v_add_u32 v%d, s%d, v%d" % (vOr, sT2, vG16))
    a("s_mul_i32 s%d, s%d, 320" % (sT2, sWv))
    a("v_lshlrev_b32 v%d, 4, v46" % vX1)
    a("v_and_b32 v43, 1, v45")
    a("v_lshl_add_u32 v%d, v43, 2, v%d" % (vX1, vX1))
    a("v_lshrrev_b32 v43, 1, v45")
    a("v_lshl_add_u32 v%d, v43, 1, v%d" % (vX1, vX1))
    a("v_add_u32 v%d, s%d, v%d" % (vX1, sT2, vX1))
    a("v_lshlrev_b32 v%d, 2, v46" % vX3)
    a("v_lshl_add_u32 v%d, v43, 1, v%d" % (vX3, vX3))
    a("s_add_u32 s%d, s%d, 256" % (sT2, sT2))
    a("v_add_u32 v%d, s%d, v%d" % (vX3, sT2, vX3))
    a("v_add_u32 v%d, s71, v%d" % (vWL, vL16))
    a("s_mul_i32 s%d, s73, 163840" % sWF)
    a("s_mul_i32 s%d, s72, 320" % sT2)
    a("s_add_u32 s%d, s%d, s%d" % (sWF, sWF, sT2))
    a("s_movk_i32 s74, 560")
    a("s_movk_i32 s70, 640")
    for r in range(4):
        a("v_mov_b32 v%d, 0" % (vC + r))


stamp()
a("s_andn2_b32 s73, s%d, 3" % sH)
a("s_add_u32 s73, s73, s%d" % sWv)
a("s_and_b32 s72, s%d, 3" % sH)
a("s_mul_i32 s%d, s73, 4608" % sHAo)
a("s_mul_i32 s%d, s%d, 5120" % (sHBo, sWv))
a("s_add_u32 s%d, s%d, %d" % (sHBo, sHBo, HB0))
a("s_lshl_b32 s%d, s76, 1" % sHCo)
a("s_add_u32 s%d, s%d, %d" % (sHCo, sHCo, HC0))
a("s_mul_i32 s75, s72, 5120")
a("s_lshr_b32 s%d, s%d, 2" % (sT2, sH))
a("s_mul_i32 s%d, s%d, 640" % (sT2, sT2))
a("s_add_u32 s75, s75, s%d" % sT2)
a("s_add_u32 s75, s75, %d" % HB0)
a("v_add_u32 v40, s75, v%d" % vL16)
a("v_subrev_u32 v41, 640, v%d" % vL16)
a("v_add_u32 v41, s%d, v41" % sHCo)
a("v_cmp_gt_u32 vcc, 40, v47")
a("v_cndmask_b32 v40, v41, v40, vcc")
for r in range(4):
    a("v_mov_b32 v%d, -1" % (36 + r))
a("s_mov_b32 exec_hi, 0xfff")
for p in range(16):
    a("s_mov_b32 s%d, %d" % (sT, p * PH))
    a("buffer_store_dwordx4 v[36:39], v40, %s, s%d offen sc1" % (S(WS, 4), sT))
a("s_mov_b64 exec, -1")
srd(WT, 16, "5120")
a("s_mul_i32 s%d, s%d, 1280" % (sT, sWv))
for r in range(5):
    a("buffer_load_dword v%d, v%d, %s, s%d offen offset:%d" % (20 + r, vL4, S(WT, 4), sT, 256 * r))


def _between():
    comm_setup()
    a("s_waitcnt vmcnt(%d)" % (0 if P["CDEL"] else 30))
    a("s_mul_i32 s%d, s%d, 1280" % (sT2, sWv))
    a("v_add_u32 v43, s%d, v%d" % (sT2, vL4))
    a("v_mov_b32 v42, 0x3f803f80")
    for r in range(5):
        a("ds_write_b32 v43, v%d offset:%d" % (20 + r, L_X + 256 * r))
        a("ds_write_b32 v%d, v42 offset:%d" % (vL4, L_X + 4 * 1280 + 256 * r))
    a("s_waitcnt lgkmcnt(0)")
    a("s_barrier")
    a("s_cmp_lg_u32 s%d, 0" % sWv)
    a("s_cbranch_scc1 L_CNF")
    a("s_lshl_b32 s%d, s%d, 3" % (sT2, sH))
    a("s_add_u32 s%d, s%d, 7" % (sT2, sT2))
    a("v_mov_b32 v42, s%d" % sXc)
    a("s_mov_b64 exec, 1")
    a("buffer_store_byte v42, v%d, %s, s%d offen sc1" % (vL4, S(DBG, 4), sT2))
    a.vmopt.add(len(a.vmq) - 1)
    a("s_mov_b64 exec, -1")
    a.label("L_CNF")


WOS = [52, 56]
wa, wb = TMP + 4, TMP + 5


def wo_addr():
    a("v_mad_u32_u24 v%d, v%d, s74, v%d" % (wa, vG16, vHa))
    a("v_and_b32 v%d, 63, v%d" % (wb, vL4))
    a("v_add_u32 v%d, 256, v%d" % (wb, wb))
    a("v_mad_u32_u24 v%d, v%d, s70, v%d" % (wb, vG16, wb))


def wo_issue(srdn, k, R, tag=None):
    for e in range(8):
        if e % 4 == 0:
            a("s_add_u32 s%d, s%d, %d" % (sT, sWF, (32 * k + e) * 1280))
        a("buffer_load_dwordx4 %s, v%d, %s, s%d offen offset:%d" % (V(R + 4 * e, 4), wa, S(srdn, 4), sT, (e % 4) * 1280), tag=tag)
        a("buffer_load_dword v%d, v%d, %s, s%d offen offset:%d" % (R + 32 + e, wb, S(srdn, 4), sT, (e % 4) * 1280), tag=tag)


def wo_perm(R, dst_of):
    for t in range(10):
        for e in range(0, 8, 2):
            if t < 8:
                r0, r1 = R + 4 * e + t // 2, R + 4 * e + 4 + t // 2
            else:
                r0, r1 = R + 32 + e, R + 33 + e
            a("v_perm_b32 v%d, v%d, v%d, s%d" % (dst_of(t) + e // 2, r1, r0, SEL_HI if t & 1 else SEL_LO))


def wo_to_lds(mat):
    FO = 52
    for n_, k in enumerate((1, 3)):
        a.wait_tag("wo%d_%d" % (mat, k))
        wo_perm(G + 40 * n_, lambda t: XF + 4 * mat if (t == 9 and k == 3) else FO + 4 * t)
        for t in range(10):
            i = 4 * t + k
            if in_lds(i):
                a("ds_write_b128 v%d, %s offset:%d" % (vWL, V(FO + 4 * t, 4), mat * 19456 + (i // 2) * 1024))
        a("s_waitcnt lgkmcnt(0)")


def call_wq(ty, slot, mode, blk):
    a("s_mov_b32 s%d, %d" % (sTy, ty))
    a("s_mov_b32 s%d, %d" % (sX, L_X + 1280 * slot))
    a("s_mov_b32 s%d, %d" % (sMode, mode))
    a("s_add_u32 s%d, s%d, %d" % (sHC, sHCo, blk * PH))
    a("s_call_b64 %s, R_WQ" % S(RA, 2))


a.vmq[:] = []
a.vmopt.clear()
srd(WT2, 22, "0x%x" % (640 * 8192))
srd(WT2 + 4, 32, "0x%x" % (640 * 8192))
srd(WOS[0], 24, "0x%x" % (4096 * 1280))
srd(WOS[1], 34, "0x%x" % (4096 * 1280))
if P["CDEL"]:
    _between()
for n in range(3):
    wq_issue(n)
if not P["CDEL"]:
    _between()
wo_addr()
for n in range(4):
    wq_step(n)
    if n == 0:
        wo_issue(WOS[0], 1, G, "wo0_1")
        wo_issue(WOS[0], 3, G + 40, "wo0_3")
stamp()
call_wq(1, 4, 1, 0)
call_wq(1, 0, 0, 0)
stamp()
for n in range(4, 8):
    wq_step(n)
stamp()
wo_to_lds(0)
wo_issue(WOS[1], 1, G, "wo1_1")
wo_issue(WOS[1], 3, G + 40, "wo1_3")
call_wq(0, 4, 1, 0)
for b in range(1, 4):
    call_wq(1, b, 0, 4 * b)
stamp()
wo_to_lds(1)
a("s_barrier")
stamp()

a("s_mov_b32 s%d, 0x80808080" % sT2)
a.label("L_AFW")
a("buffer_load_dword v42, v%d, %s, 0 offen sc1" % (vL4, S(DBG, 4)))
a("s_waitcnt vmcnt(0)")
a("v_and_b32 v43, s%d, v42" % sT2)
a("v_cmp_ne_u32 vcc, s%d, v43" % sT2)
a("s_cbranch_vccz L_AFD")
budget("L_AFD", "L_AFW", 2)
a.label("L_AFD")
if P["LOCAL"]:
    a("s_mul_i32 s%d, s%d, 0x01010101" % (sT2, sXc))
    a("v_cmp_eq_u32 vcc, s%d, v42" % sT2)
    a("s_lshl_b32 s%d, s%d, 1" % (sT, sH))
    a("s_nop 3")
    a("s_lshr_b64 s[16:17], vcc, s%d" % sT)
    a("s_and_b32 s16, s16, 3")
    a("s_cmp_eq_u32 s16, 3")
    a("s_cselect_b32 s%d, 1, 0" % sLoc)
a("s_mov_b32 s%d, 0" % sN)
a("s_mov_b32 s%d, 0" % sMode)
a("s_mov_b32 s%d, 2" % sGty)
TAB = 0xfedbca9786534210 if P["ORD"] else 0xfbedc7a983654210
a("s_mov_b32 s18, 0x%08x" % (TAB & 0xffffffff))
a("s_mov_b32 s19, 0x%08x" % (TAB >> 32))
a("s_mov_b32 s%d, 0x%x" % (WT + 2, 4096 * 1280))

ta, ts = TMP + 14, TMP + 15
DQ, XS, s2, s1, one = AC, AF, TMP, TMP + 1, TMP + 2


def wq_pre():
    a("v_add_u32 v%d, s%d, v%d" % (ta, sX, vG16))
    a("v_add_u32 v%d, s%d, v%d" % (ts, sX, vL4))
    a("v_mov_b32 v%d, 0" % s2)
    a("v_mov_b32 v%d, 0" % s1)
    a("v_mov_b32 v%d, 0x3f803f80" % one)


cM, cL, cW, cX, cA = TMP, TMP + 1, TMP + 2, TMP + 3, TMP + 4
tLW, tx1, tx3, xo = TMP + 8, TMP + 9, TMP + 10, TMP + 11
a.label("L_CH")
lgq.clear()
a("s_lshl_b32 s%d, s%d, 2" % (sT, sN))
a("s_lshr_b64 s[16:17], s[18:19], s%d" % sT)
a("s_and_b32 s%d, s16, 15" % sP)
a("s_and_b32 s%d, s%d, 1" % (sTy, sP))


def g_issue(ty):
    a("s_cmp_eq_u32 s%d, 0" % ty)
    a("s_cselect_b32 s%d, s%d, s%d" % (WT, WOS[0], WOS[1]))
    a("s_cselect_b32 s%d, s%d, s%d" % (WT + 1, WOS[0] + 1, WOS[1] + 1))
    wo_addr()
    wo_issue(WT, 2, G)
    wo_issue(WT, 0, G + 40)


a("s_cmp_eq_u32 s%d, s%d" % (sTy, sGty))
a("s_cbranch_scc1 L_GOK")
a("s_cmp_eq_u32 s%d, 3" % sGty)
a("s_cbranch_scc1 L_GIS")
g_issue(sTy)
a.label("L_GIS")
a("s_mov_b32 s%d, s%d" % (sGty, sTy))
a("s_cmp_eq_u32 s%d, 0" % sTy)
a("s_cselect_b64 vcc, -1, 0")
for r in range(4):
    a("v_cndmask_b32 v%d, v%d, v%d, vcc" % (XC + r, XF + 4 + r, XF + r))
a("s_waitcnt vmcnt(16)")
wo_perm(G, lambda t: AF + 4 * t)
a("s_waitcnt vmcnt(0)")
wo_perm(G + 40, lambda t: G + 4 * t)
for r in range(0, 40, 2):
    a("v_mov_b64 %s, %s" % (V(G + 40 + r, 2), V(AF + r, 2)))
a.label("L_GOK")
if DIAG == 2:
    stamp()
a("s_mul_i32 s%d, s%d, %d" % (sT, sP, PH))
a("s_add_u32 s%d, s%d, s%d" % (sHA, sT, sHAo))
a("s_add_u32 s%d, s%d, s%d" % (sHB, sT, sHBo))
a("s_add_u32 s%d, s%d, s75" % (sHBm, sT))
a("s_add_u32 s%d, s%d, s%d" % (sHC, sT, sHCo))
a("s_add_u32 s%d, s%d, %d" % (sHC, sHC, PH))
a("s_lshr_b32 s%d, s%d, 2" % (sX, sP))
a("s_mul_i32 s%d, s%d, 1280" % (sX, sX))
a("s_mul_i32 s%d, s%d, 19456" % (sT, sTy))
a("v_add_u32 v%d, s%d, v%d" % (tLW, sT, vWL))
a("v_add_u32 v%d, s%d, v%d" % (tx1, sX, vX1))
a("v_add_u32 v%d, s%d, v%d" % (tx3, sX, vX3))
ds("ds_read_u16 v%d, v%d" % (xo, tx1))
ds("ds_read_u16 v%d, v%d offset:8" % (xo + 1, tx1))
ds("ds_read_u16 v%d, v%d" % (xo + 2, tx3))
SLOT = [STG, STG + 4, STG + 8, STG + 12, SET, SET + 4, SET + 8, SET + 12]


def lfrag(n):
    ds("ds_read_b128 %s, v%d offset:%d" % (V(SLOT[n % 8], 4), tLW, n * 1024), "lf%d" % n)


for n in range(4):
    lfrag(n)
wait_lg()
for r in range(3):
    a("v_lshlrev_b32 v%d, 16, v%d" % (xo + r, xo + r))
if P["TCH"]:
    a("v_lshrrev_b32 v%d, 2, v%d" % (AF, vL4))
    a("v_and_b32 v%d, 32, v%d" % (AF + 1, AF))
    a("v_add_u32 v%d, v%d, v%d" % (AF, AF, AF + 1))
    a("v_mul_u32_u24 v%d, 1280, v%d" % (AF, AF))
    a("s_mov_b32 s21, 0")
a.label("HA_L")
a("buffer_load_dwordx2 %s, v%d, %s, s%d offen sc1" % (V(SET + 14, 2), vML, S(WS, 4), sHA))
for p in range(7):
    a("buffer_load_dwordx2 %s, v%d, %s, s%d offen offset:%d sc1" % (V(SET + 2 * p, 2), vL8, S(WS, 4), sHA, p * 512))
ml = SET + 14
a("s_waitcnt vmcnt(7)")
a("v_max_f32_dpp v%d, v%d, v%d %s %s" % (cM, ml, ml, QP[0], DPPM))
a("v_mul_f32 v%d, v%d, v%d" % (cL, ml + 1, vM01))
a("v_max_f32_dpp v%d, v%d, v%d %s %s" % (cM, cM, cM, QP[1], DPPM))
a("v_max_f32_dpp v%d, v%d, v%d %s %s" % (cM, cM, cM, QP[2], DPPM))
a("v_sub_f32 v%d, v%d, v%d" % (cW, ml, cM))
a("v_exp_f32 v%d, v%d" % (cW, cW))
a("v_mul_f32 v%d, v%d, v%d" % (cL, cL, cW))
a("s_waitcnt vmcnt(0)")
lsum = ["v_add_f32_dpp v%d, v%d, v%d %s %s" % (cL, cL, cL, q, DPPM) for q in QP[:3]]
for p in range(7):
    for c in range(2):
        d = cA + 2 * (p & 1) + c
        op = "v_mul_f32_dpp" if p < 2 else "v_fmac_f32_dpp"
        a("%s v%d, v%d, v%d row_newbcast:%d %s" % (op, d, cW, SET + 2 * p + c, p, DPPM))
    if p in (0, 2, 4):
        a(lsum[p // 2])
    if p == 5:
        a("v_rcp_f32 v%d, v%d" % (cL, cL))
pk(cA, cA, cA + 2)
a("v_mul_f32 v%d, v%d, v%d" % (cA, cA, cL))
a("v_mul_f32 v%d, v%d, v%d" % (cA + 1, cA + 1, cL))
a("v_cmp_u_f32 vcc, v%d, v%d" % (cA, cA + 1))
a("v_cvt_pk_bf16_f32 v%d, v%d, v%d" % (cA, cA, cA + 1))
rawbr("s_cbranch_vccz HA_P")
exact_check(range(SET, SET + 16), cX)
a("s_cbranch_vccz HA_P")
if P["TCH"]:
    budget("HA_P", None)
    a("s_add_u32 s21, s21, 1")
    a("s_and_b32 s%d, s21, %d" % (sT, P["TCH"] - 1))
    a("s_cmp_lg_u32 s%d, 1" % sT)
    a("s_cbranch_scc1 HA_L")
    for m_ in range(2):
        for o in (0, 128, 256, 316):
            a("buffer_load_dword v%d, v%d, %s, s%d offen offset:%d" % (AF + 1, AF, S(WOS[m_], 4), sWF, o))
    a("s_branch HA_L")
else:
    budget("HA_P", "HA_L")
a.label("HA_P")
stamp()
ds("ds_write_b32 v%d, v%d" % (vOw, cA))
for k in range(4):
    ds("ds_read_b128 %s, v%d offset:%d" % (V(AF + 4 * k, 4), vOr, 64 * k), "af%d" % k)
for n in range(4, 8):
    lfrag(n)
ASL = [0, 1, 2, 3, 0, 1, 2, 3, 0, 1]


def ywrite(t):
    a("s_mov_b64 exec, 0xffff")
    if t < 8:
        o = 64 * (t // 4) + t % 4
        ds("ds_write2_b32 v%d, v%d, v%d offset0:%d offset1:%d" % (vY1, AC + 4 * ASL[t], AC + 4 * ASL[t + 1], o, o + 1))
    else:
        ds("ds_write2_b32 v%d, v%d, v%d offset0:128 offset1:129" % (vY2, AC + 4 * ASL[t], AC + 4 * ASL[t + 1]))
    a("s_mov_b64 exec, -1")


for i in range(40):
    t, k = i // 4, i % 4
    D = AC + 4 * ASL[t]
    wait_lg("af%d" % k)
    if in_lds(i):
        n = i // 2
        wait_lg("lf%d" % n)
        src = SLOT[n % 8]
    else:
        src = greg(i)
    mfma(D, AF + 4 * k, src, "0" if k == 0 else V(D, 4))
    if in_lds(i) and i // 2 + 8 < 19:
        lfrag(i // 2 + 8)
    if i in (13, 21, 29, 37):
        ywrite((i - 13) // 4)
ywrite(8)
wait_lg()
fstamp()
a("s_barrier")
fstamp()
a("s_cmp_lg_u32 s%d, 0" % sWv)
rawbr("s_cbranch_scc1 HB_W")
YR = SET
a("s_mov_b32 exec_hi, 0xff")
for w_ in range(4):
    a("ds_read_b128 %s, v%d offset:%d" % (V(YR + 4 * w_, 4), vY1, 640 * w_))
a("s_waitcnt lgkmcnt(2)")
pk(YR, YR, YR + 4); pk(YR + 2, YR + 2, YR + 6)
a("s_waitcnt lgkmcnt(0)")
pk(YR + 8, YR + 8, YR + 12); pk(YR + 10, YR + 10, YR + 14)
pk(YR, YR, YR + 8); pk(YR + 2, YR + 2, YR + 10)
for r in range(4):
    a("v_min_u32 v%d, -2, v%d" % (YR + r, YR + r))
a("buffer_store_dwordx4 %s, v%d, %s, s%d offen sc1" % (V(YR, 4), vL16, S(WS, 4), sHBm))
a("s_mov_b64 exec, -1")
rawbr("s_branch HB_0")
a.label("HB_W")
if P["HBW"]:
    a("s_sleep %d" % P["HBW"])
a.label("HB_0")
fstamp()
a("s_and_b32 s%d, s%d, 3" % (sT, sP))
a("s_cmp_eq_u32 s%d, 3" % sT)
rawbr("s_cbranch_scc1 L_FINAL")
a.label("HB_L")
NS = P["HBS"]
T = AF
UB = G if NS > 1 else AF + 10


def hb_issue(k):
    for p in range(2):
        U = UB + 20 * k + 10 * p
        a("buffer_load_dwordx4 %s, v%d, %s, s%d offen offset:%d sc1" % (V(U, 4), vHa, S(WS, 4), sHB, p * 640))
        a("buffer_load_dwordx4 %s, v%d, %s, s%d offen offset:%d sc1" % (V(U + 4, 4), vHa, S(WS, 4), sHB, p * 640 + 256))
        a("buffer_load_dwordx2 %s, v%d, %s, s%d offen offset:%d sc1" % (V(U + 8, 2), vHc, S(WS, 4), sHB, p * 640))


if NS > 1:
    a("s_mov_b32 s%d, 2" % sGty)
if P["HBD"]:
    a("s_sleep %d" % P["HBD"])
for k in range(NS):
    if k and P["HBSL"]:
        a("s_sleep %d" % P["HBSL"])
    hb_issue(k)
a.label("HB_R")
for k in range(NS):
    U0 = UB + 20 * k
    a("s_waitcnt vmcnt(%d)" % (6 * (NS - 1)))
    for r in range(0, 10, 2):
        pk(T + r, U0 + r, U0 + 10 + r)
    for r in (0, 2, 4, 6, 8):
        a("v_permlane32_swap_b32 v%d, v%d" % (T + r, T + r + 1))
    for r in (8, 0, 2, 4, 6):
        a("v_add_f32 v%d, v%d, v%d" % (T + r, T + r, T + r + 1))
        if r == 8:
            a("v_mov_b32 v%d, v%d" % (T + 9, T + 8))
    a("v_permlane16_swap_b32 v%d, v%d" % (T + 8, T + 9))
    a("v_permlane16_swap_b32 v%d, v%d" % (T, T + 2))
    a("v_permlane16_swap_b32 v%d, v%d" % (T + 4, T + 6))
    a("v_add_f32 v%d, v%d, v%d" % (T + 8, T + 8, T + 9))
    a("v_add_f32 v%d, v%d, v%d" % (T, T, T + 2))
    a("v_add_f32 v%d, v%d, v%d" % (T + 4, T + 4, T + 6))
    a("v_add_f32 v%d, v%d, v%d" % (T + 9, T + 8, T))
    a("v_cmp_u_f32 vcc, v%d, v%d" % (T + 9, T + 4))
    rawbr("s_cbranch_vccz HB_P")
    exact_check(range(U0, U0 + 20), cX)
    a("s_cbranch_vccz HB_P")
    budget("HB_P", None)
    hb_issue(k)
a("s_branch HB_R")
a.label("HB_P")
if DIAG != 2:
    stamp()
a("v_cvt_pk_bf16_f32 v%d, v%d, v%d" % (T + 8, T + 8, T + 8))
a("v_cvt_pk_bf16_f32 v%d, v%d, v%d" % (T, T, T + 4))
a("v_lshlrev_b32 v%d, 16, v%d" % (T + 8, T + 8))
a("v_lshlrev_b32 v%d, 16, v%d" % (T + 1, T))
a("v_and_b32 v%d, 0xffff0000, v%d" % (T + 2, T))
a("v_add_f32 v%d, v%d, v%d" % (T + 8, T + 8, xo + 2))
a("v_add_f32 v%d, v%d, v%d" % (T + 1, T + 1, xo))
a("v_add_f32 v%d, v%d, v%d" % (T + 2, T + 2, xo + 1))
a("v_cvt_pk_bf16_f32 v%d, v%d, v%d" % (cA + 1, T + 8, T + 8))
a("v_cvt_pk_bf16_f32 v%d, v%d, v%d" % (cA, T + 1, T + 2))
a("s_cmp_eq_u32 s%d, 16" % sN)
rawbr("s_cbranch_scc1 L_OUT")
a("ds_write_b16 v%d, v%d" % (tx3, cA + 1))
a("ds_write_b16 v%d, v%d" % (tx1, cA))
a("ds_write_b16_d16_hi v%d, v%d offset:8" % (tx1, cA))
wq_pre()
a("s_waitcnt lgkmcnt(0)")
fstamp()
a("s_barrier")
fstamp()
if P["EGB"]:
    a("s_add_u32 s%d, s%d, 1" % (sT, sN))
    a("s_lshl_b32 s%d, s%d, 2" % (sT, sT))
    a("s_lshr_b64 s[16:17], s[18:19], s%d" % sT)
    a("s_and_b32 s20, s16, 1")
    a("s_mov_b32 s%d, 2" % sMode)
    a("s_mov_b32 s%d, 3" % sGty)
a("s_call_b64 %s, R_WQ2" % S(RA, 2))
a("s_mov_b32 s%d, 0" % sMode)
stamp()
a("s_add_u32 s%d, s%d, 1" % (sN, sN))
a("s_branch L_CH")
a.label("L_FINAL")
a("s_barrier")
stamp()
a("s_add_u32 s%d, s%d, 1" % (sN, sN))
a("s_cmp_lt_u32 s%d, 16" % sN)
a("s_cbranch_scc1 L_CH")
a("s_cmp_gt_u32 s%d, 3" % sH)
a("s_cbranch_scc1 L_FIN")
a("s_cmp_eq_u32 s%d, 3" % sH)
a("s_cbranch_scc1 HB_L")
a("s_lshl_b32 s%d, s%d, 2" % (sT, sH))
a("s_add_u32 s%d, s%d, 3" % (sT, sT))
a("s_mul_i32 s%d, s%d, %d" % (sT, sT, PH))
a("s_add_u32 s%d, s%d, s%d" % (sHB, sT, sHBo))
a("s_mul_i32 s%d, s%d, 1280" % (sX, sH))
a("v_add_u32 v%d, s%d, v%d" % (tx1, sX, vX1))
a("v_add_u32 v%d, s%d, v%d" % (tx3, sX, vX3))
a("ds_read_u16 v%d, v%d" % (xo, tx1))
a("ds_read_u16 v%d, v%d offset:8" % (xo + 1, tx1))
a("ds_read_u16 v%d, v%d" % (xo + 2, tx3))
a("s_waitcnt lgkmcnt(0)")
for r in range(3):
    a("v_lshlrev_b32 v%d, 16, v%d" % (xo + r, xo + r))
a("s_branch HB_L")
a.label("L_OUT")
a("buffer_store_short v%d, v%d, %s, s%d offen" % (cA + 1, vX3, S(OUT, 4), sX))
a("buffer_store_short v%d, v%d, %s, s%d offen" % (cA, vX1, S(OUT, 4), sX))
a("buffer_store_short_d16_hi v%d, v%d, %s, s%d offen offset:8" % (cA, vX1, S(OUT, 4), sX))
a("s_branch L_FIN")

a.label("R_WQ")
lgq.clear()
wq_pre()
a.label("R_WQ2")
NPRE = 7
for k in range(3):
    ds("ds_read_b128 %s, v%d offset:%d" % (V(SLOT[k % 8], 4), ta, 64 * k), "xf%d" % k)
a("s_cmp_eq_u32 s%d, 0" % sTy)
rawbr("s_cbranch_scc1 WQ_B")
lg_save = list(lgq)


def stats_ops():
    ops = []
    for r in range(5):
        ops.append("v_dot2c_f32_bf16 v%d, v%d, v%d" % (s2, XS + r, XS + r))
        ops.append("v_dot2c_f32_bf16 v%d, v%d, v%d" % (s1, XS + r, one))
    ops += [
        "v_permlane32_swap_b32 v%d, v%d" % (s2, s1),
        "v_add_f32 v%d, v%d, v%d" % (s2, s2, s1),
        "v_mov_b32 v%d, v%d" % (s1, s2),
        "v_permlane16_swap_b32 v%d, v%d" % (s2, s1),
        "v_add_f32 v%d, v%d, v%d" % (s2, s2, s1),
    ]
    for q in QP:
        ops.append("v_add_f32_dpp v%d, v%d, v%d %s %s" % (s2, s2, s2, q, DPPM))
    ops += [
        "v_mul_f32 v%d, 0x%08x, v%d" % (s2, f32(1.0 / 640), s2),
        "v_mov_b32 v%d, v%d" % (s1, s2),
        "v_permlane32_swap_b32 v%d, v%d" % (s2, s1),
        "v_fma_f32 v%d, -v%d, v%d, v%d" % (s2, s1, s1, s2),
        "v_max_f32 v%d, 0, v%d" % (s2, s2),
        "v_cvt_pk_bf16_f32 v%d, v%d, v%d" % (s2, s1, s2),
        "v_lshlrev_b32 v%d, 16, v%d" % (s1, s2),
        "v_and_b32 v%d, 0xffff0000, v%d" % (s2, s2),
        "v_add_f32 v%d, 0x%08x, v%d" % (s2, f32(1e-5), s2),
        "v_cvt_pk_bf16_f32 v%d, v%d, v%d" % (s2, s2, s2),
        "v_and_b32 v%d, 0xffff0000, v%d" % (s2, s2),
        "v_sqrt_f32 v%d, v%d" % (s2, s2),
        "v_cvt_pk_bf16_f32 v%d, v%d, v%d" % (s2, s2, s2),
        "v_and_b32 v%d, 0xffff0000, v%d" % (s2, s2),
        "v_rcp_f32 v%d, v%d" % (s2, s2),
    ]
    return ops


for mat in (0, 1):
    if mat == 1:
        a.label("WQ_B")
        lgq[:] = lg_save
    for k in range(3, NPRE):
        ds("ds_read_b128 %s, v%d offset:%d" % (V(SLOT[k % 8], 4), ta, 64 * k), "xf%d" % k)
    ds("ds_read2st64_b32 %s, v%d offset0:0 offset1:1" % (V(XS, 2), ts))
    ds("ds_read2st64_b32 %s, v%d offset0:2 offset1:3" % (V(XS + 2, 2), ts))
    ds("ds_read_b32 v%d, v%d offset:1024" % (XS + 4, ts), "xs")
    so = stats_ops() + ["v_mul_f32 v%d, v%d, v%d" % (s1, s1, s2),
                        "v_mul_f32 v%d, v%d, v%d" % (XS, s1, vC + 2 * mat),
                        "v_mul_f32 v%d, v%d, v%d" % (XS + 1, s1, vC + 2 * mat + 1)]
    for k in range(20):
        if k < 3 or k % 2 == 0:
            wait_lg("xf%d" % min(19, k + (1 if k >= 3 else 0)))
        wait_lg("xf%d" % k)
        for ct in range(2):
            mfma(DQ + 4 * ct, SLOT[k % 8], WQF(mat, k, ct), "0" if k == 0 else V(DQ + 4 * ct, 4))
            if ct == 1 and k + NPRE < 20:
                ds("ds_read_b128 %s, v%d offset:%d" % (V(SLOT[(k + NPRE) % 8], 4), ta, 64 * (k + NPRE)), "xf%d" % (k + NPRE))
            if k >= 3:
                if k == 3 and ct == 0:
                    wait_lg("xs")
                for _ in range(2 if k >= 13 else 1):
                    if so:
                        a(so.pop(0))
    for op in so:
        a(op)
    Cr = vC + 2 * mat
    lab = a.newlabel("WQC")
    a("s_cmp_eq_u32 s%d, 1" % sMode)
    rawbr("s_cbranch_scc1 %s" % lab)
    a("s_mov_b64 exec, 0xffff")
    a("s_cmp_eq_u32 s%d, 0" % sLoc)
    a("v_fma_f32 v%d, v%d, v%d, -v%d" % (DQ, DQ, s2, XS))
    a("v_fma_f32 v%d, v%d, v%d, -v%d" % (DQ + 4, DQ + 4, s2, XS + 1))
    a("v_cvt_pk_bf16_f32 v%d, v%d, v%d" % (DQ, DQ, DQ + 4))
    a("v_min_u32 v%d, -2, v%d" % (DQ, DQ))
    lab2 = a.newlabel("QLOC")
    rawbr("s_cbranch_scc1 %s" % lab2)
    a("buffer_store_dword v%d, v%d, %s, s%d offen" % (DQ, vL4, S(WS, 4), sHC))
    a("s_mov_b64 exec, -1")
    a("s_setpc_b64 %s" % S(RA, 2))
    a.label(lab2)
    a("buffer_store_dword v%d, v%d, %s, s%d offen sc1" % (DQ, vL4, S(WS, 4), sHC))
    a("s_mov_b64 exec, -1")
    a("s_setpc_b64 %s" % S(RA, 2))
    a.label(lab)
    a.nop(8)
    a("v_mov_b32 v%d, v%d" % (Cr, DQ))
    a("v_mov_b32 v%d, v%d" % (Cr + 1, DQ + 4))
    a("s_setpc_b64 %s" % S(RA, 2))

a.label("L_FIN")
if DIAG:
    stamp()
    a("v_mbcnt_lo_u32_b32 v1, -1, 0")
    a("v_mbcnt_hi_u32_b32 v1, -1, v1")
    a("v_lshlrev_b32 v1, 2, v1")
    a("s_lshl_b32 s%d, s%d, 3" % (sT, sH))
    a("s_add_u32 s%d, s%d, s%d" % (sT, sT, sS))
    a("s_lshl_b32 s%d, s%d, 2" % (sT, sT))
    a("s_add_u32 s%d, s%d, s%d" % (sT, sT, sWv))
    a("s_lshl_b32 s%d, s%d, 8" % (sT, sT))
    a("s_add_u32 s%d, s%d, 0x%x" % (sT, sT, WS_DIAG))
    a("buffer_store_dword v0, v1, %s, s%d offen" % (S(WS, 4), sT))
a.label("L_END")
a("s_endpgm")

ref = open(os.path.join(os.path.dirname(__file__), "..", "cdna_kernels", NAME + ".s.ref")).read().splitlines()
head = [l for l in ref if l.startswith(";") and "@launch" not in l and not l.startswith("; Override") and not l.startswith("; grid=")]
out = "\n".join(head) + "\n"
out += "; @launch grid=(256,1,1) block=(256,1,1) lds=%d\n" % LDS_BYTES
out += '.amdgcn_target "amdgcn-amd-amdhsa--gfx950"\n.text\n.globl %s_kernel\n.p2align 8\n.type %s_kernel,@function\n%s_kernel:\n' % (NAME, NAME, NAME)
if P["ALN"]:
    import align
    a.lines = align.run(a.lines, NAME + "_kernel")
out += a.text()
out += """.section .rodata,"a"
.p2align 6
.amdhsa_kernel %s_kernel
  .amdhsa_next_free_vgpr 512
  .amdhsa_next_free_sgpr 102
  .amdhsa_accum_offset 256
  .amdhsa_group_segment_fixed_size 0
  .amdhsa_kernarg_size 104
  .amdhsa_user_sgpr_count 2
  .amdhsa_user_sgpr_kernarg_segment_ptr 1
  .amdhsa_system_sgpr_workgroup_id_x 1
  .amdhsa_float_denorm_mode_32 3
.end_amdhsa_kernel
""" % NAME
open(sys.argv[1], "w").write(out)
print("wrote", sys.argv[1], len(a.lines), "lines")
```

```python
import sys, os, math, struct
from collections import deque
sys.path.insert(0, os.path.dirname(__file__))
from asmlib import Asm, V, S

NAME = "interleave_layers__gqa_block_cached__gqa_block_cached__decode"

P = dict(W=6, DIAG=0, PF=20, NG=0, SPR=3, ALN=1, HBD=10, HBW=4, FAST=1, NOW0=1, PRO=0, L2N=1, L2E=8, TURBO=20, TG0=1, TG1=6, WG3=6, NVJ=24, L2B=0, L2R=8, PBAR=1, TCH=0, EGB=0, WOT=2, ORD=1, PF4=16, Q2POS=34, WPF=1, SCALE=1000, W0=6, CUD=0, ROT=0, CPF=1, WQNT=0, CDEL=1, LOCAL=1, HBS=1, HBSL=3, APF=4, WCU=6, XB=1, HLP=0, WH=4, B4R=4, WPFW=2, WEND=6, NEND=12)
for arg in sys.argv[2:]:
    k, v = arg.split("=")
    P[k] = int(v)
W = P["W"]
DIAG = P["DIAG"]
PF = P["PF"]
NG = P["NG"]
NVJ = P["NVJ"]


def f32(x):
    return struct.unpack("<I", struct.pack("<f", x))[0]


LDS_BYTES = 163840
L_CNT = [0, 4]
L_ROLE = 8184
L_PART = [64, 64 + 2112]
L_VA = 8192
L_X = 0
L_YB = 5120
L_WO = 8192
PH = 184320
HB0 = 147456
HC0 = 167936
WF0 = 4 << 20
WS_DIAG = 12 << 20
WS_BYTES = 13 << 20
BATCH = 1 << 25
TENSOR = 1 << 27
DPPM = "row_mask:0xf bank_mask:0xf"
QP = ["quad_perm:[1,0,3,2]", "quad_perm:[2,3,0,1]", "row_half_mirror", "row_mirror"]

a = Asm()

sH, sS, sWv = 3, 4, 5
KA, VA, KB, VB, WS, DBG, WT, OUT = 44, 48, 52, 56, 80, 84, 88, 92
sNRK, sNRV = 60, 61
sTO, sC, sT, sT2, sLB, sTv = 62, 63, 64, 65, 66, 67
sQM = 70
sDI = 98
sXc, sLoc = 99, 79
RA = 100


def stamp():
    if not DIAG:
        return
    a("s_memrealtime s[96:97]")
    a("s_waitcnt lgkmcnt(0)")
    lgq.clear()
    a("s_lshl_b64 exec, 1, s%d" % sDI)
    a("v_mov_b32 v0, s96")
    a("s_mov_b64 exec, -1")
    a("s_add_u32 s%d, s%d, 1" % (sDI, sDI))


def fstamp():
    if DIAG != 3:
        return
    lab = a.newlabel("FS")
    a("s_cmp_lt_u32 s9, 11")
    a("s_cbranch_scc1 %s" % lab)
    sv = list(lgq)
    stamp()
    lgq[:] = sv
    a.label(lab)


def budget(done, loop, sleep=None):
    a("s_cmp_eq_u32 s%d, 0" % sTO)
    a("s_cbranch_scc1 %s" % done)
    a("s_sub_u32 s%d, s%d, 1" % (sTO, sTO))
    if sleep:
        a("s_sleep %d" % sleep)
    if loop:
        a("s_branch %s" % loop)


def rawbr(text):
    a.raw("    " + text)
    a.st += 1


def mfma(d, x, y, c):
    a("v_mfma_f32_16x16x32_bf16 %s, %s, %s, %s" % (V(d, 4), V(x, 4), V(y, 4), c))


def pk(d, x, y):
    a("v_pk_add_f32 %s, %s, %s" % (V(d, 2), V(x, 2), V(y, 2)))


def srd(dst, ptr, nrec):
    a("s_mov_b32 s%d, s%d" % (dst, ptr))
    a("s_and_b32 s%d, s%d, 0xffff" % (dst + 1, ptr + 1))
    a("s_mov_b32 s%d, %s" % (dst + 2, nrec))
    a("s_mov_b32 s%d, 0x20000" % (dst + 3))


def l2fetch(bit, vo, srdn, so, off=0, tag=None, old=""):
    so = "s%d" % so if so is not None else "0"
    if not P["PRO"] & bit:
        a("buffer_load_dwordx4 v[48:51], v%d, %s, %s offen offset:%d%s" % (vo, S(srdn, 4), so, off, old), tag=tag)
        return
    if P["PRO"] & 8:
        a("buffer_load_dwordx4 v[48:51], v%d, %s, %s offen offset:%d nt" % (vo, S(srdn, 4), so, off), tag=tag)
    else:
        a("buffer_load_dword v48, v%d, %s, %s offen offset:%d nt" % (vo, S(srdn, 4), so, off), tag=tag)
    a("buffer_load_dword v49, v%d, %s, %s offen offset:%d sc1" % (vo, S(srdn, 4), so, off), tag=tag)


lgq = []


def ds(text, tag=None):
    a(text)
    lgq.append(tag)


def wait_lg(tag=None):
    if tag is None:
        a("s_waitcnt lgkmcnt(0)")
        lgq.clear()
        return
    if tag not in lgq:
        return
    idx = max(i for i, t in enumerate(lgq) if t == tag)
    n = len(lgq) - 1 - idx
    a("s_waitcnt lgkmcnt(%d)" % min(n, 15))
    del lgq[:len(lgq) - min(n, 15)]


def exact_check(regs, t):
    regs = list(regs)
    a("v_max3_u32 v%d, v%d, v%d, v%d" % (t, regs[0], regs[1], regs[2]))
    i = 3
    while i < len(regs):
        r2 = regs[i + 1] if i + 1 < len(regs) else regs[i]
        a("v_max3_u32 v%d, v%d, v%d, v%d" % (t, t, regs[i], r2))
        i += 2
    a("v_cmp_eq_u32 vcc, -1, v%d" % t)


if DIAG:
    a("s_memrealtime s[96:97]")
a("s_cmp_ge_u32 s2, 256")
a("s_cbranch_scc1 L_END")
a("s_load_dwordx16 s[16:31], s[0:1], 0")
a("s_load_dwordx8 s[32:39], s[0:1], 64")
a("s_load_dwordx2 s[40:41], s[0:1], 96")
a("v_lshrrev_b32 v1, 6, v0")
a("v_and_b32 v47, 63, v0")
a("v_readfirstlane_b32 s%d, v1" % sWv)
a("s_getreg_b32 s6, hwreg(HW_REG_XCC_ID, 0, 4)")
a("s_cmp_lt_u32 s6, 8")
a("s_cselect_b32 s%d, 1, 0x10001" % sXc)
a("s_and_b32 s6, s6, 7")
a("v_mov_b32 v2, 0")
a("s_cmp_lg_u32 s%d, 0" % sWv)
a("s_cbranch_scc1 L_TKW")
a("s_waitcnt lgkmcnt(0)")
srd(DBG, 38, "256")
a("s_mov_b64 exec, 1")
a("s_mov_b32 s7, 8")
a.label("L_TK")
a("s_lshl_b32 s8, s6, 5")
a("v_mov_b32 v3, 1")
a("buffer_atomic_add v3, v2, %s, s8 offen sc0 sc1" % S(DBG, 4))
a("s_waitcnt vmcnt(0)")
a("v_readfirstlane_b32 s9, v3")
a("s_cmp_lt_u32 s9, 32")
a("s_cbranch_scc1 L_TKD")
a("s_mov_b32 s%d, 0x10001" % sXc)
a("s_add_u32 s6, s6, 1")
a("s_and_b32 s6, s6, 7")
a("s_sub_u32 s7, s7, 1")
a("s_cmp_lg_u32 s7, 0")
a("s_cbranch_scc1 L_TK")
a("s_mov_b32 s9, 0x100")
a.label("L_TKD")
a("s_lshl_b32 s6, s6, 5")
a("s_or_b32 s6, s6, s9")
a("v_mov_b32 v3, s6")
a("ds_write_b32 v2, v3 offset:%d" % L_ROLE)
a("s_mov_b64 exec, -1")
a("s_waitcnt lgkmcnt(0)")
a.label("L_TKW")
a("s_getpc_b64 %s" % S(WT, 2))
a.label("L_PC")
a("s_sub_u32 s%d, s%d, L_PC-%s_kernel" % (WT, WT, NAME))
a("s_subb_u32 s%d, s%d, 0" % (WT + 1, WT + 1))
a("s_and_b32 s%d, s%d, 0xffff" % (WT + 1, WT + 1))
a("s_mov_b32 s%d, L_END-%s_kernel" % (WT + 2, NAME))
a("s_mov_b32 s%d, 0x20000" % (WT + 3))
a("s_mov_b32 s%d, 200000" % sTO)
a("s_mov_b32 s%d, 0" % sDI)
a("s_mov_b32 s%d, 0" % sLoc)
a("v_and_b32 v46, 15, v47")
a("v_lshrrev_b32 v45, 4, v47")
a("s_barrier")
a("ds_read_b32 v3, v2 offset:%d" % L_ROLE)
a("s_waitcnt lgkmcnt(0)")
a("v_readfirstlane_b32 s6, v3")
a("s_cmp_ge_u32 s6, 256")
a("s_cbranch_scc1 L_END")
a("s_and_b32 s7, s6, 31")
a("s_lshl_b32 s8, s7, 12")
a("v_lshl_add_u32 v42, v0, 4, s8")
a("buffer_load_dwordx4 v[60:63], v42, %s, 0 offen" % S(WT, 4))
a("v_mov_b32 v0, 0")
a("s_lshr_b32 s%d, s6, 5" % sH)
a("s_lshl_b32 s%d, s%d, 2" % (sH, sH))
a("s_and_b32 s8, s7, 3")
a("s_add_u32 s%d, s%d, s8" % (sH, sH))
a("s_lshr_b32 s%d, s7, 2" % sS)
a("s_add_u32 s%d, s%d, 7" % (sS, sS))
a("s_and_b32 s%d, s%d, 7" % (sS, sS))


def ready_add(vd, vz):
    a("s_lshr_b32 s%d, s%d, 2" % (sT2, sH))
    a("s_lshl_b32 s%d, s%d, 5" % (sT2, sT2))
    a("v_mov_b32 v%d, s%d" % (vd, sXc))
    a("s_mov_b64 exec, 1")
    a("buffer_atomic_add v%d, v%d, %s, s%d offen offset:4 sc1" % (vd, vz, S(DBG, 4), sT2))
    a.vmopt.add(len(a.vmq) - 1)
    a("s_mov_b64 exec, -1")


def ready_local(vd):
    if not P["LOCAL"]:
        return
    a("v_cmp_eq_u32 vcc, 32, v%d" % vd)
    a("s_lshr_b32 s%d, s%d, 2" % (sT2, sH))
    a("s_nop 3")
    a("s_lshr_b32 s%d, vcc_lo, s%d" % (sT2, sT2))
    a("s_and_b32 s%d, s%d, 1" % (sLoc, sT2))


def common_srds():
    if DIAG:
        a("s_mov_b64 exec, 1")
        a("v_mov_b32 v0, s96")
        a("s_mov_b64 exec, -1")
        a("s_mov_b32 s%d, 1" % sDI)
    srd(WS, 40, "0x%x" % WS_BYTES)
    srd(DBG, 38, "256")


a("s_cmp_eq_u32 s%d, 7" % sS)
a("s_cbranch_scc1 L_COMM")

vK, vL, vPt, MK, vBias = 1, 2, 3, 4, 8
SS = list(range(9, 19))
vQa = 19
ML, vT, vU = 20, 22, 23
D2, D1, D3 = 20, 24, 28
QF = 32
ACC = 32
QR = 48
sB, sCur, sNxt, sHas, sPq, sPa, sWi = 6, 7, 8, 9, 10, 11, 12
GO = 16


def home(kind, i):
    if kind == "KS":
        return 56 + 4 * (i - (36 - P["SPR"]))
    if kind == "KA":
        return 68 + 4 * i
    if kind == "KB":
        return 216 + 4 * i
    if kind == "VB":
        return 216 + 148 + 4 * i
    raise KeyError


assert home("VB", 36) + 4 == 512

a("s_mul_i32 s%d, s%d, 7" % (sWi, sWv))
a("s_add_u32 s%d, s%d, s%d" % (sWi, sWi, sS))
a("v_lshlrev_b32 v43, 4, v47")
wpf = []
if P["WPF"]:
    a("s_and_b32 s15, s%d, 3" % sH)
    a("s_mul_i32 s15, s15, 28")
    a("s_add_u32 s15, s15, s%d" % sWi)
    a("s_lshr_b32 s42, s%d, 2" % sH)
    a("s_mul_i32 s43, s42, 655360")
    a("s_lshl_b32 s42, s42, 10")

    def wpf_load(ptr, isq, r):
        def fn():
            if r == 0:
                srd(WT, ptr, "0x%x" % (640 * 8192))
            a("s_add_u32 s%d, s15, %d" % (sT2, 112 * r))
            a("s_min_u32 s%d, s%d, 639" % (sT2, sT2))
            a("s_lshl_b32 s%d, s%d, %d" % (sT2, sT2, 13 if isq else 10))
            a("s_add_u32 s%d, s%d, s%d" % (sT2, sT2, 42 if isq else 43))
            l2fetch(2, 43, WT, sT2, tag="wpf")
        return fn
    for ptr, isq in ((22, P["WPF"] != 3), (24, 0), (34, 0), (32, P["WPF"] < 3)):
        for r in range(6):
            wpf.append(wpf_load(ptr, isq, r))

a("s_waitcnt lgkmcnt(0)")
if P["FAST"]:
    for fn in wpf[:6]:
        fn()
common_srds()
a("s_mov_b32 s%d, 0x%08x" % (sC, f32(128 ** -0.5 * math.log2(math.e) * P["SCALE"] / 1000.0)))
for t in range(4):
    m = 0x000F000F << (4 * t)
    a("s_mov_b32 s%d, 0x%08x" % (sQM + 2 * t, m))
    a("s_mov_b32 s%d, 0x%08x" % (sQM + 2 * t + 1, m))
a("s_cmp_lt_u32 s%d, 16" % sWi)
a("s_cselect_b32 s%d, 1, 0" % sHas)
a("s_min_u32 s13, s%d, 16" % sWi)
a("s_mul_i32 s14, s%d, 36" % sWi)
a("s_add_u32 s13, s13, s14")
a("s_lshl_b32 s13, s13, 10")
a("s_lshl_b32 s14, s%d, 20" % sH)
a("s_add_u32 s13, s13, s14")
a("s_mul_i32 s%d, s%d, 37888" % (sLB, sWv))
a("s_add_u32 s%d, s%d, %d" % (sLB, sLB, L_VA))
a("s_sub_u32 s%d, 0x%x, s13" % (sNRK, TENSOR))
a("s_add_u32 s%d, s%d, s%d" % (sNRV, sNRK, sLB))
for dst, ptr, isv in ((KA, 18, 0), (VA, 20, 1), (KB, 28, 0), (VB, 30, 1)):
    a("s_add_u32 s%d, s%d, s13" % (dst, ptr))
    a("s_addc_u32 s%d, s%d, 0" % (dst + 1, ptr + 1))
    if isv:
        a("s_sub_u32 s%d, s%d, s%d" % (dst, dst, sLB))
        a("s_subb_u32 s%d, s%d, 0" % (dst + 1, dst + 1))
    a("s_and_b32 s%d, s%d, 0xffff" % (dst + 1, dst + 1))
    a("s_mov_b32 s%d, s%d" % (dst + 2, sNRV if isv else sNRK))
    a("s_mov_b32 s%d, 0x20000" % (dst + 3))
if P["HLP"]:
    a("s_add_u32 s14, s%d, 1" % sS)
    a("s_cmp_eq_u32 s14, 7")
    a("s_cselect_b32 s14, 0, s14")
    a("s_mul_i32 s15, s%d, 7" % sWv)
    a("s_add_u32 s14, s14, s15")
    a("s_min_u32 s15, s14, 16")
    a("s_mul_i32 s14, s14, 36")
    a("s_add_u32 s14, s14, s15")
    a("s_lshl_b32 s14, s14, 10")
    a("s_lshl_b32 s15, s%d, 20" % sH)
    a("s_add_u32 s14, s14, s15")
    a("s_add_u32 s%d, s30, s14" % OUT)
    a("s_addc_u32 s%d, s31, 0" % (OUT + 1))
    a("s_sub_u32 s%d, s%d, s%d" % (OUT, OUT, sLB))
    a("s_subb_u32 s%d, s%d, 0" % (OUT + 1, OUT + 1))
    a("s_and_b32 s%d, s%d, 0xffff" % (OUT + 1, OUT + 1))
    a("s_sub_u32 s%d, 0x%x, s14" % (OUT + 2, TENSOR))
    a("s_add_u32 s%d, s%d, s%d" % (OUT + 2, OUT + 2, sLB))
    a("s_mov_b32 s%d, 0x20000" % (OUT + 3))
a("v_and_b32 v44, 3, v47")
a("v_lshlrev_b32 v%d, 4, v44" % vQa)
a("v_lshl_add_u32 v%d, v45, 6, v%d" % (vQa, vQa))
a("v_bfe_u32 v44, v47, 2, 2")
a("v_lshl_add_u32 v%d, v44, 8, v%d" % (vK, vQa))
a("v_lshl_add_u32 v%d, v45, 6, v%d" % (vQa, vQa))
a("v_add_u32 v%d, s%d, v43" % (vL, sLB))
a("s_lshl_b32 s%d, s%d, 9" % (sPq, sH))
a("s_add_u32 s%d, s%d, %d" % (sPq, sPq, HC0))
a("s_mul_i32 s%d, s%d, 4608" % (sPa, sH))
a("s_mov_b32 s%d, 0" % sB)
a("s_mov_b32 s%d, 0" % sCur)

curh = {"K": None, "V": None, "m0": None}
fab = []
done_idx = [-1]
live = {}


def waitvm(n):
    assert n <= 63, n
    a("s_waitcnt vmcnt(%d)" % n)
    i, c = len(a.vmq) - 1, 0
    while i >= 0 and c < n:
        if i not in a.vmopt:
            c += 1
        i -= 1
    done_idx[0] = max(done_idx[0], i)


def tag_idx(tag):
    return max(i for i, t in enumerate(a.vmq) if t == tag)


def landed(tag):
    return tag_idx(tag) <= done_idx[0]


def wait_tag(tag):
    if not landed(tag):
        waitvm(a.vm_after_idx(tag_idx(tag)))


WIN = [P["W0"]]


def pace():
    w = WIN[0]
    if len(fab) >= w and fab[-w] > done_idx[0]:
        waitvm(a.vm_after_idx(fab[-w]))


def reset_vm():
    a.vmq[:] = ["old"] * W
    a.vmopt.clear()
    fab[:] = list(range(W))
    done_idx[0] = -1
    curh.update(K=None, V=None, m0=None)


def load_tile(kind, off, i, mode, fabric, paced):
    g, t = i // 4, i % 4
    srdn = {"KA": KA, "VA": VA, "KB": KB, "VB": VB, "VN": OUT, "KS": KA}[kind]
    c = kind[0]
    vo, so = (vK, sT) if c == "K" else (vL, sTv)
    if mode == "home":
        assert not live.get((kind, i), False), ("slot busy", kind, i)
        live[(kind, i)] = True
    if curh[c] != (kind, off, g):
        a("s_add_u32 s%d, s%d, s%d" % (so, off, GO + g))
        curh[c] = (kind, off, g)
    lds = kind == "VA" and mode == "home"
    if lds and curh["m0"] != g:
        a("s_add_u32 m0, s%d, %d" % (sLB, g * 4096))
        curh["m0"] = g
    if fabric and paced:
        pace()
    opt = i == 36
    if opt:
        lab = a.newlabel("NT")
        a("s_cmp_eq_u32 s%d, 0" % sHas)
        rawbr("s_cbranch_scc1 %s" % lab)
    tag = "%s%d" % (kind, g) if mode == "home" else "pf"
    if lds:
        a("buffer_load_dwordx4 v%d, %s, s%d offen offset:%d nt lds" % (vo, S(srdn, 4), so, t * 1024), tag=tag)
    elif mode == "home":
        a("buffer_load_dwordx4 %s, v%d, %s, s%d offen offset:%d nt" % (V(home(kind, i), 4), vo, S(srdn, 4), so, t * 1024), tag=tag)
    else:
        a("buffer_load_dwordx4 %s, v%d, %s, s%d offen offset:%d" % (V(QR, 4), vo, S(srdn, 4), so, t * 1024), tag=tag)
    if opt:
        a.label(lab)
        a.st -= 1
        a.vmopt.add(len(a.vmq) - 1)
    elif fabric:
        fab.append(len(a.vmq) - 1)


Q = deque()


def pump(n=1, paced=True):
    while n > 0 and Q:
        it = Q.popleft()
        if callable(it):
            it()
            continue
        load_tile(*it, paced)
        n -= 1
        while Q and (callable(Q[0]) or not Q[0][4]):
            it = Q.popleft()
            if callable(it):
                it()
            else:
                load_tile(*it, paced)


def free(kind, g):
    for i in range(4 * g, min(4 * g + 4, 37)):
        live[(kind, i)] = False


def qload(blk_off):
    a("s_add_u32 s%d, s%d, %d" % (sT2, sPq, blk_off * PH))
    a("buffer_load_dwordx4 %s, v%d, %s, s%d offen sc1" % (V(QR, 4), vQa, S(WS, 4), sT2), tag="q")


def qcheck(blk_off, early, QR=QR, dn=None):
    lp, dn = a.newlabel("QL"), dn or a.newlabel("QD")
    if early:
        wait_tag("q")
        exact_check(range(QR, QR + 4), vT)
        a("s_cbranch_vccz %s" % dn)
    a("s_add_u32 s%d, s%d, %d" % (sT2, sPq, blk_off * PH))
    a.label(lp)
    a("buffer_load_dwordx4 %s, v%d, %s, s%d offen sc1" % (V(QR, 4), vQa, S(WS, 4), sT2), tag="qspin")
    if early:
        a.vmopt.add(len(a.vmq) - 1)
        a("s_waitcnt vmcnt(0)")
    else:
        waitvm(0)
    exact_check(range(QR, QR + 4), vT)
    a("s_cbranch_vccz %s" % dn)
    budget(dn, lp)
    a.label(dn)
    for t in range(4):
        for r in range(4):
            a("v_cndmask_b32 %s, 0, %s, %s" % (V(QF + 4 * t + r), V(QR + r), S(sQM + 2 * t, 2)))


SDST = {}


def red_ops(D, g):
    Sr = SDST.get(g, SS[g])
    first = ("v_mov_b32_dpp %s, %s quad_perm:[0,0,0,0] %s" % (V(Sr), V(D), DPPM) if g < 9 else
             "v_add_f32_dpp %s, %s, %s quad_perm:[0,0,0,0] %s" % (V(Sr), V(D), V(vBias), DPPM))
    return [first] + [
        "v_add_f32_dpp %s, %s, %s quad_perm:[%d,%d,%d,%d] %s" % (V(Sr), V(D + r), V(Sr), r, r, r, r, DPPM)
        for r in (1, 2, 3)]


SX = [56, 57, 58, 59, 60]


def qk_early():
    for g in range(NG):
        SDST[g] = SX[g]
    qk_burst("KA", list(range(NG)), release=True)
    SDST.clear()


def qk_burst(kind, order, hook=None, release=False, pre=None):
    Ds = [D1, D2, D3]
    n = len(order)
    for i, g in enumerate(order):
        if pre:
            pre(g)
        D = Ds[i % 3]
        r = red_ops(Ds[(i - 2) % 3], order[i - 2]) if i >= 2 else [None] * 4
        for t in range(4):
            if g < 9 or t == 0:
                mfma(D, home(kind, 4 * g + t), QF + 4 * t, "0" if t == 0 else V(D, 4))
            if r[t]:
                a(r[t])
        if release:
            free(kind, g)
        if hook:
            hook(i)
    assert n >= 2
    ra, rb = red_ops(Ds[(n - 2) % 3], order[n - 2]), red_ops(Ds[(n - 1) % 3], order[n - 1])
    for x, y in zip(ra, rb):
        a(x)
        a(y)


def xlane(op, X, U):
    a("%s_dpp %s, %s, %s row_ror:4 %s" % (op, V(X), V(X), V(X), DPPM))
    a("%s_dpp %s, %s, %s row_ror:8 %s" % (op, V(X), V(X), V(X), DPPM))
    a("v_mov_b32 %s, %s" % (V(U), V(X)))
    a("v_permlane16_swap_b32 %s, %s" % (V(X), V(U)))
    a("%s %s, %s, %s" % (op, V(X), V(X), V(U)))
    a("v_mov_b32 %s, %s" % (V(U), V(X)))
    a("v_permlane32_swap_b32 %s, %s" % (V(X), V(U)))
    a("%s %s, %s, %s" % (op, V(X), V(X), V(U)))


def softmax():
    M, L = ML, ML + 1
    a("v_max3_f32 %s, %s, %s, %s" % (V(M), V(SS[0]), V(SS[1]), V(SS[2])))
    a("v_max3_f32 %s, %s, %s, %s" % (V(L), V(SS[3]), V(SS[4]), V(SS[5])))
    a("v_max3_f32 %s, %s, %s, %s" % (V(M), V(M), V(SS[6]), V(SS[7])))
    a("v_max3_f32 %s, %s, %s, %s" % (V(L), V(L), V(SS[8]), V(SS[9])))
    a("v_max_f32 %s, %s, %s" % (V(M), V(M), V(L)))
    xlane("v_max_f32", M, vU)
    a("v_mul_f32 %s, s%d, %s" % (V(M), sC, V(M)))
    for s_ in SS:
        a("v_fma_f32 %s, %s, s%d, -%s" % (V(s_), V(s_), sC, V(M)))
    for s_ in SS:
        a("v_exp_f32 %s, %s" % (V(s_), V(s_)))
    a("v_add_f32 %s, %s, %s" % (V(L), V(SS[0]), V(SS[1])))
    for s_ in SS[2:]:
        a("v_add_f32 %s, %s, %s" % (V(L), V(L), V(s_)))
    for s_ in SS:
        a("v_cvt_pk_bf16_f32 %s, %s, %s" % (V(s_), V(s_), V(s_)))


def pv_ops(Pr, AX, AY):
    ax = ["v_and_b32 %s, %s, %s" % (V(AX), V(Pr), V(MK)),
          "v_and_b32 %s, %s, %s" % (V(AX + 1), V(Pr), V(MK + 1)),
          "v_and_b32_dpp %s, %s, %s row_ror:4 %s" % (V(AX + 2), V(Pr), V(MK + 2), DPPM),
          "v_and_b32_dpp %s, %s, %s row_ror:4 %s" % (V(AX + 3), V(Pr), V(MK + 3), DPPM)]
    ay = ["v_and_b32_dpp %s, %s, %s row_ror:12 %s" % (V(AY), V(Pr), V(MK), DPPM),
          "v_and_b32_dpp %s, %s, %s row_ror:12 %s" % (V(AY + 1), V(Pr), V(MK + 1), DPPM),
          "v_and_b32 %s, %s, %s" % (V(AY + 2), V(Pr), V(MK + 2)),
          "v_and_b32 %s, %s, %s" % (V(AY + 3), V(Pr), V(MK + 3))]
    return ax, ay


def pv_seq(groups, first, pre=None, post=None):
    lo, hi, AX, AY = ACC, ACC + 4, ACC + 8, ACC + 12
    n = len(groups)
    ops = [pv_ops(SS[g], AX, AY) for g, _ in groups]
    for o in ops[0][0]:
        a(o)
    for i in range(n):
        g, Vr = groups[i]
        ax, ay = ops[i]
        z = first and i == 0
        nx = ops[i + 1][0] if i + 1 < n else [None] * 4
        if g == 9:
            assert i == n - 1 and not z
            if pre:
                pre(i)
            mfma(lo, AX, Vr, V(lo, 4))
        else:
            a(ay[0]); a(ay[1])
            if pre:
                pre(i)
            mfma(lo, AX, Vr, "0" if z else V(lo, 4))
            a(ay[2]); a(ay[3])
            mfma(hi, AX, Vr + 8, "0" if z else V(hi, 4))
            if nx[0]:
                a(nx[0]); a(nx[1])
            mfma(lo, AY, Vr + 4, V(lo, 4))
            if nx[2]:
                a(nx[2]); a(nx[3])
            mfma(hi, AY, Vr + 12, V(hi, 4))
        if post:
            post(i)


def publish(typ, blk_off):
    lo, hi = ACC, ACC + 4
    tA, tO, tR, tE = D1, D1 + 1, D1 + 2, D1 + 3
    tM, tW = D3, D3 + 1
    mlr = D3 + 2
    OB = ACC + 8
    part = L_PART[typ]
    a("v_mov_b32 %s, 0" % V(tA))
    a("v_mov_b32 %s, 1" % V(tO))
    a("v_subrev_u32 %s, s%d, %s" % (V(tE), sLB, V(vL)))
    a("v_lshrrev_b32 %s, 1, %s" % (V(tE), V(tE)))
    a("v_and_b32 %s, 24, %s" % (V(tW), V(tE)))
    a("v_mov_b32 %s, s13" % V(tM))
    xlane("v_add_f32", ML + 1, vU)
    a("v_permlane32_swap_b32 %s, %s" % (V(lo), V(lo + 2)))
    a("v_permlane32_swap_b32 %s, %s" % (V(lo + 1), V(lo + 3)))
    a("v_permlane32_swap_b32 %s, %s" % (V(hi), V(hi + 2)))
    a("v_permlane32_swap_b32 %s, %s" % (V(hi + 1), V(hi + 3)))
    a("v_add_f32 %s, %s, %s" % (V(lo), V(lo), V(hi + 2)))
    a("v_add_f32 %s, %s, %s" % (V(lo + 1), V(lo + 1), V(hi + 3)))
    ds("ds_write_b64 %s, %s offset:%d" % (V(vPt), V(lo, 2), part))
    a("s_mov_b64 exec, 1")
    ds("ds_write_b64 %s, %s offset:%d" % (V(tM), V(ML, 2), part + 2048))
    ds("ds_add_rtn_u32 %s, %s, %s offset:%d" % (V(tR), V(tA), V(tO), L_CNT[typ]), "cnt")
    a("s_mov_b64 exec, -1")
    ds("ds_read_b64 %s, %s offset:%d" % (V(mlr, 2), V(tW), part + 2048), "ml")
    for p in range(4):
        ds("ds_read_b64 %s, %s offset:%d" % (V(OB + 2 * p, 2), V(tE), part + 512 * p))
    a("s_add_u32 s%d, s%d, %d" % (sT2, sPa, blk_off * PH))
    wait_lg("ml")
    a("v_readfirstlane_b32 s15, %s" % V(tR))
    cM, cL, cW = ML, ML + 1, vT
    a("v_max_f32_dpp v%d, v%d, v%d %s %s" % (cM, mlr, mlr, QP[0], DPPM))
    a("s_and_b32 s15, s15, 3")
    a("s_cmp_lg_u32 s15, 3")
    lab = a.newlabel("NOTLAST")
    rawbr("s_cbranch_scc1 %s" % lab)
    a("v_max_f32_dpp v%d, v%d, v%d %s %s" % (cM, cM, cM, QP[1], DPPM))
    a("v_sub_f32 v%d, v%d, v%d" % (cW, mlr, cM))
    a("v_exp_f32 v%d, v%d" % (cW, cW))
    a("v_mul_f32 v%d, v%d, v%d" % (cL, mlr + 1, cW))
    a("s_waitcnt lgkmcnt(0)")
    lsum = ["v_add_f32_dpp v%d, v%d, v%d %s %s" % (cL, cL, cL, q, DPPM) for q in QP[:2]]
    for p in range(4):
        for c in range(2):
            d = lo + 2 * (p & 1) + c
            op = "v_mul_f32_dpp" if p < 2 else "v_fmac_f32_dpp"
            a("%s v%d, v%d, v%d row_newbcast:%d %s" % (op, d, cW, OB + 2 * p + c, p, DPPM))
        if p in (0, 2):
            a(lsum[p // 2])
    pk(lo, lo, lo + 2)
    a("v_min_u32 v%d, -2, v%d" % (cM, cM))
    a("v_min_u32 v%d, -2, v%d" % (cL, cL))
    a("v_min_u32 v%d, -2, v%d" % (lo, lo))
    a("v_min_u32 v%d, -2, v%d" % (lo + 1, lo + 1))
    a("s_add_u32 s15, s%d, s14" % sT2)
    a("s_add_u32 s%d, s%d, s68" % (sT2, sT2))
    lab2 = a.newlabel("PLOC")
    a("s_cmp_eq_u32 s%d, 0" % sLoc)
    rawbr("s_cbranch_scc0 %s" % lab2)
    for sc in (" sc1", ""):
        a("buffer_store_dwordx2 %s, %s, %s, s15 offen%s" % (V(lo, 2), V(tE), S(WS, 4), sc))
        a.vmopt.add(len(a.vmq) - 1)
        a("s_mov_b64 exec, 1")
        a("buffer_store_dwordx2 %s, %s, %s, s%d offen%s" % (V(cM, 2), V(tE), S(WS, 4), sT2, sc))
        a.vmopt.add(len(a.vmq) - 1)
        a("s_mov_b64 exec, -1")
        if sc:
            rawbr("s_branch %s" % lab)
            a.label(lab2)
    a.label(lab)
    a("s_waitcnt lgkmcnt(0)")
    lgq.clear()
    a.nop(2)


def stage(g, dst):
    for t in range(4 if g < 9 else 1):
        ds("ds_read_b128 %s, v%d offset:%d" % (V(dst + 4 * t, 4), vL, g * 4096 + t * 1024), "st%d" % g)


reset_vm()
a.vmq[:] = []
fab[:] = []
if False:
    a("s_getpc_b64 %s" % S(WT, 2))
    a.label("L_PC")
    a("s_sub_u32 s%d, s%d, L_PC-%s_kernel" % (WT, WT, NAME))
    a("s_subb_u32 s%d, s%d, 0" % (WT + 1, WT + 1))
    a("s_and_b32 s%d, s%d, 0xffff" % (WT + 1, WT + 1))
    a("s_mov_b32 s%d, L_END-%s_kernel" % (WT + 2, NAME))
    a("s_mov_b32 s%d, 0x20000" % (WT + 3))
    a("s_lshl_b32 s%d, s15, 10" % sT2)
    a("v_add_u32 v42, s%d, v43" % sT2)
    a("buffer_load_dwordx4 %s, v42, %s, 0 offen" % (V(QR, 4), S(WT, 4)))
for fn in wpf[:6]:
    if P["FAST"]:
        a.vmq.extend(["wpf"] * (2 if P["PRO"] & 2 else 1))
    else:
        fn()
    fab.append(len(a.vmq) - 1)
a("s_lshl_b32 s14, s%d, 9" % sS)
a("s_lshl_b32 s68, s%d, 7" % sS)
a("s_add_u32 s68, s68, 3584")
a("s_lshl_b32 s13, s%d, 3" % sWv)
a("s_cmp_lg_u32 s%d, 0" % sWv)
a("s_cbranch_scc1 L_NOCLR")
a("v_add_u32 v40, s14, v43")
a("v_subrev_u32 v41, 512, v43")
a("v_add_u32 v41, s68, v41")
a("v_cmp_gt_u32 vcc, 32, v47")
a("v_cndmask_b32 v40, v41, v40, vcc")
for r in range(4):
    a("v_mov_b32 v%d, -1" % (QF + r))
a("v_mov_b32 v41, 0")
a("v_mov_b32 v36, 0")
a("v_mov_b32 v37, 0")
a("ds_write_b64 v41, v[36:37]")
a("s_mov_b32 exec_hi, 0xff")
for p in range(16):
    a("s_add_u32 s%d, s%d, %d" % (sT2, sPa, p * PH))
    a("buffer_store_dwordx4 %s, v40, %s, s%d offen sc1" % (V(QF, 4), S(WS, 4), sT2), tag="clr")
    a.vmopt.add(len(a.vmq) - 1)
a("s_mov_b64 exec, -1")
a("s_waitcnt lgkmcnt(0)")
a.label("L_NOCLR")
a("s_barrier")
for fn in wpf[6:]:
    pace()
    fn()
    fab.append(len(a.vmq) - 1)
if P["WOT"]:
    srd(WT, 24, "0x%x" % (4096 * 1280))
    a("s_sub_u32 s%d, s%d, s%d" % (WT, WT, sLB))
    a("s_subb_u32 s%d, s%d, 0" % (WT + 1, WT + 1))
    a("s_and_b32 s%d, s%d, 0xffff" % (WT + 1, WT + 1))
    a("s_add_u32 s%d, s%d, s%d" % (WT + 2, WT + 2, sLB))
    assert not P["HLP"]
    srd(OUT, 34, "s%d" % (WT + 2))
    a("s_sub_u32 s%d, s%d, s%d" % (OUT, OUT, sLB))
    a("s_subb_u32 s%d, s%d, 0" % (OUT + 1, OUT + 1))
    a("s_and_b32 s%d, s%d, 0xffff" % (OUT + 1, OUT + 1))
    a("s_mul_i32 s15, s%d, 163840" % sH)
    for r in range(3):
        a("s_add_u32 s%d, s%d, %d" % (29 + r, sWi, 28 * r))
        a("s_min_u32 s%d, s%d, 79" % (29 + r, 29 + r))
        a("s_cmp_lt_u32 s%d, 40" % (29 + r))
        a("s_cselect_b32 s%d, 0, 40" % sT2)
        a("s_add_u32 s%d, s%d, s%d" % (29 + r, 29 + r, sT2))
        a("s_lshl_b32 s%d, s%d, 10" % (29 + r, 29 + r))
        a("s_add_u32 s%d, s%d, s15" % (29 + r, 29 + r))
a("s_and_b32 s15, s%d, 3" % sH)
a("s_lshl_b32 s15, s15, 2")
a("s_add_u32 s15, s15, s%d" % sWv)
a("s_mul_i32 s15, s15, %d" % P["ROT"])
a("s_mul_hi_u32 s%d, s15, 0x%x" % (sT2, (1 << 32) // 9 + 1))
a("s_mul_i32 s%d, s%d, 9" % (sT2, sT2))
a("s_sub_u32 s15, s15, s%d" % sT2)
a("s_lshl_b32 s15, s15, 12")
for g in range(9):
    a("s_mov_b32 s%d, s15" % (GO + g))
    a("s_add_u32 s15, s15, 4096")
    a("s_cmp_eq_u32 s15, %d" % (9 * 4096))
    a("s_cselect_b32 s15, 0, s15")
a("s_mov_b32 s%d, %d" % (GO + 9, 9 * 4096))
for i in range(37):
    Q.append(("KA", sCur, i, "home", True))
pump(4)
a("v_and_b32 v44, 1, v47")
a("v_lshlrev_b32 v44, 4, v44")
a("v_mov_b32 v%d, 0xffff" % (MK + 3))
a("v_lshlrev_b32 v%d, v44, v%d" % (MK + 3, MK + 3))
a("v_bfe_u32 v44, v47, 1, 2")
for r in range(4):
    a("v_cmp_eq_u32 vcc, %d, v44" % r)
    a("v_cndmask_b32 v%d, 0, v%d, vcc" % (MK + r, MK + 3))
a("v_lshlrev_b32 v%d, 5, v46" % vPt)
a("v_and_b32 v44, 1, v45")
a("v_lshl_add_u32 v%d, v44, 4, v%d" % (vPt, vPt))
a("v_lshrrev_b32 v44, 1, v45")
a("v_lshl_add_u32 v%d, v44, 3, v%d" % (vPt, vPt))
a("s_lshl_b32 s69, s%d, 9" % sWv)
a("v_add_u32 v%d, s69, v%d" % (vPt, vPt))
a("v_mov_b32 v44, 0xff800000")
a("v_cndmask_b32 v%d, v44, 0, %s" % (vBias, S(sQM, 2)))
a("s_cmp_lg_u32 s%d, 0" % sHas)
a("s_cbranch_scc1 L_HAS")
a("v_mov_b32 v%d, v44" % vBias)
for r in range(4):
    a("v_mov_b32 v%d, 0" % (home("KA", 36) + r))
    a("v_mov_b32 v%d, 0" % (36 + r))
    a("v_accvgpr_write_b32 %s, 0" % V(home("KB", 36) + r))
    a("v_accvgpr_write_b32 %s, 0" % V(home("VB", 36) + r))
a("ds_write_b128 v%d, v[36:39] offset:%d" % (vL, 36 * 1024))
a("s_waitcnt lgkmcnt(0)")
a.label("L_HAS")
pump(8)
wait_tag("clr")
a("s_cmp_lg_u32 s%d, 0" % sWv)
a("s_cbranch_scc1 L_NOFLAG")
a("v_mov_b32 v41, 0")
ready_add(40, 41)
a.label("L_NOFLAG")
pump(100)
for i in range(NVJ):
    Q.append(("VA", sCur, i, "home", True))
a("v_and_b32 v41, 7, v47")
a("v_lshlrev_b32 v41, 5, v41")
a("buffer_load_dword v40, v41, %s, 0 offen offset:4 sc1" % S(DBG, 4), tag="fl")
pump(WIN[0] + 1)
wait_tag("fl")
a("v_and_b32 v39, 0xffff, v40")
a("v_cmp_ne_u32 vcc, 32, v39")
a("s_cbranch_vccz L_FLD")
a.label("L_FLW")
a("buffer_load_dword v40, v41, %s, 0 offen offset:4 sc1" % S(DBG, 4))
a.vmopt.add(len(a.vmq) - 1)
a("s_waitcnt vmcnt(0)")
a("v_and_b32 v39, 0xffff, v40")
a("v_cmp_ne_u32 vcc, 32, v39")
a("s_cbranch_vccz L_FLD")
budget("L_FLD", "L_FLW", 2)
a.label("L_FLD")
ready_local(40)
pump(100)
stamp()

QR2 = 52
sPf, sPe, sFl = 26, 27, 28
assert P["ROT"] == 0 and PF % 2 == 0


def qbuild(R):
    for t in range(4):
        for r in range(4):
            a("v_cndmask_b32 %s, 0, %s, %s" % (V(QF + 4 * t + r), V(R + r), S(sQM + 2 * t, 2)))


def qwait_pf(dn, srdn=KA, win=None, wot=False):
    la, lb = a.newlabel("QA"), a.newlabel("QB")
    n0 = len(a.vmq)
    a.label(la)
    a("s_cmp_ge_u32 s%d, s%d" % (sPf, sPe))
    a("s_cbranch_scc1 %s" % lb)
    a("buffer_load_dwordx4 %s, v%d, %s, s15 offen sc1" % (V(QR2, 4), vQa, S(WS, 4)))
    for t in range(2):
        a("s_waitcnt vmcnt(%d)" % ((win or P["WPFW"]) * (5 if P["PRO"] & 1 else 3) // 2))
        l2fetch(1, vK, srdn, sPf, t * 1024)
    a("s_add_u32 s%d, s%d, 2048" % (sPf, sPf))
    exact_check(range(QR2, QR2 + 4), vT)
    a("s_cbranch_vccnz %s" % la)
    a("s_branch %s" % dn)
    a.label(lb)
    if wot:
        for d_ in (WT, OUT)[:P["WOT"]]:
            for r in range(3):
                l2fetch(4, vL, d_, 29 + r, old=" sc1")
        lb = a.newlabel("QC")
        a.label(lb)
    a("buffer_load_dwordx4 %s, v%d, %s, s15 offen sc1" % (V(QR2, 4), vQa, S(WS, 4)))
    a("s_waitcnt vmcnt(0)")
    exact_check(range(QR2, QR2 + 4), vT)
    a("s_cbranch_vccz %s" % dn)
    budget(dn, lb)
    for i in range(n0, len(a.vmq)):
        a.vmopt.add(i)


a.drain()
a.label("L_J")
WIN[0] = W
reset_vm()
lgq.clear()
for i in range(37):
    live[("KA", i)] = live[("KB", i)] = live[("VB", i)] = True
    live[("VA", i)] = i < NVJ
    live[("KA", i)] = i >= 4 * NG
for i in range(NVJ, 37):
    Q.append(("VA", sCur, i, "home", True))
nva = 37 - NVJ
nva -= P["B4R"]
pump(max(0, nva - W))
a("s_cmp_eq_u32 s%d, 0" % sB)
a("s_cselect_b32 s15, 0, %d" % PH)
a("s_sub_u32 s15, s%d, s15" % sPq)
a("buffer_load_dwordx4 %s, v%d, %s, s15 offen sc1" % (V(QR2, 4), vQa, S(WS, 4)), tag="q4")
pump(min(W, nva))
for i in range(37):
    Q.append(("KB", sCur, i, "home", True))
a("s_cmp_eq_u32 s%d, 0" % sB)
a("s_cbranch_scc1 L_B0")
sav = (list(a.vmq), set(a.vmopt), list(fab), done_idx[0], dict(curh), deque(Q), dict(live))
stamp()
wait_tag("q4")
exact_check(range(QR2, QR2 + 4), vT)
a("s_cbranch_vccz L_Q4D")
a("s_mov_b32 s%d, s%d" % (sPf, sCur))
a("s_add_u32 s%d, s%d, %d" % (sPe, sCur, P["PF4"] * 1024))
qwait_pf("L_Q4D", KB, W)
a.label("L_Q4D")
qbuild(QR2)
stamp()
qload(0)
NB4 = [0]


def _h4(i):
    n = ({0: 2, 2: 1, 5: 1, 8: 1} if P["XB"] else {0: 2, 3: 1, 7: 1}).get(i, 0)
    pump(n, paced=False)
    NB4[0] += n


qk_burst("KB", list(range(10)), hook=_h4, release=True)
softmax()


def _p4(i):
    free("VB", i)
    if i in ((0, 3, 6, 9) if P["XB"] else (0, 4, 8)):
        pump(1, paced=False)
        NB4[0] += 1


pv_seq([(g, home("VB", 4 * g)) for g in range(10)], True, post=_p4)
publish(1, -1)
stamp()
a("s_cmp_eq_u32 s%d, 4" % sB)
a("s_cbranch_scc1 L_FIN")
a("s_branch L_B1")
a.label("L_B0")
end_state = (list(a.vmq), set(a.vmopt), list(fab), done_idx[0], dict(curh), deque(Q), dict(live))
a.vmq[:], a.vmopt, fab[:], done_idx[0] = sav[0], sav[1], sav[2], sav[3]
curh.update(sav[4]); Q.clear(); Q.extend(sav[5]); live.update(sav[6])
for g in range(10):
    free("KB", g); free("VB", g)
qload(0)
pump(NB4[0])
if NG:
    qcheck(0, True)
    wait_tag("old")
    qk_early()
a.drain()
a.label("L_B1")
a.vmq[:], a.vmopt, fab[:] = end_state[0], end_state[1], end_state[2]
done_idx[0] = sav[3]
Q.clear(); Q.extend(end_state[5]); live.update(end_state[6])
curh.update(K=None, V=None, m0=None)
lgq.clear()

STG1 = [home("VB", 24), home("VB", 28), home("VB", 32)]
for g in (6, 7, 8):
    for i in range(4 * g, 4 * g + 4):
        live[("VB", i)] = True
pump(1)
qcheck(0, True)
stamp()
wait_tag("old")


def va_ready(g):
    while any((not callable(it)) and it[0] == "VA" and it[2] // 4 == g for it in Q):
        pump(1)
    if 4 * g + 3 >= NVJ:
        wait_tag("VA%d" % g)


for g in range(3):
    va_ready(g)
    stage(g, STG1[g])
qk_burst("KA", list(range(NG, 10)), hook=lambda i: pump(1) if i in (0, 3, 6, 9) else None)
for g in range(NG):
    a("v_mov_b32 %s, %s" % (V(SS[g]), V(SX[g])))
softmax()
pump(1)


def _pre1(i):
    wait_lg("st%d" % i)


def _post1(i):
    if i + 3 < 10:
        va_ready(i + 3)
        stage(i + 3, STG1[i % 3])
    if i in ((2, 5, 8) if P["XB"] else (3, 7)):
        pump(1)


pv_seq([(g, STG1[g % 3]) for g in range(10)], True, pre=_pre1, post=_post1)
publish(0, 0)
stamp()
for g in (6, 7, 8):
    free("VB", g)

a("s_add_u32 s%d, s%d, 0x%x" % (sNxt, sCur, BATCH))
a("s_cmp_lt_u32 s%d, 3" % sB)
a("s_cselect_b32 s%d, s%d, 0" % (KA + 2, sNRK))
a("s_cselect_b32 s%d, s%d, 0" % (VA + 2, sNRV))
pump(100)
Q2POS = P["Q2POS"]
for i in range(37):
    if i == 37 - P["NEND"]:
        Q.append(lambda: WIN.__setitem__(0, P["WEND"]))
    Q.append(("VB", sCur, i, "home", True))
for i in range(4 * NG):
    Q.append(("KA", sNxt, i, "home", True))
SPR = P["SPR"]
assert not (SPR and NG)
for i in range(36 - SPR, 36):
    live[("KS", i)] = False
    Q.append(("KS", sNxt, i, "home", True))
a("s_add_u32 s%d, s%d, %d" % (sPf, sNxt, (36 - SPR - PF) * 1024))
a("s_add_u32 s%d, s%d, %d" % (sPe, sNxt, (36 - SPR) * 1024))
a("s_mov_b32 s%d, 0" % sFl)
a("s_add_u32 s15, s%d, %d" % (sPq, PH))
TURBO, TG0, TG1 = P["TURBO"], P["TG0"], P["TG1"]
nissued = 0
tpolls = []
if TURBO:
    assert landed("KB0")
    for r in range(4):
        a("v_mov_b32 %s, -1" % V(QR2 + r))
    pump(4 * TG0)
    nissued = 4 * TG0
    tdone = done_idx[0]
    tstate = {}
    for g in range(TG0, TG1):
        a("buffer_load_dwordx4 %s, v%d, %s, s15 offen sc1" % (V(QR2, 4), vQa, S(WS, 4)))
        tpolls.append(len(a.vmq) - 1)
        pump(4)
        nissued += 4
        if g == TG0:
            tstate = (deque(Q), dict(live))
        exact_check(range(QR2, QR2 + 4), vT)
        a("s_cbranch_vccz L_TB%d" % (g + 1))
    assert nissued <= Q2POS - W
pump(Q2POS - W - nissued)
a("buffer_load_dwordx4 %s, v%d, %s, s15 offen sc1" % (V(QR2, 4), vQa, S(WS, 4)), tag="q")
tpolls.append(len(a.vmq) - 1)
pump(W)
stamp()
wait_tag("q")
exact_check(range(QR2, QR2 + 4), vT)
a("s_cbranch_vccz L_Q2D")
sav = (list(a.vmq), set(a.vmopt), list(fab), done_idx[0], dict(curh), deque(Q), dict(live))
pump(100)
a("s_mov_b32 s%d, 2" % sFl)
qwait_pf("L_Q2D")
if TURBO:
    live.update(tstate[1])
    for it in tstate[0]:
        if callable(it):
            continue
        if it[0] == "VB" and it[2] % 4 == 0 and it[2] // 4 <= TG1:
            a.label("L_TB%d" % (it[2] // 4))
            curh.update(K=None, V=None, m0=None)
        a("s_waitcnt vmcnt(%d)" % (TURBO - 1))
        load_tile(*it, False)
    stamp()
    a("s_mov_b32 s%d, 1" % sFl)
a.vmq[:], a.vmopt, fab[:], done_idx[0] = sav[0], sav[1], sav[2], sav[3]
if TURBO:
    done_idx[0] = tdone
    a.vmopt.update(tpolls)
Q.clear(); Q.extend(sav[5]); live.update(sav[6])
curh.update(K=None, V=None, m0=None)
a.label("L_Q2D")
qbuild(QR2)
stamp()
wait_tag("KB9")


if NG:
    qload(4)


def cpump(n, paced=False):
    if not Q:
        return
    lab = a.newlabel("H2")
    a("s_cmp_lg_u32 s%d, 0" % sFl)
    rawbr("s_cbranch_scc1 %s" % lab)
    st0, dn0 = a.st, done_idx[0]
    pump(n, paced=paced)
    a.st, done_idx[0] = st0, dn0
    a.label(lab)


NREST = 37 - Q2POS
qk_burst("KB", list(range(10)), hook=lambda i: cpump(-(-NREST // 3)) if i in (1, 4, 7) else None)
softmax()
assert not any((not callable(it)) and it[0] == "VB" for it in Q)
pv_seq([(x, home("VB", 4 * x)) for x in range(10)], True, pre=lambda i: wait_tag("VB%d" % i),
       post=lambda i: cpump(1) if i in (0, 3, 6) else None)
publish(1, 1)
stamp()
cpump(100, paced=True)
curh.update(K=None, V=None, m0=None)
a("s_cmp_lt_u32 s%d, 3" % sB)
a("s_cselect_b32 s%d, s%d, 0" % (KB + 2, sNRK))
if NG or not P["NOW0"]:
    waitvm(0)
else:
    assert all(i <= done_idx[0] for i in tpolls)
    a("s_cmp_lg_u32 s%d, 2" % sFl)
    rawbr("s_cbranch_scc1 L_NW0")
    a("s_waitcnt vmcnt(0)")
    a.label("L_NW0")
for r in range(4):
    a("v_mov_b32 %s, -1" % V(QR2 + r))
if NG:
    a("s_cmp_eq_u32 s%d, 3" % sB)
    a("s_cbranch_scc1 L_NOG2")
    qcheck(4, True)
    qk_early()
    a.drain()
    a.label("L_NOG2")
    a("s_mov_b32 s15, s%d" % (KA + 2))
    a("s_mov_b32 s%d, s%d" % (KA + 2, sNRK))
    WIN[0] = P["WG3"]
    for i in range(4 * NG):
        Q.append(("KA", sCur, i, "home", True))
    pump(100)
    a("s_mov_b32 s%d, s15" % (KA + 2))
a("s_add_u32 s15, s%d, %d" % (sPq, 2 * PH))
qwait_pf("L_Q3D", wot=P["WOT"])
a.label("L_Q3D")

WIN[0] = W
qbuild(QR2)
curh.update(K=None, V=None, m0=None)
stamp()
STG3 = [home("KA", 24), home("KA", 28), home("KA", 32)]
F0 = 36 - SPR - PF
FQ = deque([("KA", sNxt, i, "home", True) for i in list(range(4 * NG, min(F0, 4 * NG + 4))) + [36] + list(range(4 * NG + 4, F0))] +
           [("VA", sNxt, i, "home", True) for i in range(NVJ)])
LQ = deque([("KA", sNxt, i, "home", False) for i in range(F0, 36 - SPR)])
order3 = [NG, 6, 9, 7, 8] + list(range(NG + 1, 6)) + list(range(NG))
if P["L2B"] == 3:
    g0 = F0 // 4
    rest3 = [g for g in range(6) if g not in (g0, g0 + 1)]
    rest3 = [g for g in rest3 if g > g0] + [g for g in rest3 if g < g0]
    order3 = [g0, 6, g0 + 1, 7, 8] + rest3 + [9]
assert F0 >= 4 * NG


def take(q, n):
    for it in list(q):
        if n == 0:
            break
        if not live.get((it[0], it[2]), False):
            q.remove(it)
            load_tile(*it, False)
            n -= 1


def _h3(i):
    g = order3[i]
    if g in (6, 7, 8):
        for x in range(4 * g, 4 * g + 4):
            live[("KA", x)] = True
        stage(g - 6, STG3[g - 6])
    if i in (4, 5, 6):
        wait_lg("st%d" % (i - 4))
        free("VA", i - 4)
    if P["L2B"] == 3:
        take(LQ, P["L2N"] if i < P["L2E"] else 0)
        take(FQ, {P["L2E"]: 4, P["L2E"] + 1: W - 4}.get(i, 0))
        return
    take(FQ, {0: 4, 2: 1, 4: W - 5, 7: 1, 9: 1}.get(i, 0))
    if P["L2B"] == 1:
        take(LQ, 2)


qk_burst("KA", order3, hook=_h3, release=True, pre=lambda g: wait_tag("KA%d" % g) if g < NG else None)
softmax()


def _post3(i):
    if i >= 3:
        free("VA", i)
    if i + 3 < 10:
        stage(i + 3, STG3[i % 3])
    if i in (0, 3, 6, 9):
        take(FQ, 1)
    if P["L2B"] in (1, 2) and i < 8:
        take(LQ, 1)


pv_seq([(g, STG3[g % 3]) for g in range(10)], True, pre=_pre1, post=_post3)
publish(0, 2)
if P["PBAR"]:
    a("s_barrier")
stamp()
for g in (6, 7, 8):
    free("KA", g)
for i in range(36 - SPR, 36):
    wait_tag("KS8")
    for r in (0, 2):
        a("v_mov_b64 %s, %s" % (V(home("KA", i) + r, 2), V(home("KS", i) + r, 2)))
assert not Q
for n_, it in enumerate(FQ):
    if n_ == P["CUD"]:
        Q.append(lambda: WIN.__setitem__(0, P["WCU"]))
    Q.append(it)
    if n_ >= P["CUD"] and LQ:
        for _ in range(P["L2R"]):
            if LQ:
                Q.append(LQ.popleft())
        if not LQ:
            assert len(FQ) - n_ > W
            Q.append(lambda: WIN.__setitem__(0, W))
assert not LQ
pump(100)
a("s_add_u32 s%d, s%d, 1" % (sB, sB))
a("s_mov_b32 s%d, s%d" % (sCur, sNxt))
a("s_add_u32 s%d, s%d, %d" % (sPq, sPq, 4 * PH))
a("s_add_u32 s%d, s%d, %d" % (sPa, sPa, 4 * PH))
stamp()
a("s_branch L_J")

a.label("L_COMM")
lgq.clear()
a("s_waitcnt lgkmcnt(0)")
common_srds()
vL8, vML, vM01, vHa, vHc, vOw, vOr, vX1, vX3, vG16, vL4, vC, vWL, vL16, vY1, vY2 = 1, 2, 3, 4, 5, 6, 7, 8, 9, 10, 11, 12, 16, 17, 18, 19
SET, TMP, AF, AC, STG, XF, G, XC = 20, 36, 52, 68, 84, 100, 108, 188
sP, sHA, sHB, sN, sHBm, sHC, sX, sTy, sMode, sGty, sWF, sHAo, sHBo, sHCo = 6, 7, 8, 9, 10, 11, 12, 13, 14, 15, 42, 43, 68, 69
SEL_LO, SEL_HI = 78, 77


def WQF(mat, k, ct):
    n = mat * 40 + 2 * k + ct
    return 256 + 4 * n if n < 64 else 192 + 4 * (n - 64)


def in_lds(i):
    return (i & 1) and i < 38


def greg(i):
    t, k = i // 4, i % 4
    return XC if i == 39 else G + 40 * (k // 2) + 4 * t


a("s_mov_b32 s%d, 0x05040100" % SEL_LO)
a("s_mov_b32 s%d, 0x07060302" % SEL_HI)
srd(OUT, 36, "5120")
a("v_lshlrev_b32 v%d, 2, v47" % vL4)
a("v_lshlrev_b32 v%d, 4, v47" % vL16)
a("v_lshrrev_b32 v44, 2, v47")
a("v_lshlrev_b32 v44, 13, v44")
a("v_and_b32 v43, 3, v47")
a("v_lshl_add_u32 v44, v43, 4, v44")
a("s_lshl_b32 s76, s%d, 8" % sH)
a("s_lshl_b32 s%d, s%d, 6" % (sT, sWv))
a("s_add_u32 s76, s76, s%d" % sT)
a("s_mul_i32 s71, s%d, 38912" % sWv)
a("s_add_u32 s71, s71, %d" % L_WO)
a("v_lshlrev_b32 v48, 9, v45")
a("v_lshl_add_u32 v48, v46, 2, v48")
a("v_add_u32 v48, s71, v48")
RAW = [52, 92, 132]
WT2 = 44


def wq_issue(n):
    mat, bt = n // 4, n % 4
    for r in range(10):
        a("s_add_u32 s%d, s76, %d" % (sT, (160 * bt + 16 * r) * 8192))
        a("s_add_u32 m0, s71, %d" % ((n % 3) * 10240 + r * 1024))
        a("buffer_load_dwordx4 v44, %s, s%d offen %slds" % (S(WT2 + 4 * mat, 4), sT, "nt " if P["WQNT"] else ""), tag="wq%d" % n)


def wq_read(n):
    for kk in range(5):
        a("v_add_u32 v49, %d, v48" % ((n % 3) * 10240 + kk * 2048))
        for e in range(0, 8, 2):
            a("ds_read2_b32 %s, v49 offset0:%d offset1:%d" % (V(RAW[0] + 8 * kk + e, 2), 16 * e, 16 * e + 16))
        if kk == 2:
            a("s_waitcnt lgkmcnt(6)")


def wq_perm(n):
    mat, bt = n // 4, n % 4
    tq = 92
    c = 0
    for kk in range(5):
        a("s_waitcnt lgkmcnt(%d)" % min(15, 4 * (4 - kk)))
        for ct in range(2):
            for e in range(0, 8, 2):
                r0 = RAW[0] + 8 * kk + e
                dst = WQF(mat, 5 * bt + kk, ct) + e // 2
                sel = SEL_HI if ct else SEL_LO
                if dst < 256:
                    a("v_perm_b32 v%d, v%d, v%d, s%d" % (dst, r0 + 1, r0, sel))
                else:
                    a("v_perm_b32 v%d, v%d, v%d, s%d" % (tq + c % 4, r0 + 1, r0, sel))
                    a("v_accvgpr_write_b32 %s, v%d" % (V(dst), tq + c % 4))
                    c += 1


def wq_step(n):
    a.wait_tag("wq%d" % n)
    wq_read(n)
    wq_perm(n)
    if n + 3 < 8:
        wq_issue(n + 3)


def comm_setup():
    a("v_lshlrev_b32 v%d, 3, v47" % vL8)
    a("v_and_b32 v43, 7, v47")
    a("v_cmp_eq_u32 vcc, 7, v43")
    a("v_min_u32 v43, 6, v43")
    a("v_lshlrev_b32 v%d, 7, v43" % vML)
    a("v_add_u32 v%d, 3584, v%d" % (vML, vML))
    a("v_cndmask_b32 v%d, 1.0, 0, vcc" % vM01)
    a("v_mul_u32_u24 v43, 1280, v45")
    a("v_lshl_add_u32 v%d, v46, 4, v43" % vHa)
    a("v_lshl_add_u32 v%d, v46, 3, v43" % vHc)
    a("v_add_u32 v%d, 512, v%d" % (vHc, vHc))
    a("s_mul_i32 s%d, s%d, 640" % (sT2, sWv))
    a("s_add_u32 s%d, s%d, %d" % (sT2, sT2, L_YB))
    a("v_add_u32 v%d, s%d, v%d" % (vOw, sT2, vL4))
    a("v_add_u32 v%d, s%d, v%d" % (vY1, sT2, vL16))
    a("v_add_u32 v%d, s%d, v%d" % (vY2, sT2, vL8))
    a("v_lshlrev_b32 v%d, 4, v45" % vG16)
    a("v_add_u32 v%d, s%d, v%d" % (vOr, sT2, vG16))
    a("s_mul_i32 s%d, s%d, 320" % (sT2, sWv))
    a("v_lshlrev_b32 v%d, 4, v46" % vX1)
    a("v_and_b32 v43, 1, v45")
    a("v_lshl_add_u32 v%d, v43, 2, v%d" % (vX1, vX1))
    a("v_lshrrev_b32 v43, 1, v45")
    a("v_lshl_add_u32 v%d, v43, 1, v%d" % (vX1, vX1))
    a("v_add_u32 v%d, s%d, v%d" % (vX1, sT2, vX1))
    a("v_lshlrev_b32 v%d, 2, v46" % vX3)
    a("v_lshl_add_u32 v%d, v43, 1, v%d" % (vX3, vX3))
    a("s_add_u32 s%d, s%d, 256" % (sT2, sT2))
    a("v_add_u32 v%d, s%d, v%d" % (vX3, sT2, vX3))
    a("v_add_u32 v%d, s71, v%d" % (vWL, vL16))
    a("s_mul_i32 s%d, s73, 163840" % sWF)
    a("s_mul_i32 s%d, s72, 320" % sT2)
    a("s_add_u32 s%d, s%d, s%d" % (sWF, sWF, sT2))
    a("s_movk_i32 s74, 560")
    a("s_movk_i32 s70, 640")
    for r in range(4):
        a("v_mov_b32 v%d, 0" % (vC + r))


a("s_andn2_b32 s73, s%d, 3" % sH)
a("s_add_u32 s73, s73, s%d" % sWv)
a("s_and_b32 s72, s%d, 3" % sH)
a("s_mul_i32 s%d, s73, 4608" % sHAo)
a("s_mul_i32 s%d, s%d, 5120" % (sHBo, sWv))
a("s_add_u32 s%d, s%d, %d" % (sHBo, sHBo, HB0))
a("s_lshl_b32 s%d, s76, 1" % sHCo)
a("s_add_u32 s%d, s%d, %d" % (sHCo, sHCo, HC0))
a("s_mul_i32 s75, s72, 5120")
a("s_lshr_b32 s%d, s%d, 2" % (sT2, sH))
a("s_mul_i32 s%d, s%d, 640" % (sT2, sT2))
a("s_add_u32 s75, s75, s%d" % sT2)
a("s_add_u32 s75, s75, %d" % HB0)
a("v_add_u32 v40, s75, v%d" % vL16)
a("v_subrev_u32 v41, 640, v%d" % vL16)
a("v_add_u32 v41, s%d, v41" % sHCo)
a("v_cmp_gt_u32 vcc, 40, v47")
a("v_cndmask_b32 v40, v41, v40, vcc")
for r in range(4):
    a("v_mov_b32 v%d, -1" % (36 + r))
a("s_mov_b32 exec_hi, 0xfff")
for p in range(16):
    a("s_mov_b32 s%d, %d" % (sT, p * PH))
    a("buffer_store_dwordx4 v[36:39], v40, %s, s%d offen sc1" % (S(WS, 4), sT))
a("s_mov_b64 exec, -1")
srd(WT, 16, "5120")
a("s_mul_i32 s%d, s%d, 1280" % (sT, sWv))
for r in range(5):
    a("buffer_load_dword v%d, v%d, %s, s%d offen offset:%d" % (20 + r, vL4, S(WT, 4), sT, 256 * r))


def _between():
    comm_setup()
    a("s_waitcnt vmcnt(%d)" % (0 if P["CDEL"] else 30))
    a("s_mul_i32 s%d, s%d, 1280" % (sT2, sWv))
    a("v_add_u32 v43, s%d, v%d" % (sT2, vL4))
    a("v_mov_b32 v42, 0x3f803f80")
    for r in range(5):
        a("ds_write_b32 v43, v%d offset:%d" % (20 + r, L_X + 256 * r))
        a("ds_write_b32 v%d, v42 offset:%d" % (vL4, L_X + 4 * 1280 + 256 * r))
    a("s_waitcnt lgkmcnt(0)")
    a("s_barrier")
    a("s_cmp_lg_u32 s%d, 0" % sWv)
    a("s_cbranch_scc1 L_CNF")
    ready_add(42, vL4)
    a.label("L_CNF")


WOS = [52, 56]
wa, wb = TMP + 4, TMP + 5


def wo_addr():
    a("v_mad_u32_u24 v%d, v%d, s74, v%d" % (wa, vG16, vHa))
    a("v_and_b32 v%d, 63, v%d" % (wb, vL4))
    a("v_add_u32 v%d, 256, v%d" % (wb, wb))
    a("v_mad_u32_u24 v%d, v%d, s70, v%d" % (wb, vG16, wb))


def wo_issue(srdn, k, R, tag=None):
    for e in range(8):
        if e % 4 == 0:
            a("s_add_u32 s%d, s%d, %d" % (sT, sWF, (32 * k + e) * 1280))
        a("buffer_load_dwordx4 %s, v%d, %s, s%d offen offset:%d" % (V(R + 4 * e, 4), wa, S(srdn, 4), sT, (e % 4) * 1280), tag=tag)
        a("buffer_load_dword v%d, v%d, %s, s%d offen offset:%d" % (R + 32 + e, wb, S(srdn, 4), sT, (e % 4) * 1280), tag=tag)


def wo_perm(R, dst_of):
    for t in range(10):
        for e in range(0, 8, 2):
            if t < 8:
                r0, r1 = R + 4 * e + t // 2, R + 4 * e + 4 + t // 2
            else:
                r0, r1 = R + 32 + e, R + 33 + e
            a("v_perm_b32 v%d, v%d, v%d, s%d" % (dst_of(t) + e // 2, r1, r0, SEL_HI if t & 1 else SEL_LO))


def wo_to_lds(mat):
    FO = 52
    for n_, k in enumerate((1, 3)):
        a.wait_tag("wo%d_%d" % (mat, k))
        wo_perm(G + 40 * n_, lambda t: XF + 4 * mat if (t == 9 and k == 3) else FO + 4 * t)
        for t in range(10):
            i = 4 * t + k
            if in_lds(i):
                a("ds_write_b128 v%d, %s offset:%d" % (vWL, V(FO + 4 * t, 4), mat * 19456 + (i // 2) * 1024))
        a("s_waitcnt lgkmcnt(0)")


def call_wq(ty, slot, mode, blk):
    a("s_mov_b32 s%d, %d" % (sTy, ty))
    a("s_mov_b32 s%d, %d" % (sX, L_X + 1280 * slot))
    a("s_mov_b32 s%d, %d" % (sMode, mode))
    a("s_add_u32 s%d, s%d, %d" % (sHC, sHCo, blk * PH))
    a("s_call_b64 %s, R_WQ" % S(RA, 2))


a.vmq[:] = []
a.vmopt.clear()
srd(WT2, 22, "0x%x" % (640 * 8192))
srd(WT2 + 4, 32, "0x%x" % (640 * 8192))
srd(WOS[0], 24, "0x%x" % (4096 * 1280))
srd(WOS[1], 34, "0x%x" % (4096 * 1280))
if P["CDEL"]:
    _between()
for n in range(3):
    wq_issue(n)
if not P["CDEL"]:
    _between()
wo_addr()
for n in range(4):
    wq_step(n)
    if n == 0:
        wo_issue(WOS[0], 1, G, "wo0_1")
        wo_issue(WOS[0], 3, G + 40, "wo0_3")
stamp()
call_wq(1, 4, 1, 0)
call_wq(1, 0, 0, 0)
stamp()
for n in range(4, 8):
    wq_step(n)
stamp()
wo_to_lds(0)
wo_issue(WOS[1], 1, G, "wo1_1")
wo_issue(WOS[1], 3, G + 40, "wo1_3")
call_wq(0, 4, 1, 0)
for b in range(1, 4):
    call_wq(1, b, 0, 4 * b)
stamp()
wo_to_lds(1)
a("s_barrier")
stamp()

a("v_and_b32 v44, 56, v%d" % vL8)
a("v_lshlrev_b32 v44, 2, v44")
a.label("L_AFW")
a("buffer_load_dword v42, v44, %s, 0 offen offset:4 sc1" % S(DBG, 4))
a("s_waitcnt vmcnt(0)")
a("v_and_b32 v43, 0xffff, v42")
a("v_cmp_ne_u32 vcc, 32, v43")
a("s_cbranch_vccz L_AFD")
budget("L_AFD", "L_AFW", 2)
a.label("L_AFD")
ready_local(42)
a("s_mov_b32 s%d, 0" % sN)
a("s_mov_b32 s%d, 0" % sMode)
a("s_mov_b32 s%d, 2" % sGty)
TAB = 0xfedbca9786534210 if P["ORD"] else 0xfbedc7a983654210
a("s_mov_b32 s18, 0x%08x" % (TAB & 0xffffffff))
a("s_mov_b32 s19, 0x%08x" % (TAB >> 32))
a("s_mov_b32 s%d, 0x%x" % (WT + 2, 4096 * 1280))

ta, ts = TMP + 14, TMP + 15
DQ, XS, s2, s1, one = AC, AF, TMP, TMP + 1, TMP + 2


def wq_pre():
    a("v_add_u32 v%d, s%d, v%d" % (ta, sX, vG16))
    a("v_add_u32 v%d, s%d, v%d" % (ts, sX, vL4))
    a("v_mov_b32 v%d, 0" % s2)
    a("v_mov_b32 v%d, 0" % s1)
    a("v_mov_b32 v%d, 0x3f803f80" % one)


cM, cL, cW, cX, cA = TMP, TMP + 1, TMP + 2, TMP + 3, TMP + 4
tLW, tx1, tx3, xo = TMP + 8, TMP + 9, TMP + 10, TMP + 11
a.label("L_CH")
lgq.clear()
a("s_lshl_b32 s%d, s%d, 2" % (sT, sN))
a("s_lshr_b64 s[16:17], s[18:19], s%d" % sT)
a("s_and_b32 s%d, s16, 15" % sP)
a("s_and_b32 s%d, s%d, 1" % (sTy, sP))


def g_issue(ty):
    a("s_cmp_eq_u32 s%d, 0" % ty)
    a("s_cselect_b32 s%d, s%d, s%d" % (WT, WOS[0], WOS[1]))
    a("s_cselect_b32 s%d, s%d, s%d" % (WT + 1, WOS[0] + 1, WOS[1] + 1))
    wo_addr()
    wo_issue(WT, 2, G)
    wo_issue(WT, 0, G + 40)


a("s_cmp_eq_u32 s%d, s%d" % (sTy, sGty))
a("s_cbranch_scc1 L_GOK")
a("s_cmp_eq_u32 s%d, 3" % sGty)
a("s_cbranch_scc1 L_GIS")
g_issue(sTy)
a.label("L_GIS")
a("s_mov_b32 s%d, s%d" % (sGty, sTy))
a("s_cmp_eq_u32 s%d, 0" % sTy)
a("s_cselect_b64 vcc, -1, 0")
for r in range(4):
    a("v_cndmask_b32 v%d, v%d, v%d, vcc" % (XC + r, XF + 4 + r, XF + r))
a("s_waitcnt vmcnt(16)")
wo_perm(G, lambda t: AF + 4 * t)
a("s_waitcnt vmcnt(0)")
wo_perm(G + 40, lambda t: G + 4 * t)
for r in range(0, 40, 2):
    a("v_mov_b64 %s, %s" % (V(G + 40 + r, 2), V(AF + r, 2)))
a.label("L_GOK")
if DIAG == 2:
    stamp()
a("s_mul_i32 s%d, s%d, %d" % (sT, sP, PH))
a("s_add_u32 s%d, s%d, s%d" % (sHA, sT, sHAo))
a("s_add_u32 s%d, s%d, s%d" % (sHB, sT, sHBo))
a("s_add_u32 s%d, s%d, s75" % (sHBm, sT))
a("s_add_u32 s%d, s%d, s%d" % (sHC, sT, sHCo))
a("s_add_u32 s%d, s%d, %d" % (sHC, sHC, PH))
a("s_lshr_b32 s%d, s%d, 2" % (sX, sP))
a("s_mul_i32 s%d, s%d, 1280" % (sX, sX))
a("s_mul_i32 s%d, s%d, 19456" % (sT, sTy))
a("v_add_u32 v%d, s%d, v%d" % (tLW, sT, vWL))
a("v_add_u32 v%d, s%d, v%d" % (tx1, sX, vX1))
a("v_add_u32 v%d, s%d, v%d" % (tx3, sX, vX3))
ds("ds_read_u16 v%d, v%d" % (xo, tx1))
ds("ds_read_u16 v%d, v%d offset:8" % (xo + 1, tx1))
ds("ds_read_u16 v%d, v%d" % (xo + 2, tx3))
SLOT = [STG, STG + 4, STG + 8, STG + 12, SET, SET + 4, SET + 8, SET + 12]


def lfrag(n):
    ds("ds_read_b128 %s, v%d offset:%d" % (V(SLOT[n % 8], 4), tLW, n * 1024), "lf%d" % n)


for n in range(4):
    lfrag(n)
wait_lg()
for r in range(3):
    a("v_lshlrev_b32 v%d, 16, v%d" % (xo + r, xo + r))
if P["TCH"]:
    a("v_lshrrev_b32 v%d, 2, v%d" % (AF, vL4))
    a("v_and_b32 v%d, 32, v%d" % (AF + 1, AF))
    a("v_add_u32 v%d, v%d, v%d" % (AF, AF, AF + 1))
    a("v_mul_u32_u24 v%d, 1280, v%d" % (AF, AF))
    a("s_mov_b32 s21, 0")
a.label("HA_L")
a("buffer_load_dwordx2 %s, v%d, %s, s%d offen sc1" % (V(SET + 14, 2), vML, S(WS, 4), sHA))
for p in range(7):
    a("buffer_load_dwordx2 %s, v%d, %s, s%d offen offset:%d sc1" % (V(SET + 2 * p, 2), vL8, S(WS, 4), sHA, p * 512))
ml = SET + 14
a("s_waitcnt vmcnt(7)")
a("v_max_f32_dpp v%d, v%d, v%d %s %s" % (cM, ml, ml, QP[0], DPPM))
a("v_mul_f32 v%d, v%d, v%d" % (cL, ml + 1, vM01))
a("v_max_f32_dpp v%d, v%d, v%d %s %s" % (cM, cM, cM, QP[1], DPPM))
a("v_max_f32_dpp v%d, v%d, v%d %s %s" % (cM, cM, cM, QP[2], DPPM))
a("v_sub_f32 v%d, v%d, v%d" % (cW, ml, cM))
a("v_exp_f32 v%d, v%d" % (cW, cW))
a("v_mul_f32 v%d, v%d, v%d" % (cL, cL, cW))
a("s_waitcnt vmcnt(0)")
lsum = ["v_add_f32_dpp v%d, v%d, v%d %s %s" % (cL, cL, cL, q, DPPM) for q in QP[:3]]
for p in range(7):
    for c in range(2):
        d = cA + 2 * (p & 1) + c
        op = "v_mul_f32_dpp" if p < 2 else "v_fmac_f32_dpp"
        a("%s v%d, v%d, v%d row_newbcast:%d %s" % (op, d, cW, SET + 2 * p + c, p, DPPM))
    if p in (0, 2, 4):
        a(lsum[p // 2])
    if p == 5:
        a("v_rcp_f32 v%d, v%d" % (cL, cL))
pk(cA, cA, cA + 2)
a("v_mul_f32 v%d, v%d, v%d" % (cA, cA, cL))
a("v_mul_f32 v%d, v%d, v%d" % (cA + 1, cA + 1, cL))
a("v_cmp_u_f32 vcc, v%d, v%d" % (cA, cA + 1))
a("v_cvt_pk_bf16_f32 v%d, v%d, v%d" % (cA, cA, cA + 1))
rawbr("s_cbranch_vccz HA_P")
exact_check(range(SET, SET + 16), cX)
a("s_cbranch_vccz HA_P")
if P["TCH"]:
    budget("HA_P", None)
    a("s_add_u32 s21, s21, 1")
    a("s_and_b32 s%d, s21, %d" % (sT, P["TCH"] - 1))
    a("s_cmp_lg_u32 s%d, 1" % sT)
    a("s_cbranch_scc1 HA_L")
    for m_ in range(2):
        for o in (0, 128, 256, 316):
            a("buffer_load_dword v%d, v%d, %s, s%d offen offset:%d" % (AF + 1, AF, S(WOS[m_], 4), sWF, o))
    a("s_branch HA_L")
else:
    budget("HA_P", "HA_L")
a.label("HA_P")
stamp()
ds("ds_write_b32 v%d, v%d" % (vOw, cA))
for k in range(4):
    ds("ds_read_b128 %s, v%d offset:%d" % (V(AF + 4 * k, 4), vOr, 64 * k), "af%d" % k)
for n in range(4, 8):
    lfrag(n)
ASL = [0, 1, 2, 3, 0, 1, 2, 3, 0, 1]


def ywrite(t):
    a("s_mov_b64 exec, 0xffff")
    if t < 8:
        o = 64 * (t // 4) + t % 4
        ds("ds_write2_b32 v%d, v%d, v%d offset0:%d offset1:%d" % (vY1, AC + 4 * ASL[t], AC + 4 * ASL[t + 1], o, o + 1))
    else:
        ds("ds_write2_b32 v%d, v%d, v%d offset0:128 offset1:129" % (vY2, AC + 4 * ASL[t], AC + 4 * ASL[t + 1]))
    a("s_mov_b64 exec, -1")


for i in range(40):
    t, k = i // 4, i % 4
    D = AC + 4 * ASL[t]
    wait_lg("af%d" % k)
    if in_lds(i):
        n = i // 2
        wait_lg("lf%d" % n)
        src = SLOT[n % 8]
    else:
        src = greg(i)
    mfma(D, AF + 4 * k, src, "0" if k == 0 else V(D, 4))
    if in_lds(i) and i // 2 + 8 < 19:
        lfrag(i // 2 + 8)
    if i in (13, 21, 29, 37):
        ywrite((i - 13) // 4)
ywrite(8)
wait_lg()
fstamp()
a("s_barrier")
fstamp()
a("s_cmp_lg_u32 s%d, 0" % sWv)
rawbr("s_cbranch_scc1 HB_W")
YR = SET
a("s_mov_b32 exec_hi, 0xff")
for w_ in range(4):
    a("ds_read_b128 %s, v%d offset:%d" % (V(YR + 4 * w_, 4), vY1, 640 * w_))
a("s_waitcnt lgkmcnt(2)")
pk(YR, YR, YR + 4); pk(YR + 2, YR + 2, YR + 6)
a("s_waitcnt lgkmcnt(0)")
pk(YR + 8, YR + 8, YR + 12); pk(YR + 10, YR + 10, YR + 14)
pk(YR, YR, YR + 8); pk(YR + 2, YR + 2, YR + 10)
for r in range(4):
    a("v_min_u32 v%d, -2, v%d" % (YR + r, YR + r))
a("buffer_store_dwordx4 %s, v%d, %s, s%d offen sc1" % (V(YR, 4), vL16, S(WS, 4), sHBm))
a("s_mov_b64 exec, -1")
rawbr("s_branch HB_0")
a.label("HB_W")
if P["HBW"]:
    a("s_sleep %d" % P["HBW"])
a.label("HB_0")
fstamp()
a("s_and_b32 s%d, s%d, 3" % (sT, sP))
a("s_cmp_eq_u32 s%d, 3" % sT)
rawbr("s_cbranch_scc1 L_FINAL")
a.label("HB_L")
NS = P["HBS"]
T = AF
UB = G if NS > 1 else AF + 10


def hb_issue(k):
    for p in range(2):
        U = UB + 20 * k + 10 * p
        a("buffer_load_dwordx4 %s, v%d, %s, s%d offen offset:%d sc1" % (V(U, 4), vHa, S(WS, 4), sHB, p * 640))
        a("buffer_load_dwordx4 %s, v%d, %s, s%d offen offset:%d sc1" % (V(U + 4, 4), vHa, S(WS, 4), sHB, p * 640 + 256))
        a("buffer_load_dwordx2 %s, v%d, %s, s%d offen offset:%d sc1" % (V(U + 8, 2), vHc, S(WS, 4), sHB, p * 640))


if NS > 1:
    a("s_mov_b32 s%d, 2" % sGty)
if P["HBD"]:
    a("s_sleep %d" % P["HBD"])
for k in range(NS):
    if k and P["HBSL"]:
        a("s_sleep %d" % P["HBSL"])
    hb_issue(k)
a.label("HB_R")
for k in range(NS):
    U0 = UB + 20 * k
    a("s_waitcnt vmcnt(%d)" % (6 * (NS - 1)))
    for r in range(0, 10, 2):
        pk(T + r, U0 + r, U0 + 10 + r)
    for r in (0, 2, 4, 6, 8):
        a("v_permlane32_swap_b32 v%d, v%d" % (T + r, T + r + 1))
    for r in (8, 0, 2, 4, 6):
        a("v_add_f32 v%d, v%d, v%d" % (T + r, T + r, T + r + 1))
        if r == 8:
            a("v_mov_b32 v%d, v%d" % (T + 9, T + 8))
    a("v_permlane16_swap_b32 v%d, v%d" % (T + 8, T + 9))
    a("v_permlane16_swap_b32 v%d, v%d" % (T, T + 2))
    a("v_permlane16_swap_b32 v%d, v%d" % (T + 4, T + 6))
    a("v_add_f32 v%d, v%d, v%d" % (T + 8, T + 8, T + 9))
    a("v_add_f32 v%d, v%d, v%d" % (T, T, T + 2))
    a("v_add_f32 v%d, v%d, v%d" % (T + 4, T + 4, T + 6))
    a("v_add_f32 v%d, v%d, v%d" % (T + 9, T + 8, T))
    a("v_cmp_u_f32 vcc, v%d, v%d" % (T + 9, T + 4))
    rawbr("s_cbranch_vccz HB_P")
    exact_check(range(U0, U0 + 20), cX)
    a("s_cbranch_vccz HB_P")
    budget("HB_P", None)
    hb_issue(k)
a("s_branch HB_R")
a.label("HB_P")
if DIAG != 2:
    stamp()
a("v_cvt_pk_bf16_f32 v%d, v%d, v%d" % (T + 8, T + 8, T + 8))
a("v_cvt_pk_bf16_f32 v%d, v%d, v%d" % (T, T, T + 4))
a("v_lshlrev_b32 v%d, 16, v%d" % (T + 8, T + 8))
a("v_lshlrev_b32 v%d, 16, v%d" % (T + 1, T))
a("v_and_b32 v%d, 0xffff0000, v%d" % (T + 2, T))
a("v_add_f32 v%d, v%d, v%d" % (T + 8, T + 8, xo + 2))
a("v_add_f32 v%d, v%d, v%d" % (T + 1, T + 1, xo))
a("v_add_f32 v%d, v%d, v%d" % (T + 2, T + 2, xo + 1))
a("v_cvt_pk_bf16_f32 v%d, v%d, v%d" % (cA + 1, T + 8, T + 8))
a("v_cvt_pk_bf16_f32 v%d, v%d, v%d" % (cA, T + 1, T + 2))
a("s_cmp_eq_u32 s%d, 16" % sN)
rawbr("s_cbranch_scc1 L_OUT")
a("ds_write_b16 v%d, v%d" % (tx3, cA + 1))
a("ds_write_b16 v%d, v%d" % (tx1, cA))
a("ds_write_b16_d16_hi v%d, v%d offset:8" % (tx1, cA))
wq_pre()
a("s_waitcnt lgkmcnt(0)")
fstamp()
a("s_barrier")
fstamp()
if P["EGB"]:
    a("s_add_u32 s%d, s%d, 1" % (sT, sN))
    a("s_lshl_b32 s%d, s%d, 2" % (sT, sT))
    a("s_lshr_b64 s[16:17], s[18:19], s%d" % sT)
    a("s_and_b32 s20, s16, 1")
    a("s_mov_b32 s%d, 2" % sMode)
    a("s_mov_b32 s%d, 3" % sGty)
a("s_call_b64 %s, R_WQ2" % S(RA, 2))
a("s_mov_b32 s%d, 0" % sMode)
stamp()
a("s_add_u32 s%d, s%d, 1" % (sN, sN))
a("s_branch L_CH")
a.label("L_FINAL")
a("s_barrier")
stamp()
a("s_add_u32 s%d, s%d, 1" % (sN, sN))
a("s_cmp_lt_u32 s%d, 16" % sN)
a("s_cbranch_scc1 L_CH")
a("s_cmp_gt_u32 s%d, 3" % sH)
a("s_cbranch_scc1 L_FIN")
a("s_cmp_eq_u32 s%d, 3" % sH)
a("s_cbranch_scc1 HB_L")
a("s_lshl_b32 s%d, s%d, 2" % (sT, sH))
a("s_add_u32 s%d, s%d, 3" % (sT, sT))
a("s_mul_i32 s%d, s%d, %d" % (sT, sT, PH))
a("s_add_u32 s%d, s%d, s%d" % (sHB, sT, sHBo))
a("s_mul_i32 s%d, s%d, 1280" % (sX, sH))
a("v_add_u32 v%d, s%d, v%d" % (tx1, sX, vX1))
a("v_add_u32 v%d, s%d, v%d" % (tx3, sX, vX3))
a("ds_read_u16 v%d, v%d" % (xo, tx1))
a("ds_read_u16 v%d, v%d offset:8" % (xo + 1, tx1))
a("ds_read_u16 v%d, v%d" % (xo + 2, tx3))
a("s_waitcnt lgkmcnt(0)")
for r in range(3):
    a("v_lshlrev_b32 v%d, 16, v%d" % (xo + r, xo + r))
a("s_branch HB_L")
a.label("L_OUT")
a("buffer_store_short v%d, v%d, %s, s%d offen" % (cA + 1, vX3, S(OUT, 4), sX))
a("buffer_store_short v%d, v%d, %s, s%d offen" % (cA, vX1, S(OUT, 4), sX))
a("buffer_store_short_d16_hi v%d, v%d, %s, s%d offen offset:8" % (cA, vX1, S(OUT, 4), sX))
a("s_branch L_FIN")

a.label("R_WQ")
lgq.clear()
wq_pre()
a.label("R_WQ2")
NPRE = 7
for k in range(3):
    ds("ds_read_b128 %s, v%d offset:%d" % (V(SLOT[k % 8], 4), ta, 64 * k), "xf%d" % k)
a("s_cmp_eq_u32 s%d, 0" % sTy)
rawbr("s_cbranch_scc1 WQ_B")
lg_save = list(lgq)


def stats_ops():
    ops = []
    for r in range(5):
        ops.append("v_dot2c_f32_bf16 v%d, v%d, v%d" % (s2, XS + r, XS + r))
        ops.append("v_dot2c_f32_bf16 v%d, v%d, v%d" % (s1, XS + r, one))
    ops += [
        "v_permlane32_swap_b32 v%d, v%d" % (s2, s1),
        "v_add_f32 v%d, v%d, v%d" % (s2, s2, s1),
        "v_mov_b32 v%d, v%d" % (s1, s2),
        "v_permlane16_swap_b32 v%d, v%d" % (s2, s1),
        "v_add_f32 v%d, v%d, v%d" % (s2, s2, s1),
    ]
    for q in QP:
        ops.append("v_add_f32_dpp v%d, v%d, v%d %s %s" % (s2, s2, s2, q, DPPM))
    ops += [
        "v_mul_f32 v%d, 0x%08x, v%d" % (s2, f32(1.0 / 640), s2),
        "v_mov_b32 v%d, v%d" % (s1, s2),
        "v_permlane32_swap_b32 v%d, v%d" % (s2, s1),
        "v_fma_f32 v%d, -v%d, v%d, v%d" % (s2, s1, s1, s2),
        "v_max_f32 v%d, 0, v%d" % (s2, s2),
        "v_cvt_pk_bf16_f32 v%d, v%d, v%d" % (s2, s1, s2),
        "v_lshlrev_b32 v%d, 16, v%d" % (s1, s2),
        "v_and_b32 v%d, 0xffff0000, v%d" % (s2, s2),
        "v_add_f32 v%d, 0x%08x, v%d" % (s2, f32(1e-5), s2),
        "v_cvt_pk_bf16_f32 v%d, v%d, v%d" % (s2, s2, s2),
        "v_and_b32 v%d, 0xffff0000, v%d" % (s2, s2),
        "v_sqrt_f32 v%d, v%d" % (s2, s2),
        "v_cvt_pk_bf16_f32 v%d, v%d, v%d" % (s2, s2, s2),
        "v_and_b32 v%d, 0xffff0000, v%d" % (s2, s2),
        "v_rcp_f32 v%d, v%d" % (s2, s2),
    ]
    return ops


for mat in (0, 1):
    if mat == 1:
        a.label("WQ_B")
        lgq[:] = lg_save
    for k in range(3, NPRE):
        ds("ds_read_b128 %s, v%d offset:%d" % (V(SLOT[k % 8], 4), ta, 64 * k), "xf%d" % k)
    ds("ds_read2st64_b32 %s, v%d offset0:0 offset1:1" % (V(XS, 2), ts))
    ds("ds_read2st64_b32 %s, v%d offset0:2 offset1:3" % (V(XS + 2, 2), ts))
    ds("ds_read_b32 v%d, v%d offset:1024" % (XS + 4, ts), "xs")
    so = stats_ops() + ["v_mul_f32 v%d, v%d, v%d" % (s1, s1, s2),
                        "v_mul_f32 v%d, v%d, v%d" % (XS, s1, vC + 2 * mat),
                        "v_mul_f32 v%d, v%d, v%d" % (XS + 1, s1, vC + 2 * mat + 1)]
    for k in range(20):
        if k < 3 or k % 2 == 0:
            wait_lg("xf%d" % min(19, k + (1 if k >= 3 else 0)))
        wait_lg("xf%d" % k)
        for ct in range(2):
            mfma(DQ + 4 * ct, SLOT[k % 8], WQF(mat, k, ct), "0" if k == 0 else V(DQ + 4 * ct, 4))
            if ct == 1 and k + NPRE < 20:
                ds("ds_read_b128 %s, v%d offset:%d" % (V(SLOT[(k + NPRE) % 8], 4), ta, 64 * (k + NPRE)), "xf%d" % (k + NPRE))
            if k >= 3:
                if k == 3 and ct == 0:
                    wait_lg("xs")
                for _ in range(2 if k >= 13 else 1):
                    if so:
                        a(so.pop(0))
    for op in so:
        a(op)
    Cr = vC + 2 * mat
    lab = a.newlabel("WQC")
    a("s_cmp_eq_u32 s%d, 1" % sMode)
    rawbr("s_cbranch_scc1 %s" % lab)
    a("s_mov_b64 exec, 0xffff")
    a("s_cmp_eq_u32 s%d, 0" % sLoc)
    a("v_fma_f32 v%d, v%d, v%d, -v%d" % (DQ, DQ, s2, XS))
    a("v_fma_f32 v%d, v%d, v%d, -v%d" % (DQ + 4, DQ + 4, s2, XS + 1))
    a("v_cvt_pk_bf16_f32 v%d, v%d, v%d" % (DQ, DQ, DQ + 4))
    a("v_min_u32 v%d, -2, v%d" % (DQ, DQ))
    lab2 = a.newlabel("QLOC")
    rawbr("s_cbranch_scc1 %s" % lab2)
    a("buffer_store_dword v%d, v%d, %s, s%d offen" % (DQ, vL4, S(WS, 4), sHC))
    a("s_mov_b64 exec, -1")
    a("s_setpc_b64 %s" % S(RA, 2))
    a.label(lab2)
    a("buffer_store_dword v%d, v%d, %s, s%d offen sc1" % (DQ, vL4, S(WS, 4), sHC))
    a("s_mov_b64 exec, -1")
    a("s_setpc_b64 %s" % S(RA, 2))
    a.label(lab)
    a.nop(8)
    a("v_mov_b32 v%d, v%d" % (Cr, DQ))
    a("v_mov_b32 v%d, v%d" % (Cr + 1, DQ + 4))
    a("s_setpc_b64 %s" % S(RA, 2))

a.label("L_FIN")
if DIAG:
    stamp()
    a("v_mbcnt_lo_u32_b32 v1, -1, 0")
    a("v_mbcnt_hi_u32_b32 v1, -1, v1")
    a("v_lshlrev_b32 v1, 2, v1")
    a("s_lshl_b32 s%d, s%d, 3" % (sT, sH))
    a("s_add_u32 s%d, s%d, s%d" % (sT, sT, sS))
    a("s_lshl_b32 s%d, s%d, 2" % (sT, sT))
    a("s_add_u32 s%d, s%d, s%d" % (sT, sT, sWv))
    a("s_lshl_b32 s%d, s%d, 8" % (sT, sT))
    a("s_add_u32 s%d, s%d, 0x%x" % (sT, sT, WS_DIAG))
    a("buffer_store_dword v0, v1, %s, s%d offen" % (S(WS, 4), sT))
a.label("L_END")
a("s_endpgm")

DESIGN = """
"""
ref = open(os.path.join(os.path.dirname(__file__), "..", "cdna_kernels", NAME + ".s.ref")).read().splitlines()
head = [l for l in ref if l.startswith(";") and "@launch" not in l and not l.startswith("; Override") and not l.startswith("; grid=")]
out = "\n".join(head) + DESIGN
out += "; @launch grid=(256,1,1) block=(256,1,1) lds=%d\n" % LDS_BYTES
out += '.amdgcn_target "amdgcn-amd-amdhsa--gfx950"\n.text\n.globl %s_kernel\n.p2align 8\n.type %s_kernel,@function\n%s_kernel:\n' % (NAME, NAME, NAME)
if P["ALN"]:
    import align
    a.lines = align.run(a.lines, NAME + "_kernel")
out += a.text()
out += """.section .rodata,"a"
.p2align 6
.amdhsa_kernel %s_kernel
  .amdhsa_next_free_vgpr 512
  .amdhsa_next_free_sgpr 102
  .amdhsa_accum_offset 256
  .amdhsa_group_segment_fixed_size 0
  .amdhsa_kernarg_size 104
  .amdhsa_user_sgpr_count 2
  .amdhsa_user_sgpr_kernarg_segment_ptr 1
  .amdhsa_system_sgpr_workgroup_id_x 1
  .amdhsa_float_denorm_mode_32 3
.end_amdhsa_kernel
""" % NAME
open(sys.argv[1], "w").write(out)
print("wrote", sys.argv[1], len(a.lines), "lines")
```

```python
import sys, os, math, struct
from collections import deque
sys.path.insert(0, os.path.dirname(__file__))
from asmlib import Asm, V, S

NAME = "interleave_layers__gqa_block_cached__gqa_block_cached__decode"

P = dict(W=6, DIAG=0, PF=20, NG=0, SPR=3, ALN=1, HBD=10, HBW=4, FAST=1, NOW0=1, TLB=0, PRO=0, L2N=1, L2E=8, TURBO=20, TG0=1, TG1=6, WG3=6, NVJ=24, L2B=0, L2R=8, PBAR=1, TCH=0, EGB=0, WOT=2, ORD=1, PF4=16, Q2POS=34, WPF=1, SCALE=1000, W0=6, CUD=0, ROT=0, CPF=1, WQNT=0, CDEL=1, LOCAL=1, HBS=1, HBSL=3, APF=4, WCU=6, XB=1, HLP=0, WH=4, B4R=4, WPFW=2, WEND=6, NEND=12)
for arg in sys.argv[2:]:
    k, v = arg.split("=")
    P[k] = int(v)
W = P["W"]
DIAG = P["DIAG"]
PF = P["PF"]
NG = P["NG"]
NVJ = P["NVJ"]


def f32(x):
    return struct.unpack("<I", struct.pack("<f", x))[0]


LDS_BYTES = 163840
L_CNT = [0, 4]
L_ROLE = 8184
L_PART = [64, 64 + 2112]
L_VA = 8192
L_X = 0
L_YB = 5120
L_WO = 8192
PH = 184320
HB0 = 147456
HC0 = 167936
WF0 = 4 << 20
WS_DIAG = 12 << 20
WS_BYTES = 13 << 20
BATCH = 1 << 25
TENSOR = 1 << 27
DPPM = "row_mask:0xf bank_mask:0xf"
QP = ["quad_perm:[1,0,3,2]", "quad_perm:[2,3,0,1]", "row_half_mirror", "row_mirror"]

a = Asm()

sH, sS, sWv = 3, 4, 5
KA, VA, KB, VB, WS, DBG, WT, OUT = 44, 48, 52, 56, 80, 84, 88, 92
sNRK, sNRV = 60, 61
sTO, sC, sT, sT2, sLB, sTv = 62, 63, 64, 65, 66, 67
sQM = 70
sDI = 98
sXc, sLoc = 99, 79
RA = 100


def stamp():
    if not DIAG:
        return
    a("s_memrealtime s[96:97]")
    a("s_waitcnt lgkmcnt(0)")
    lgq.clear()
    a("s_lshl_b64 exec, 1, s%d" % sDI)
    a("v_mov_b32 v0, s96")
    a("s_mov_b64 exec, -1")
    a("s_add_u32 s%d, s%d, 1" % (sDI, sDI))


def fstamp():
    if DIAG != 3:
        return
    lab = a.newlabel("FS")
    a("s_cmp_lt_u32 s9, 11")
    a("s_cbranch_scc1 %s" % lab)
    sv = list(lgq)
    stamp()
    lgq[:] = sv
    a.label(lab)


def budget(done, loop, sleep=None):
    a("s_cmp_eq_u32 s%d, 0" % sTO)
    a("s_cbranch_scc1 %s" % done)
    a("s_sub_u32 s%d, s%d, 1" % (sTO, sTO))
    if sleep:
        a("s_sleep %d" % sleep)
    if loop:
        a("s_branch %s" % loop)


def rawbr(text):
    a.raw("    " + text)
    a.st += 1


def mfma(d, x, y, c):
    a("v_mfma_f32_16x16x32_bf16 %s, %s, %s, %s" % (V(d, 4), V(x, 4), V(y, 4), c))


def pk(d, x, y):
    a("v_pk_add_f32 %s, %s, %s" % (V(d, 2), V(x, 2), V(y, 2)))


def srd(dst, ptr, nrec):
    a("s_mov_b32 s%d, s%d" % (dst, ptr))
    a("s_and_b32 s%d, s%d, 0xffff" % (dst + 1, ptr + 1))
    a("s_mov_b32 s%d, %s" % (dst + 2, nrec))
    a("s_mov_b32 s%d, 0x20000" % (dst + 3))


def l2fetch(bit, vo, srdn, so, off=0, tag=None, old=""):
    so = "s%d" % so if so is not None else "0"
    if not P["PRO"] & bit:
        a("buffer_load_dwordx4 v[48:51], v%d, %s, %s offen offset:%d%s" % (vo, S(srdn, 4), so, off, old), tag=tag)
        return
    if P["PRO"] & 8:
        a("buffer_load_dwordx4 v[48:51], v%d, %s, %s offen offset:%d nt" % (vo, S(srdn, 4), so, off), tag=tag)
    else:
        a("buffer_load_dword v48, v%d, %s, %s offen offset:%d nt" % (vo, S(srdn, 4), so, off), tag=tag)
    a("buffer_load_dword v49, v%d, %s, %s offen offset:%d sc1" % (vo, S(srdn, 4), so, off), tag=tag)


lgq = []


def ds(text, tag=None):
    a(text)
    lgq.append(tag)


def wait_lg(tag=None):
    if tag is None:
        a("s_waitcnt lgkmcnt(0)")
        lgq.clear()
        return
    if tag not in lgq:
        return
    idx = max(i for i, t in enumerate(lgq) if t == tag)
    n = len(lgq) - 1 - idx
    a("s_waitcnt lgkmcnt(%d)" % min(n, 15))
    del lgq[:len(lgq) - min(n, 15)]


def exact_check(regs, t):
    regs = list(regs)
    a("v_max3_u32 v%d, v%d, v%d, v%d" % (t, regs[0], regs[1], regs[2]))
    i = 3
    while i < len(regs):
        r2 = regs[i + 1] if i + 1 < len(regs) else regs[i]
        a("v_max3_u32 v%d, v%d, v%d, v%d" % (t, t, regs[i], r2))
        i += 2
    a("v_cmp_eq_u32 vcc, -1, v%d" % t)


if DIAG:
    a("s_memrealtime s[96:97]")
a("s_cmp_ge_u32 s2, 256")
a("s_cbranch_scc1 L_END")
a("s_load_dwordx16 s[16:31], s[0:1], 0")
a("s_load_dwordx8 s[32:39], s[0:1], 64")
a("s_load_dwordx2 s[40:41], s[0:1], 96")
a("v_lshrrev_b32 v1, 6, v0")
a("v_and_b32 v47, 63, v0")
a("v_readfirstlane_b32 s%d, v1" % sWv)
a("s_getreg_b32 s6, hwreg(HW_REG_XCC_ID, 0, 4)")
a("s_cmp_lt_u32 s6, 8")
a("s_cselect_b32 s%d, 1, 0x10001" % sXc)
a("s_and_b32 s6, s6, 7")
a("v_mov_b32 v2, 0")
a("s_cmp_lg_u32 s%d, 0" % sWv)
a("s_cbranch_scc1 L_TKW")
a("s_waitcnt lgkmcnt(0)")
srd(DBG, 38, "256")
a("s_mov_b64 exec, 1")
a("s_mov_b32 s7, 8")
a.label("L_TK")
a("s_lshl_b32 s8, s6, 5")
a("v_mov_b32 v3, 1")
a("buffer_atomic_add v3, v2, %s, s8 offen sc0 sc1" % S(DBG, 4))
a("s_waitcnt vmcnt(0)")
a("v_readfirstlane_b32 s9, v3")
a("s_cmp_lt_u32 s9, 32")
a("s_cbranch_scc1 L_TKD")
a("s_mov_b32 s%d, 0x10001" % sXc)
a("s_add_u32 s6, s6, 1")
a("s_and_b32 s6, s6, 7")
a("s_sub_u32 s7, s7, 1")
a("s_cmp_lg_u32 s7, 0")
a("s_cbranch_scc1 L_TK")
a("s_and_b32 s6, s2, 7")
a("s_lshr_b32 s9, s2, 3")
a.label("L_TKD")
a("s_lshl_b32 s6, s6, 5")
a("s_or_b32 s6, s6, s9")
a("v_mov_b32 v3, s6")
a("ds_write_b32 v2, v3 offset:%d" % L_ROLE)
a("s_mov_b64 exec, -1")
a("s_waitcnt lgkmcnt(0)")
a.label("L_TKW")
a("s_getpc_b64 %s" % S(WT, 2))
a.label("L_PC")
a("s_sub_u32 s%d, s%d, L_PC-%s_kernel" % (WT, WT, NAME))
a("s_subb_u32 s%d, s%d, 0" % (WT + 1, WT + 1))
a("s_and_b32 s%d, s%d, 0xffff" % (WT + 1, WT + 1))
a("s_mov_b32 s%d, L_END-%s_kernel" % (WT + 2, NAME))
a("s_mov_b32 s%d, 0x20000" % (WT + 3))
a("s_mov_b32 s%d, 200000" % sTO)
a("s_mov_b32 s%d, 0" % sDI)
a("s_mov_b32 s%d, 0" % sLoc)
a("v_and_b32 v46, 15, v47")
a("v_lshrrev_b32 v45, 4, v47")
a("s_barrier")
a("ds_read_b32 v3, v2 offset:%d" % L_ROLE)
a("s_waitcnt lgkmcnt(0)")
a("v_readfirstlane_b32 s6, v3")
a("s_and_b32 s6, s6, 255")
a("s_and_b32 s7, s6, 31")
a("s_lshl_b32 s8, s7, 12")
a("v_lshl_add_u32 v42, v0, 4, s8")
a("buffer_load_dwordx4 v[60:63], v42, %s, 0 offen" % S(WT, 4))
a("v_mov_b32 v0, 0")
a("s_lshr_b32 s%d, s6, 5" % sH)
a("s_lshl_b32 s%d, s%d, 2" % (sH, sH))
a("s_and_b32 s8, s7, 3")
a("s_add_u32 s%d, s%d, s8" % (sH, sH))
a("s_lshr_b32 s%d, s7, 2" % sS)
a("s_add_u32 s%d, s%d, 7" % (sS, sS))
a("s_and_b32 s%d, s%d, 7" % (sS, sS))


def ready_add(vd, vz):
    a("s_lshr_b32 s%d, s%d, 2" % (sT2, sH))
    a("s_lshl_b32 s%d, s%d, 5" % (sT2, sT2))
    a("v_mov_b32 v%d, s%d" % (vd, sXc))
    a("s_mov_b64 exec, 1")
    a("buffer_atomic_add v%d, v%d, %s, s%d offen offset:4 sc1" % (vd, vz, S(DBG, 4), sT2))
    a.vmopt.add(len(a.vmq) - 1)
    a("s_mov_b64 exec, -1")


def ready_local(vd):
    if not P["LOCAL"]:
        return
    a("v_cmp_eq_u32 vcc, 32, v%d" % vd)
    a("s_lshr_b32 s%d, s%d, 2" % (sT2, sH))
    a("s_nop 3")
    a("s_lshr_b32 s%d, vcc_lo, s%d" % (sT2, sT2))
    a("s_and_b32 s%d, s%d, 1" % (sLoc, sT2))


def common_srds():
    if DIAG:
        a("s_mov_b64 exec, 1")
        a("v_mov_b32 v0, s96")
        a("s_mov_b64 exec, -1")
        a("s_mov_b32 s%d, 1" % sDI)
    srd(WS, 40, "0x%x" % WS_BYTES)
    srd(DBG, 38, "256")


a("s_cmp_eq_u32 s%d, 7" % sS)
a("s_cbranch_scc1 L_COMM")

vK, vL, vPt, MK, vBias = 1, 2, 3, 4, 8
SS = list(range(9, 19))
vQa = 19
ML, vT, vU = 20, 22, 23
D2, D1, D3 = 20, 24, 28
QF = 32
ACC = 32
QR = 48
sB, sCur, sNxt, sHas, sPq, sPa, sWi = 6, 7, 8, 9, 10, 11, 12
GO = 16


def home(kind, i):
    if kind == "KS":
        return 56 + 4 * (i - (36 - P["SPR"]))
    if kind == "KA":
        return 68 + 4 * i
    if kind == "KB":
        return 216 + 4 * i
    if kind == "VB":
        return 216 + 148 + 4 * i
    raise KeyError


assert home("VB", 36) + 4 == 512

a("s_mul_i32 s%d, s%d, 7" % (sWi, sWv))
a("s_add_u32 s%d, s%d, s%d" % (sWi, sWi, sS))
a("v_lshlrev_b32 v43, 4, v47")
wpf = []
if P["WPF"]:
    a("s_and_b32 s15, s%d, 3" % sH)
    a("s_mul_i32 s15, s15, 28")
    a("s_add_u32 s15, s15, s%d" % sWi)
    a("s_lshr_b32 s42, s%d, 2" % sH)
    a("s_mul_i32 s43, s42, 655360")
    a("s_lshl_b32 s42, s42, 10")

    def wpf_load(ptr, isq, r):
        def fn():
            if r == 0:
                srd(WT, ptr, "0x%x" % (640 * 8192))
            a("s_add_u32 s%d, s15, %d" % (sT2, 112 * r))
            a("s_min_u32 s%d, s%d, 639" % (sT2, sT2))
            a("s_lshl_b32 s%d, s%d, %d" % (sT2, sT2, 13 if isq else 10))
            a("s_add_u32 s%d, s%d, s%d" % (sT2, sT2, 42 if isq else 43))
            l2fetch(2, 43, WT, sT2, tag="wpf")
        return fn
    for ptr, isq in ((22, P["WPF"] != 3), (24, 0), (34, 0), (32, P["WPF"] < 3)):
        for r in range(6):
            wpf.append(wpf_load(ptr, isq, r))

a("s_waitcnt lgkmcnt(0)")
if P["FAST"]:
    for fn in wpf[:6]:
        fn()
common_srds()
a("s_mov_b32 s%d, 0x%08x" % (sC, f32(128 ** -0.5 * math.log2(math.e) * P["SCALE"] / 1000.0)))
for t in range(4):
    m = 0x000F000F << (4 * t)
    a("s_mov_b32 s%d, 0x%08x" % (sQM + 2 * t, m))
    a("s_mov_b32 s%d, 0x%08x" % (sQM + 2 * t + 1, m))
a("s_cmp_lt_u32 s%d, 16" % sWi)
a("s_cselect_b32 s%d, 1, 0" % sHas)
a("s_min_u32 s13, s%d, 16" % sWi)
a("s_mul_i32 s14, s%d, 36" % sWi)
a("s_add_u32 s13, s13, s14")
a("s_lshl_b32 s13, s13, 10")
a("s_lshl_b32 s14, s%d, 20" % sH)
a("s_add_u32 s13, s13, s14")
a("s_mul_i32 s%d, s%d, 37888" % (sLB, sWv))
a("s_add_u32 s%d, s%d, %d" % (sLB, sLB, L_VA))
a("s_sub_u32 s%d, 0x%x, s13" % (sNRK, TENSOR))
a("s_add_u32 s%d, s%d, s%d" % (sNRV, sNRK, sLB))
for dst, ptr, isv in ((KA, 18, 0), (VA, 20, 1), (KB, 28, 0), (VB, 30, 1)):
    a("s_add_u32 s%d, s%d, s13" % (dst, ptr))
    a("s_addc_u32 s%d, s%d, 0" % (dst + 1, ptr + 1))
    if isv:
        a("s_sub_u32 s%d, s%d, s%d" % (dst, dst, sLB))
        a("s_subb_u32 s%d, s%d, 0" % (dst + 1, dst + 1))
    a("s_and_b32 s%d, s%d, 0xffff" % (dst + 1, dst + 1))
    a("s_mov_b32 s%d, s%d" % (dst + 2, sNRV if isv else sNRK))
    a("s_mov_b32 s%d, 0x20000" % (dst + 3))
if P["HLP"]:
    a("s_add_u32 s14, s%d, 1" % sS)
    a("s_cmp_eq_u32 s14, 7")
    a("s_cselect_b32 s14, 0, s14")
    a("s_mul_i32 s15, s%d, 7" % sWv)
    a("s_add_u32 s14, s14, s15")
    a("s_min_u32 s15, s14, 16")
    a("s_mul_i32 s14, s14, 36")
    a("s_add_u32 s14, s14, s15")
    a("s_lshl_b32 s14, s14, 10")
    a("s_lshl_b32 s15, s%d, 20" % sH)
    a("s_add_u32 s14, s14, s15")
    a("s_add_u32 s%d, s30, s14" % OUT)
    a("s_addc_u32 s%d, s31, 0" % (OUT + 1))
    a("s_sub_u32 s%d, s%d, s%d" % (OUT, OUT, sLB))
    a("s_subb_u32 s%d, s%d, 0" % (OUT + 1, OUT + 1))
    a("s_and_b32 s%d, s%d, 0xffff" % (OUT + 1, OUT + 1))
    a("s_sub_u32 s%d, 0x%x, s14" % (OUT + 2, TENSOR))
    a("s_add_u32 s%d, s%d, s%d" % (OUT + 2, OUT + 2, sLB))
    a("s_mov_b32 s%d, 0x20000" % (OUT + 3))
a("v_and_b32 v44, 3, v47")
a("v_lshlrev_b32 v%d, 4, v44" % vQa)
a("v_lshl_add_u32 v%d, v45, 6, v%d" % (vQa, vQa))
a("v_bfe_u32 v44, v47, 2, 2")
a("v_lshl_add_u32 v%d, v44, 8, v%d" % (vK, vQa))
a("v_lshl_add_u32 v%d, v45, 6, v%d" % (vQa, vQa))
a("v_add_u32 v%d, s%d, v43" % (vL, sLB))
a("s_lshl_b32 s%d, s%d, 9" % (sPq, sH))
a("s_add_u32 s%d, s%d, %d" % (sPq, sPq, HC0))
a("s_mul_i32 s%d, s%d, 4608" % (sPa, sH))
a("s_mov_b32 s%d, 0" % sB)
a("s_mov_b32 s%d, 0" % sCur)

curh = {"K": None, "V": None, "m0": None}
fab = []
done_idx = [-1]
live = {}


def waitvm(n):
    assert n <= 63, n
    a("s_waitcnt vmcnt(%d)" % n)
    i, c = len(a.vmq) - 1, 0
    while i >= 0 and c < n:
        if i not in a.vmopt:
            c += 1
        i -= 1
    done_idx[0] = max(done_idx[0], i)


def tag_idx(tag):
    return max(i for i, t in enumerate(a.vmq) if t == tag)


def landed(tag):
    return tag_idx(tag) <= done_idx[0]


def wait_tag(tag):
    if not landed(tag):
        waitvm(a.vm_after_idx(tag_idx(tag)))


WIN = [P["W0"]]


def pace():
    w = WIN[0]
    if len(fab) >= w and fab[-w] > done_idx[0]:
        waitvm(a.vm_after_idx(fab[-w]))


def reset_vm():
    a.vmq[:] = ["old"] * W
    a.vmopt.clear()
    fab[:] = list(range(W))
    done_idx[0] = -1
    curh.update(K=None, V=None, m0=None)


def load_tile(kind, off, i, mode, fabric, paced):
    g, t = i // 4, i % 4
    srdn = {"KA": KA, "VA": VA, "KB": KB, "VB": VB, "VN": OUT, "KS": KA}[kind]
    c = kind[0]
    vo, so = (vK, sT) if c == "K" else (vL, sTv)
    if mode == "home":
        assert not live.get((kind, i), False), ("slot busy", kind, i)
        live[(kind, i)] = True
    if curh[c] != (kind, off, g):
        a("s_add_u32 s%d, s%d, s%d" % (so, off, GO + g))
        curh[c] = (kind, off, g)
    lds = kind == "VA" and mode == "home"
    if lds and curh["m0"] != g:
        a("s_add_u32 m0, s%d, %d" % (sLB, g * 4096))
        curh["m0"] = g
    if fabric and paced:
        pace()
    opt = i == 36
    if opt:
        lab = a.newlabel("NT")
        a("s_cmp_eq_u32 s%d, 0" % sHas)
        rawbr("s_cbranch_scc1 %s" % lab)
    tag = "%s%d" % (kind, g) if mode == "home" else "pf"
    if lds:
        a("buffer_load_dwordx4 v%d, %s, s%d offen offset:%d nt lds" % (vo, S(srdn, 4), so, t * 1024), tag=tag)
    elif mode == "home":
        a("buffer_load_dwordx4 %s, v%d, %s, s%d offen offset:%d nt" % (V(home(kind, i), 4), vo, S(srdn, 4), so, t * 1024), tag=tag)
    else:
        a("buffer_load_dwordx4 %s, v%d, %s, s%d offen offset:%d" % (V(QR, 4), vo, S(srdn, 4), so, t * 1024), tag=tag)
    if opt:
        a.label(lab)
        a.st -= 1
        a.vmopt.add(len(a.vmq) - 1)
    elif fabric:
        fab.append(len(a.vmq) - 1)


Q = deque()


def pump(n=1, paced=True):
    while n > 0 and Q:
        it = Q.popleft()
        if callable(it):
            it()
            continue
        load_tile(*it, paced)
        n -= 1
        while Q and (callable(Q[0]) or not Q[0][4]):
            it = Q.popleft()
            if callable(it):
                it()
            else:
                load_tile(*it, paced)


def free(kind, g):
    for i in range(4 * g, min(4 * g + 4, 37)):
        live[(kind, i)] = False


def qload(blk_off):
    a("s_add_u32 s%d, s%d, %d" % (sT2, sPq, blk_off * PH))
    a("buffer_load_dwordx4 %s, v%d, %s, s%d offen sc1" % (V(QR, 4), vQa, S(WS, 4), sT2), tag="q")


def qcheck(blk_off, early, QR=QR, dn=None):
    lp, dn = a.newlabel("QL"), dn or a.newlabel("QD")
    if early:
        wait_tag("q")
        exact_check(range(QR, QR + 4), vT)
        a("s_cbranch_vccz %s" % dn)
    a("s_add_u32 s%d, s%d, %d" % (sT2, sPq, blk_off * PH))
    a.label(lp)
    a("buffer_load_dwordx4 %s, v%d, %s, s%d offen sc1" % (V(QR, 4), vQa, S(WS, 4), sT2), tag="qspin")
    if early:
        a.vmopt.add(len(a.vmq) - 1)
        a("s_waitcnt vmcnt(0)")
    else:
        waitvm(0)
    exact_check(range(QR, QR + 4), vT)
    a("s_cbranch_vccz %s" % dn)
    budget(dn, lp)
    a.label(dn)
    for t in range(4):
        for r in range(4):
            a("v_cndmask_b32 %s, 0, %s, %s" % (V(QF + 4 * t + r), V(QR + r), S(sQM + 2 * t, 2)))


SDST = {}


def red_ops(D, g):
    Sr = SDST.get(g, SS[g])
    first = ("v_mov_b32_dpp %s, %s quad_perm:[0,0,0,0] %s" % (V(Sr), V(D), DPPM) if g < 9 else
             "v_add_f32_dpp %s, %s, %s quad_perm:[0,0,0,0] %s" % (V(Sr), V(D), V(vBias), DPPM))
    return [first] + [
        "v_add_f32_dpp %s, %s, %s quad_perm:[%d,%d,%d,%d] %s" % (V(Sr), V(D + r), V(Sr), r, r, r, r, DPPM)
        for r in (1, 2, 3)]


SX = [56, 57, 58, 59, 60]


def qk_early():
    for g in range(NG):
        SDST[g] = SX[g]
    qk_burst("KA", list(range(NG)), release=True)
    SDST.clear()


def qk_burst(kind, order, hook=None, release=False, pre=None):
    Ds = [D1, D2, D3]
    n = len(order)
    for i, g in enumerate(order):
        if pre:
            pre(g)
        D = Ds[i % 3]
        r = red_ops(Ds[(i - 2) % 3], order[i - 2]) if i >= 2 else [None] * 4
        for t in range(4):
            if g < 9 or t == 0:
                mfma(D, home(kind, 4 * g + t), QF + 4 * t, "0" if t == 0 else V(D, 4))
            if r[t]:
                a(r[t])
        if release:
            free(kind, g)
        if hook:
            hook(i)
    assert n >= 2
    ra, rb = red_ops(Ds[(n - 2) % 3], order[n - 2]), red_ops(Ds[(n - 1) % 3], order[n - 1])
    for x, y in zip(ra, rb):
        a(x)
        a(y)


def xlane(op, X, U):
    a("%s_dpp %s, %s, %s row_ror:4 %s" % (op, V(X), V(X), V(X), DPPM))
    a("%s_dpp %s, %s, %s row_ror:8 %s" % (op, V(X), V(X), V(X), DPPM))
    a("v_mov_b32 %s, %s" % (V(U), V(X)))
    a("v_permlane16_swap_b32 %s, %s" % (V(X), V(U)))
    a("%s %s, %s, %s" % (op, V(X), V(X), V(U)))
    a("v_mov_b32 %s, %s" % (V(U), V(X)))
    a("v_permlane32_swap_b32 %s, %s" % (V(X), V(U)))
    a("%s %s, %s, %s" % (op, V(X), V(X), V(U)))


def softmax():
    M, L = ML, ML + 1
    a("v_max3_f32 %s, %s, %s, %s" % (V(M), V(SS[0]), V(SS[1]), V(SS[2])))
    a("v_max3_f32 %s, %s, %s, %s" % (V(L), V(SS[3]), V(SS[4]), V(SS[5])))
    a("v_max3_f32 %s, %s, %s, %s" % (V(M), V(M), V(SS[6]), V(SS[7])))
    a("v_max3_f32 %s, %s, %s, %s" % (V(L), V(L), V(SS[8]), V(SS[9])))
    a("v_max_f32 %s, %s, %s" % (V(M), V(M), V(L)))
    xlane("v_max_f32", M, vU)
    a("v_mul_f32 %s, s%d, %s" % (V(M), sC, V(M)))
    for s_ in SS:
        a("v_fma_f32 %s, %s, s%d, -%s" % (V(s_), V(s_), sC, V(M)))
    for s_ in SS:
        a("v_exp_f32 %s, %s" % (V(s_), V(s_)))
    a("v_add_f32 %s, %s, %s" % (V(L), V(SS[0]), V(SS[1])))
    for s_ in SS[2:]:
        a("v_add_f32 %s, %s, %s" % (V(L), V(L), V(s_)))
    for s_ in SS:
        a("v_cvt_pk_bf16_f32 %s, %s, %s" % (V(s_), V(s_), V(s_)))


def pv_ops(Pr, AX, AY):
    ax = ["v_and_b32 %s, %s, %s" % (V(AX), V(Pr), V(MK)),
          "v_and_b32 %s, %s, %s" % (V(AX + 1), V(Pr), V(MK + 1)),
          "v_and_b32_dpp %s, %s, %s row_ror:4 %s" % (V(AX + 2), V(Pr), V(MK + 2), DPPM),
          "v_and_b32_dpp %s, %s, %s row_ror:4 %s" % (V(AX + 3), V(Pr), V(MK + 3), DPPM)]
    ay = ["v_and_b32_dpp %s, %s, %s row_ror:12 %s" % (V(AY), V(Pr), V(MK), DPPM),
          "v_and_b32_dpp %s, %s, %s row_ror:12 %s" % (V(AY + 1), V(Pr), V(MK + 1), DPPM),
          "v_and_b32 %s, %s, %s" % (V(AY + 2), V(Pr), V(MK + 2)),
          "v_and_b32 %s, %s, %s" % (V(AY + 3), V(Pr), V(MK + 3))]
    return ax, ay


def pv_seq(groups, first, pre=None, post=None):
    lo, hi, AX, AY = ACC, ACC + 4, ACC + 8, ACC + 12
    n = len(groups)
    ops = [pv_ops(SS[g], AX, AY) for g, _ in groups]
    for o in ops[0][0]:
        a(o)
    for i in range(n):
        g, Vr = groups[i]
        ax, ay = ops[i]
        z = first and i == 0
        nx = ops[i + 1][0] if i + 1 < n else [None] * 4
        if g == 9:
            assert i == n - 1 and not z
            if pre:
                pre(i)
            mfma(lo, AX, Vr, V(lo, 4))
        else:
            a(ay[0]); a(ay[1])
            if pre:
                pre(i)
            mfma(lo, AX, Vr, "0" if z else V(lo, 4))
            a(ay[2]); a(ay[3])
            mfma(hi, AX, Vr + 8, "0" if z else V(hi, 4))
            if nx[0]:
                a(nx[0]); a(nx[1])
            mfma(lo, AY, Vr + 4, V(lo, 4))
            if nx[2]:
                a(nx[2]); a(nx[3])
            mfma(hi, AY, Vr + 12, V(hi, 4))
        if post:
            post(i)


def publish(typ, blk_off):
    lo, hi = ACC, ACC + 4
    tA, tO, tR, tE = D1, D1 + 1, D1 + 2, D1 + 3
    tM, tW = D3, D3 + 1
    mlr = D3 + 2
    OB = ACC + 8
    part = L_PART[typ]
    a("v_mov_b32 %s, 0" % V(tA))
    a("v_mov_b32 %s, 1" % V(tO))
    a("v_subrev_u32 %s, s%d, %s" % (V(tE), sLB, V(vL)))
    a("v_lshrrev_b32 %s, 1, %s" % (V(tE), V(tE)))
    a("v_and_b32 %s, 24, %s" % (V(tW), V(tE)))
    a("v_mov_b32 %s, s13" % V(tM))
    xlane("v_add_f32", ML + 1, vU)
    a("v_permlane32_swap_b32 %s, %s" % (V(lo), V(lo + 2)))
    a("v_permlane32_swap_b32 %s, %s" % (V(lo + 1), V(lo + 3)))
    a("v_permlane32_swap_b32 %s, %s" % (V(hi), V(hi + 2)))
    a("v_permlane32_swap_b32 %s, %s" % (V(hi + 1), V(hi + 3)))
    a("v_add_f32 %s, %s, %s" % (V(lo), V(lo), V(hi + 2)))
    a("v_add_f32 %s, %s, %s" % (V(lo + 1), V(lo + 1), V(hi + 3)))
    ds("ds_write_b64 %s, %s offset:%d" % (V(vPt), V(lo, 2), part))
    a("s_mov_b64 exec, 1")
    ds("ds_write_b64 %s, %s offset:%d" % (V(tM), V(ML, 2), part + 2048))
    ds("ds_add_rtn_u32 %s, %s, %s offset:%d" % (V(tR), V(tA), V(tO), L_CNT[typ]), "cnt")
    a("s_mov_b64 exec, -1")
    ds("ds_read_b64 %s, %s offset:%d" % (V(mlr, 2), V(tW), part + 2048), "ml")
    for p in range(4):
        ds("ds_read_b64 %s, %s offset:%d" % (V(OB + 2 * p, 2), V(tE), part + 512 * p))
    a("s_add_u32 s%d, s%d, %d" % (sT2, sPa, blk_off * PH))
    wait_lg("ml")
    a("v_readfirstlane_b32 s15, %s" % V(tR))
    cM, cL, cW = ML, ML + 1, vT
    a("v_max_f32_dpp v%d, v%d, v%d %s %s" % (cM, mlr, mlr, QP[0], DPPM))
    a("s_and_b32 s15, s15, 3")
    a("s_cmp_lg_u32 s15, 3")
    lab = a.newlabel("NOTLAST")
    rawbr("s_cbranch_scc1 %s" % lab)
    a("v_max_f32_dpp v%d, v%d, v%d %s %s" % (cM, cM, cM, QP[1], DPPM))
    a("v_sub_f32 v%d, v%d, v%d" % (cW, mlr, cM))
    a("v_exp_f32 v%d, v%d" % (cW, cW))
    a("v_mul_f32 v%d, v%d, v%d" % (cL, mlr + 1, cW))
    a("s_waitcnt lgkmcnt(0)")
    lsum = ["v_add_f32_dpp v%d, v%d, v%d %s %s" % (cL, cL, cL, q, DPPM) for q in QP[:2]]
    for p in range(4):
        for c in range(2):
            d = lo + 2 * (p & 1) + c
            op = "v_mul_f32_dpp" if p < 2 else "v_fmac_f32_dpp"
            a("%s v%d, v%d, v%d row_newbcast:%d %s" % (op, d, cW, OB + 2 * p + c, p, DPPM))
        if p in (0, 2):
            a(lsum[p // 2])
    pk(lo, lo, lo + 2)
    a("v_min_u32 v%d, -2, v%d" % (cM, cM))
    a("v_min_u32 v%d, -2, v%d" % (cL, cL))
    a("v_min_u32 v%d, -2, v%d" % (lo, lo))
    a("v_min_u32 v%d, -2, v%d" % (lo + 1, lo + 1))
    a("s_add_u32 s15, s%d, s14" % sT2)
    a("s_add_u32 s%d, s%d, s68" % (sT2, sT2))
    lab2 = a.newlabel("PLOC")
    a("s_cmp_eq_u32 s%d, 0" % sLoc)
    rawbr("s_cbranch_scc0 %s" % lab2)
    for sc in (" sc1", ""):
        a("buffer_store_dwordx2 %s, %s, %s, s15 offen%s" % (V(lo, 2), V(tE), S(WS, 4), sc))
        a.vmopt.add(len(a.vmq) - 1)
        a("s_mov_b64 exec, 1")
        a("buffer_store_dwordx2 %s, %s, %s, s%d offen%s" % (V(cM, 2), V(tE), S(WS, 4), sT2, sc))
        a.vmopt.add(len(a.vmq) - 1)
        a("s_mov_b64 exec, -1")
        if sc:
            rawbr("s_branch %s" % lab)
            a.label(lab2)
    a.label(lab)
    a("s_waitcnt lgkmcnt(0)")
    lgq.clear()
    a.nop(2)


def stage(g, dst):
    for t in range(4 if g < 9 else 1):
        ds("ds_read_b128 %s, v%d offset:%d" % (V(dst + 4 * t, 4), vL, g * 4096 + t * 1024), "st%d" % g)


reset_vm()
a.vmq[:] = []
fab[:] = []
if False:
    a("s_getpc_b64 %s" % S(WT, 2))
    a.label("L_PC")
    a("s_sub_u32 s%d, s%d, L_PC-%s_kernel" % (WT, WT, NAME))
    a("s_subb_u32 s%d, s%d, 0" % (WT + 1, WT + 1))
    a("s_and_b32 s%d, s%d, 0xffff" % (WT + 1, WT + 1))
    a("s_mov_b32 s%d, L_END-%s_kernel" % (WT + 2, NAME))
    a("s_mov_b32 s%d, 0x20000" % (WT + 3))
    a("s_lshl_b32 s%d, s15, 10" % sT2)
    a("v_add_u32 v42, s%d, v43" % sT2)
    a("buffer_load_dwordx4 %s, v42, %s, 0 offen" % (V(QR, 4), S(WT, 4)))
for fn in wpf[:6]:
    if P["FAST"]:
        a.vmq.extend(["wpf"] * (2 if P["PRO"] & 2 else 1))
    else:
        fn()
    fab.append(len(a.vmq) - 1)
a("s_lshl_b32 s14, s%d, 9" % sS)
a("s_lshl_b32 s68, s%d, 7" % sS)
a("s_add_u32 s68, s68, 3584")
a("s_lshl_b32 s13, s%d, 3" % sWv)
a("s_cmp_lg_u32 s%d, 0" % sWv)
a("s_cbranch_scc1 L_NOCLR")
a("v_add_u32 v40, s14, v43")
a("v_subrev_u32 v41, 512, v43")
a("v_add_u32 v41, s68, v41")
a("v_cmp_gt_u32 vcc, 32, v47")
a("v_cndmask_b32 v40, v41, v40, vcc")
for r in range(4):
    a("v_mov_b32 v%d, -1" % (QF + r))
a("v_mov_b32 v41, 0")
a("v_mov_b32 v36, 0")
a("v_mov_b32 v37, 0")
a("ds_write_b64 v41, v[36:37]")
a("s_mov_b32 exec_hi, 0xff")
for p in range(16):
    a("s_add_u32 s%d, s%d, %d" % (sT2, sPa, p * PH))
    a("buffer_store_dwordx4 %s, v40, %s, s%d offen sc1" % (V(QF, 4), S(WS, 4), sT2), tag="clr")
    a.vmopt.add(len(a.vmq) - 1)
a("s_mov_b64 exec, -1")
a("s_waitcnt lgkmcnt(0)")
a.label("L_NOCLR")
a("s_barrier")
for fn in wpf[6:]:
    pace()
    fn()
    fab.append(len(a.vmq) - 1)
if P["WOT"]:
    srd(WT, 24, "0x%x" % (4096 * 1280))
    a("s_sub_u32 s%d, s%d, s%d" % (WT, WT, sLB))
    a("s_subb_u32 s%d, s%d, 0" % (WT + 1, WT + 1))
    a("s_and_b32 s%d, s%d, 0xffff" % (WT + 1, WT + 1))
    a("s_add_u32 s%d, s%d, s%d" % (WT + 2, WT + 2, sLB))
    assert not P["HLP"]
    srd(OUT, 34, "s%d" % (WT + 2))
    a("s_sub_u32 s%d, s%d, s%d" % (OUT, OUT, sLB))
    a("s_subb_u32 s%d, s%d, 0" % (OUT + 1, OUT + 1))
    a("s_and_b32 s%d, s%d, 0xffff" % (OUT + 1, OUT + 1))
    a("s_mul_i32 s15, s%d, 163840" % sH)
    for r in range(3):
        a("s_add_u32 s%d, s%d, %d" % (29 + r, sWi, 28 * r))
        a("s_min_u32 s%d, s%d, 79" % (29 + r, 29 + r))
        a("s_cmp_lt_u32 s%d, 40" % (29 + r))
        a("s_cselect_b32 s%d, 0, 40" % sT2)
        a("s_add_u32 s%d, s%d, s%d" % (29 + r, 29 + r, sT2))
        a("s_lshl_b32 s%d, s%d, 10" % (29 + r, 29 + r))
        a("s_add_u32 s%d, s%d, s15" % (29 + r, 29 + r))
a("s_and_b32 s15, s%d, 3" % sH)
a("s_lshl_b32 s15, s15, 2")
a("s_add_u32 s15, s15, s%d" % sWv)
a("s_mul_i32 s15, s15, %d" % P["ROT"])
a("s_mul_hi_u32 s%d, s15, 0x%x" % (sT2, (1 << 32) // 9 + 1))
a("s_mul_i32 s%d, s%d, 9" % (sT2, sT2))
a("s_sub_u32 s15, s15, s%d" % sT2)
a("s_lshl_b32 s15, s15, 12")
for g in range(9):
    a("s_mov_b32 s%d, s15" % (GO + g))
    a("s_add_u32 s15, s15, 4096")
    a("s_cmp_eq_u32 s15, %d" % (9 * 4096))
    a("s_cselect_b32 s15, 0, s15")
a("s_mov_b32 s%d, %d" % (GO + 9, 9 * 4096))
for i in range(37):
    Q.append(("KA", sCur, i, "home", True))
pump(4)
a("v_and_b32 v44, 1, v47")
a("v_lshlrev_b32 v44, 4, v44")
a("v_mov_b32 v%d, 0xffff" % (MK + 3))
a("v_lshlrev_b32 v%d, v44, v%d" % (MK + 3, MK + 3))
a("v_bfe_u32 v44, v47, 1, 2")
for r in range(4):
    a("v_cmp_eq_u32 vcc, %d, v44" % r)
    a("v_cndmask_b32 v%d, 0, v%d, vcc" % (MK + r, MK + 3))
a("v_lshlrev_b32 v%d, 5, v46" % vPt)
a("v_and_b32 v44, 1, v45")
a("v_lshl_add_u32 v%d, v44, 4, v%d" % (vPt, vPt))
a("v_lshrrev_b32 v44, 1, v45")
a("v_lshl_add_u32 v%d, v44, 3, v%d" % (vPt, vPt))
a("s_lshl_b32 s69, s%d, 9" % sWv)
a("v_add_u32 v%d, s69, v%d" % (vPt, vPt))
a("v_mov_b32 v44, 0xff800000")
a("v_cndmask_b32 v%d, v44, 0, %s" % (vBias, S(sQM, 2)))
a("s_cmp_lg_u32 s%d, 0" % sHas)
a("s_cbranch_scc1 L_HAS")
a("v_mov_b32 v%d, v44" % vBias)
for r in range(4):
    a("v_mov_b32 v%d, 0" % (home("KA", 36) + r))
    a("v_mov_b32 v%d, 0" % (36 + r))
    a("v_accvgpr_write_b32 %s, 0" % V(home("KB", 36) + r))
    a("v_accvgpr_write_b32 %s, 0" % V(home("VB", 36) + r))
a("ds_write_b128 v%d, v[36:39] offset:%d" % (vL, 36 * 1024))
a("s_waitcnt lgkmcnt(0)")
a.label("L_HAS")
pump(8)
wait_tag("clr")
a("s_cmp_lg_u32 s%d, 0" % sWv)
a("s_cbranch_scc1 L_NOFLAG")
a("v_mov_b32 v41, 0")
ready_add(40, 41)
a.label("L_NOFLAG")
pump(100)
for i in range(NVJ):
    Q.append(("VA", sCur, i, "home", True))
a("v_and_b32 v41, 7, v47")
a("v_lshlrev_b32 v41, 5, v41")
a("buffer_load_dword v40, v41, %s, 0 offen offset:4 sc1" % S(DBG, 4), tag="fl")
pump(WIN[0] + 1)
wait_tag("fl")
a("v_and_b32 v39, 0xffff, v40")
a("v_cmp_gt_u32 vcc, 32, v39")
a("s_cbranch_vccz L_FLD")
a.label("L_FLW")
a("buffer_load_dword v40, v41, %s, 0 offen offset:4 sc1" % S(DBG, 4))
a.vmopt.add(len(a.vmq) - 1)
a("s_waitcnt vmcnt(0)")
a("v_and_b32 v39, 0xffff, v40")
a("v_cmp_gt_u32 vcc, 32, v39")
a("s_cbranch_vccz L_FLD")
budget("L_FLD", "L_FLW", 2)
a.label("L_FLD")
ready_local(40)
pump(100)
stamp()

QR2 = 52
sPf, sPe, sFl = 26, 27, 28
assert P["ROT"] == 0 and PF % 2 == 0


def qbuild(R):
    for t in range(4):
        for r in range(4):
            a("v_cndmask_b32 %s, 0, %s, %s" % (V(QF + 4 * t + r), V(R + r), S(sQM + 2 * t, 2)))


def qwait_pf(dn, srdn=KA, win=None, wot=False):
    la, lb = a.newlabel("QA"), a.newlabel("QB")
    n0 = len(a.vmq)
    a.label(la)
    a("s_cmp_ge_u32 s%d, s%d" % (sPf, sPe))
    a("s_cbranch_scc1 %s" % lb)
    a("buffer_load_dwordx4 %s, v%d, %s, s15 offen sc1" % (V(QR2, 4), vQa, S(WS, 4)))
    for t in range(2):
        a("s_waitcnt vmcnt(%d)" % ((win or P["WPFW"]) * (5 if P["PRO"] & 1 else 3) // 2))
        l2fetch(1, vK, srdn, sPf, t * 1024)
    a("s_add_u32 s%d, s%d, 2048" % (sPf, sPf))
    exact_check(range(QR2, QR2 + 4), vT)
    a("s_cbranch_vccnz %s" % la)
    a("s_branch %s" % dn)
    a.label(lb)
    if wot:
        for d_ in (WT, OUT)[:P["WOT"]]:
            for r in range(3):
                l2fetch(4, vL, d_, 29 + r, old=" sc1")
        lb = a.newlabel("QC")
        a.label(lb)
    a("buffer_load_dwordx4 %s, v%d, %s, s15 offen sc1" % (V(QR2, 4), vQa, S(WS, 4)))
    a("s_waitcnt vmcnt(0)")
    exact_check(range(QR2, QR2 + 4), vT)
    a("s_cbranch_vccz %s" % dn)
    budget(dn, lb)
    for i in range(n0, len(a.vmq)):
        a.vmopt.add(i)


a.drain()
a.label("L_J")
WIN[0] = W
reset_vm()
lgq.clear()
for i in range(37):
    live[("KA", i)] = live[("KB", i)] = live[("VB", i)] = True
    live[("VA", i)] = i < NVJ
    live[("KA", i)] = i >= 4 * NG
for i in range(NVJ, 37):
    Q.append(("VA", sCur, i, "home", True))
nva = 37 - NVJ
nva -= P["B4R"]
pump(max(0, nva - W))
a("s_cmp_eq_u32 s%d, 0" % sB)
a("s_cselect_b32 s15, 0, %d" % PH)
a("s_sub_u32 s15, s%d, s15" % sPq)
a("buffer_load_dwordx4 %s, v%d, %s, s15 offen sc1" % (V(QR2, 4), vQa, S(WS, 4)), tag="q4")
pump(min(W, nva))
for i in range(37):
    Q.append(("KB", sCur, i, "home", True))
a("s_cmp_eq_u32 s%d, 0" % sB)
a("s_cbranch_scc1 L_B0")
sav = (list(a.vmq), set(a.vmopt), list(fab), done_idx[0], dict(curh), deque(Q), dict(live))
stamp()
wait_tag("q4")
exact_check(range(QR2, QR2 + 4), vT)
a("s_cbranch_vccz L_Q4D")
a("s_mov_b32 s%d, s%d" % (sPf, sCur))
a("s_add_u32 s%d, s%d, %d" % (sPe, sCur, P["PF4"] * 1024))
qwait_pf("L_Q4D", KB, W)
a.label("L_Q4D")
qbuild(QR2)
stamp()
qload(0)
NB4 = [0]


def _h4(i):
    n = ({0: 2, 2: 1, 5: 1, 8: 1} if P["XB"] else {0: 2, 3: 1, 7: 1}).get(i, 0)
    pump(n, paced=False)
    NB4[0] += n


qk_burst("KB", list(range(10)), hook=_h4, release=True)
softmax()


def _p4(i):
    free("VB", i)
    if i in ((0, 3, 6, 9) if P["XB"] else (0, 4, 8)):
        pump(1, paced=False)
        NB4[0] += 1


pv_seq([(g, home("VB", 4 * g)) for g in range(10)], True, post=_p4)
publish(1, -1)
stamp()
a("s_cmp_eq_u32 s%d, 4" % sB)
a("s_cbranch_scc1 L_FIN")
a("s_branch L_B1")
a.label("L_B0")
end_state = (list(a.vmq), set(a.vmopt), list(fab), done_idx[0], dict(curh), deque(Q), dict(live))
a.vmq[:], a.vmopt, fab[:], done_idx[0] = sav[0], sav[1], sav[2], sav[3]
curh.update(sav[4]); Q.clear(); Q.extend(sav[5]); live.update(sav[6])
for g in range(10):
    free("KB", g); free("VB", g)
qload(0)
pump(NB4[0])
if NG:
    qcheck(0, True)
    wait_tag("old")
    qk_early()
a.drain()
a.label("L_B1")
a.vmq[:], a.vmopt, fab[:] = end_state[0], end_state[1], end_state[2]
done_idx[0] = sav[3]
Q.clear(); Q.extend(end_state[5]); live.update(end_state[6])
curh.update(K=None, V=None, m0=None)
lgq.clear()

STG1 = [home("VB", 24), home("VB", 28), home("VB", 32)]
for g in (6, 7, 8):
    for i in range(4 * g, 4 * g + 4):
        live[("VB", i)] = True
pump(1)
qcheck(0, True)
stamp()
wait_tag("old")


def va_ready(g):
    while any((not callable(it)) and it[0] == "VA" and it[2] // 4 == g for it in Q):
        pump(1)
    if 4 * g + 3 >= NVJ:
        wait_tag("VA%d" % g)


for g in range(3):
    va_ready(g)
    stage(g, STG1[g])
qk_burst("KA", list(range(NG, 10)), hook=lambda i: pump(1) if i in (0, 3, 6, 9) else None)
for g in range(NG):
    a("v_mov_b32 %s, %s" % (V(SS[g]), V(SX[g])))
softmax()
pump(1)


def _pre1(i):
    wait_lg("st%d" % i)


def _post1(i):
    if i + 3 < 10:
        va_ready(i + 3)
        stage(i + 3, STG1[i % 3])
    if i in ((2, 5, 8) if P["XB"] else (3, 7)):
        pump(1)


pv_seq([(g, STG1[g % 3]) for g in range(10)], True, pre=_pre1, post=_post1)
publish(0, 0)
stamp()
for g in (6, 7, 8):
    free("VB", g)

a("s_add_u32 s%d, s%d, 0x%x" % (sNxt, sCur, BATCH))
a("s_cmp_lt_u32 s%d, 3" % sB)
a("s_cselect_b32 s%d, s%d, 0" % (KA + 2, sNRK))
a("s_cselect_b32 s%d, s%d, 0" % (VA + 2, sNRV))
pump(100)
Q2POS = P["Q2POS"]
for i in range(37):
    if i == 37 - P["NEND"]:
        Q.append(lambda: WIN.__setitem__(0, P["WEND"]))
    Q.append(("VB", sCur, i, "home", True))
for i in range(4 * NG):
    Q.append(("KA", sNxt, i, "home", True))
SPR = P["SPR"]
assert not (SPR and NG)
for i in range(36 - SPR, 36):
    live[("KS", i)] = False
    Q.append(("KS", sNxt, i, "home", True))
a("s_add_u32 s%d, s%d, %d" % (sPf, sNxt, (36 - SPR - PF) * 1024))
a("s_add_u32 s%d, s%d, %d" % (sPe, sNxt, (36 - SPR) * 1024))
a("s_mov_b32 s%d, 0" % sFl)
a("s_add_u32 s15, s%d, %d" % (sPq, PH))
TURBO, TG0, TG1 = P["TURBO"], P["TG0"], P["TG1"]
nissued = 0
tpolls = []
if TURBO:
    assert landed("KB0")
    for r in range(4):
        a("v_mov_b32 %s, -1" % V(QR2 + r))
    pump(4 * TG0)
    nissued = 4 * TG0
    tdone = done_idx[0]
    tstate = {}
    for g in range(TG0, TG1):
        a("buffer_load_dwordx4 %s, v%d, %s, s15 offen sc1" % (V(QR2, 4), vQa, S(WS, 4)))
        tpolls.append(len(a.vmq) - 1)
        pump(4)
        nissued += 4
        if g == TG0:
            tstate = (deque(Q), dict(live))
        exact_check(range(QR2, QR2 + 4), vT)
        a("s_cbranch_vccz L_TB%d" % (g + 1))
    assert nissued <= Q2POS - W
pump(Q2POS - W - nissued)
a("buffer_load_dwordx4 %s, v%d, %s, s15 offen sc1" % (V(QR2, 4), vQa, S(WS, 4)), tag="q")
tpolls.append(len(a.vmq) - 1)
pump(W)
stamp()
wait_tag("q")
exact_check(range(QR2, QR2 + 4), vT)
a("s_cbranch_vccz L_Q2D")
sav = (list(a.vmq), set(a.vmopt), list(fab), done_idx[0], dict(curh), deque(Q), dict(live))
pump(100)
a("s_mov_b32 s%d, 2" % sFl)
qwait_pf("L_Q2D")
if TURBO:
    live.update(tstate[1])
    for it in tstate[0]:
        if callable(it):
            continue
        if it[0] == "VB" and it[2] % 4 == 0 and it[2] // 4 <= TG1:
            a.label("L_TB%d" % (it[2] // 4))
            curh.update(K=None, V=None, m0=None)
        a("s_waitcnt vmcnt(%d)" % (TURBO - 1))
        load_tile(*it, False)
    stamp()
    a("s_mov_b32 s%d, 1" % sFl)
a.vmq[:], a.vmopt, fab[:], done_idx[0] = sav[0], sav[1], sav[2], sav[3]
if TURBO:
    done_idx[0] = tdone
    a.vmopt.update(tpolls)
Q.clear(); Q.extend(sav[5]); live.update(sav[6])
curh.update(K=None, V=None, m0=None)
a.label("L_Q2D")
qbuild(QR2)
stamp()
wait_tag("KB9")


if NG:
    qload(4)


def cpump(n, paced=False):
    if not Q:
        return
    lab = a.newlabel("H2")
    a("s_cmp_lg_u32 s%d, 0" % sFl)
    rawbr("s_cbranch_scc1 %s" % lab)
    st0, dn0 = a.st, done_idx[0]
    pump(n, paced=paced)
    a.st, done_idx[0] = st0, dn0
    a.label(lab)


NREST = 37 - Q2POS
qk_burst("KB", list(range(10)), hook=lambda i: cpump(-(-NREST // 3)) if i in (1, 4, 7) else None)
softmax()
assert not any((not callable(it)) and it[0] == "VB" for it in Q)
pv_seq([(x, home("VB", 4 * x)) for x in range(10)], True, pre=lambda i: wait_tag("VB%d" % i),
       post=lambda i: cpump(1) if i in (0, 3, 6) else None)
publish(1, 1)
stamp()
cpump(100, paced=True)
curh.update(K=None, V=None, m0=None)
a("s_cmp_lt_u32 s%d, 3" % sB)
a("s_cselect_b32 s%d, s%d, 0" % (KB + 2, sNRK))
if NG or not P["NOW0"]:
    waitvm(0)
else:
    assert all(i <= done_idx[0] for i in tpolls)
    a("s_cmp_lg_u32 s%d, 2" % sFl)
    rawbr("s_cbranch_scc1 L_NW0")
    a("s_waitcnt vmcnt(0)")
    a.label("L_NW0")
for r in range(4):
    a("v_mov_b32 %s, -1" % V(QR2 + r))
if NG:
    a("s_cmp_eq_u32 s%d, 3" % sB)
    a("s_cbranch_scc1 L_NOG2")
    qcheck(4, True)
    qk_early()
    a.drain()
    a.label("L_NOG2")
    a("s_mov_b32 s15, s%d" % (KA + 2))
    a("s_mov_b32 s%d, s%d" % (KA + 2, sNRK))
    WIN[0] = P["WG3"]
    for i in range(4 * NG):
        Q.append(("KA", sCur, i, "home", True))
    pump(100)
    a("s_mov_b32 s%d, s15" % (KA + 2))
a("s_add_u32 s15, s%d, %d" % (sPq, 2 * PH))
qwait_pf("L_Q3D", wot=P["WOT"])
a.label("L_Q3D")

WIN[0] = W
qbuild(QR2)
curh.update(K=None, V=None, m0=None)
stamp()
STG3 = [home("KA", 24), home("KA", 28), home("KA", 32)]
F0 = 36 - SPR - PF
FQ = deque([("KA", sNxt, i, "home", True) for i in list(range(4 * NG, min(F0, 4 * NG + 4))) + [36] + list(range(4 * NG + 4, F0))] +
           [("VA", sNxt, i, "home", True) for i in range(NVJ)])
LQ = deque([("KA", sNxt, i, "home", False) for i in range(F0, 36 - SPR)])
order3 = [NG, 6, 9, 7, 8] + list(range(NG + 1, 6)) + list(range(NG))
if P["L2B"] == 3:
    g0 = F0 // 4
    rest3 = [g for g in range(6) if g not in (g0, g0 + 1)]
    rest3 = [g for g in rest3 if g > g0] + [g for g in rest3 if g < g0]
    order3 = [g0, 6, g0 + 1, 7, 8] + rest3 + [9]
assert F0 >= 4 * NG


def take(q, n):
    for it in list(q):
        if n == 0:
            break
        if not live.get((it[0], it[2]), False):
            q.remove(it)
            load_tile(*it, False)
            n -= 1


def _h3(i):
    g = order3[i]
    if g in (6, 7, 8):
        for x in range(4 * g, 4 * g + 4):
            live[("KA", x)] = True
        stage(g - 6, STG3[g - 6])
    if i in (4, 5, 6):
        wait_lg("st%d" % (i - 4))
        free("VA", i - 4)
    if P["L2B"] == 3:
        take(LQ, P["L2N"] if i < P["L2E"] else 0)
        take(FQ, {P["L2E"]: 4, P["L2E"] + 1: W - 4}.get(i, 0))
        return
    take(FQ, {0: 4, 2: 1, 4: W - 5, 7: 1, 9: 1}.get(i, 0))
    if P["L2B"] == 1:
        take(LQ, 2)


qk_burst("KA", order3, hook=_h3, release=True, pre=lambda g: wait_tag("KA%d" % g) if g < NG else None)
softmax()


def _post3(i):
    if i >= 3:
        free("VA", i)
    if i + 3 < 10:
        stage(i + 3, STG3[i % 3])
    if i in (0, 3, 6, 9):
        take(FQ, 1)
    if P["L2B"] in (1, 2) and i < 8:
        take(LQ, 1)


pv_seq([(g, STG3[g % 3]) for g in range(10)], True, pre=_pre1, post=_post3)
publish(0, 2)
if P["PBAR"]:
    a("s_barrier")
stamp()
for g in (6, 7, 8):
    free("KA", g)
for i in range(36 - SPR, 36):
    wait_tag("KS8")
    for r in (0, 2):
        a("v_mov_b64 %s, %s" % (V(home("KA", i) + r, 2), V(home("KS", i) + r, 2)))
assert not Q
for n_, it in enumerate(FQ):
    if n_ == P["CUD"]:
        Q.append(lambda: WIN.__setitem__(0, P["WCU"]))
    Q.append(it)
    if n_ >= P["CUD"] and LQ:
        for _ in range(P["L2R"]):
            if LQ:
                Q.append(LQ.popleft())
        if not LQ:
            assert len(FQ) - n_ > W
            Q.append(lambda: WIN.__setitem__(0, W))
assert not LQ
pump(100)
a("s_add_u32 s%d, s%d, 1" % (sB, sB))
a("s_mov_b32 s%d, s%d" % (sCur, sNxt))
a("s_add_u32 s%d, s%d, %d" % (sPq, sPq, 4 * PH))
a("s_add_u32 s%d, s%d, %d" % (sPa, sPa, 4 * PH))
stamp()
a("s_branch L_J")

a.label("L_COMM")
lgq.clear()
a("s_waitcnt lgkmcnt(0)")
common_srds()
vL8, vML, vM01, vHa, vHc, vOw, vOr, vX1, vX3, vG16, vL4, vC, vWL, vL16, vY1, vY2 = 1, 2, 3, 4, 5, 6, 7, 8, 9, 10, 11, 12, 16, 17, 18, 19
SET, TMP, AF, AC, STG, XF, G, XC = 20, 36, 52, 68, 84, 100, 108, 188
sP, sHA, sHB, sN, sHBm, sHC, sX, sTy, sMode, sGty, sWF, sHAo, sHBo, sHCo = 6, 7, 8, 9, 10, 11, 12, 13, 14, 15, 42, 43, 68, 69
SEL_LO, SEL_HI = 78, 77


def WQF(mat, k, ct):
    n = mat * 40 + 2 * k + ct
    return 256 + 4 * n if n < 64 else 192 + 4 * (n - 64)


def in_lds(i):
    return (i & 1) and i < 38


def greg(i):
    t, k = i // 4, i % 4
    return XC if i == 39 else G + 40 * (k // 2) + 4 * t


a("s_mov_b32 s%d, 0x05040100" % SEL_LO)
a("s_mov_b32 s%d, 0x07060302" % SEL_HI)
srd(OUT, 36, "5120")
a("v_lshlrev_b32 v%d, 2, v47" % vL4)
a("v_lshlrev_b32 v%d, 4, v47" % vL16)
a("v_lshrrev_b32 v44, 2, v47")
a("v_lshlrev_b32 v44, 13, v44")
a("v_and_b32 v43, 3, v47")
a("v_lshl_add_u32 v44, v43, 4, v44")
a("s_lshl_b32 s76, s%d, 8" % sH)
a("s_lshl_b32 s%d, s%d, 6" % (sT, sWv))
a("s_add_u32 s76, s76, s%d" % sT)
a("s_mul_i32 s71, s%d, 38912" % sWv)
a("s_add_u32 s71, s71, %d" % L_WO)
a("v_lshlrev_b32 v48, 9, v45")
a("v_lshl_add_u32 v48, v46, 2, v48")
a("v_add_u32 v48, s71, v48")
RAW = [52, 92, 132]
WT2 = 44


def wq_issue(n):
    mat, bt = n // 4, n % 4
    for r in range(10):
        a("s_add_u32 s%d, s76, %d" % (sT, (160 * bt + 16 * r) * 8192))
        a("s_add_u32 m0, s71, %d" % ((n % 3) * 10240 + r * 1024))
        a("buffer_load_dwordx4 v44, %s, s%d offen %slds" % (S(WT2 + 4 * mat, 4), sT, "nt " if P["WQNT"] else ""), tag="wq%d" % n)


def wq_read(n):
    for kk in range(5):
        a("v_add_u32 v49, %d, v48" % ((n % 3) * 10240 + kk * 2048))
        for e in range(0, 8, 2):
            a("ds_read2_b32 %s, v49 offset0:%d offset1:%d" % (V(RAW[0] + 8 * kk + e, 2), 16 * e, 16 * e + 16))
        if kk == 2:
            a("s_waitcnt lgkmcnt(6)")


def wq_perm(n):
    mat, bt = n // 4, n % 4
    tq = 92
    c = 0
    for kk in range(5):
        a("s_waitcnt lgkmcnt(%d)" % min(15, 4 * (4 - kk)))
        for ct in range(2):
            for e in range(0, 8, 2):
                r0 = RAW[0] + 8 * kk + e
                dst = WQF(mat, 5 * bt + kk, ct) + e // 2
                sel = SEL_HI if ct else SEL_LO
                if dst < 256:
                    a("v_perm_b32 v%d, v%d, v%d, s%d" % (dst, r0 + 1, r0, sel))
                else:
                    a("v_perm_b32 v%d, v%d, v%d, s%d" % (tq + c % 4, r0 + 1, r0, sel))
                    a("v_accvgpr_write_b32 %s, v%d" % (V(dst), tq + c % 4))
                    c += 1


def wq_step(n):
    a.wait_tag("wq%d" % n)
    wq_read(n)
    wq_perm(n)
    if n + 3 < 8:
        wq_issue(n + 3)


def comm_setup():
    a("v_lshlrev_b32 v%d, 3, v47" % vL8)
    a("v_and_b32 v43, 7, v47")
    a("v_cmp_eq_u32 vcc, 7, v43")
    a("v_min_u32 v43, 6, v43")
    a("v_lshlrev_b32 v%d, 7, v43" % vML)
    a("v_add_u32 v%d, 3584, v%d" % (vML, vML))
    a("v_cndmask_b32 v%d, 1.0, 0, vcc" % vM01)
    a("v_mul_u32_u24 v43, 1280, v45")
    a("v_lshl_add_u32 v%d, v46, 4, v43" % vHa)
    a("v_lshl_add_u32 v%d, v46, 3, v43" % vHc)
    a("v_add_u32 v%d, 512, v%d" % (vHc, vHc))
    a("s_mul_i32 s%d, s%d, 640" % (sT2, sWv))
    a("s_add_u32 s%d, s%d, %d" % (sT2, sT2, L_YB))
    a("v_add_u32 v%d, s%d, v%d" % (vOw, sT2, vL4))
    a("v_add_u32 v%d, s%d, v%d" % (vY1, sT2, vL16))
    a("v_add_u32 v%d, s%d, v%d" % (vY2, sT2, vL8))
    a("v_lshlrev_b32 v%d, 4, v45" % vG16)
    a("v_add_u32 v%d, s%d, v%d" % (vOr, sT2, vG16))
    a("s_mul_i32 s%d, s%d, 320" % (sT2, sWv))
    a("v_lshlrev_b32 v%d, 4, v46" % vX1)
    a("v_and_b32 v43, 1, v45")
    a("v_lshl_add_u32 v%d, v43, 2, v%d" % (vX1, vX1))
    a("v_lshrrev_b32 v43, 1, v45")
    a("v_lshl_add_u32 v%d, v43, 1, v%d" % (vX1, vX1))
    a("v_add_u32 v%d, s%d, v%d" % (vX1, sT2, vX1))
    a("v_lshlrev_b32 v%d, 2, v46" % vX3)
    a("v_lshl_add_u32 v%d, v43, 1, v%d" % (vX3, vX3))
    a("s_add_u32 s%d, s%d, 256" % (sT2, sT2))
    a("v_add_u32 v%d, s%d, v%d" % (vX3, sT2, vX3))
    a("v_add_u32 v%d, s71, v%d" % (vWL, vL16))
    a("s_mul_i32 s%d, s73, 163840" % sWF)
    a("s_mul_i32 s%d, s72, 320" % sT2)
    a("s_add_u32 s%d, s%d, s%d" % (sWF, sWF, sT2))
    a("s_movk_i32 s74, 560")
    a("s_movk_i32 s70, 640")
    for r in range(4):
        a("v_mov_b32 v%d, 0" % (vC + r))


a("s_andn2_b32 s73, s%d, 3" % sH)
a("s_add_u32 s73, s73, s%d" % sWv)
a("s_and_b32 s72, s%d, 3" % sH)
a("s_mul_i32 s%d, s73, 4608" % sHAo)
a("s_mul_i32 s%d, s%d, 5120" % (sHBo, sWv))
a("s_add_u32 s%d, s%d, %d" % (sHBo, sHBo, HB0))
a("s_lshl_b32 s%d, s76, 1" % sHCo)
a("s_add_u32 s%d, s%d, %d" % (sHCo, sHCo, HC0))
a("s_mul_i32 s75, s72, 5120")
a("s_lshr_b32 s%d, s%d, 2" % (sT2, sH))
a("s_mul_i32 s%d, s%d, 640" % (sT2, sT2))
a("s_add_u32 s75, s75, s%d" % sT2)
a("s_add_u32 s75, s75, %d" % HB0)
a("v_add_u32 v40, s75, v%d" % vL16)
a("v_subrev_u32 v41, 640, v%d" % vL16)
a("v_add_u32 v41, s%d, v41" % sHCo)
a("v_cmp_gt_u32 vcc, 40, v47")
a("v_cndmask_b32 v40, v41, v40, vcc")
for r in range(4):
    a("v_mov_b32 v%d, -1" % (36 + r))
a("s_mov_b32 exec_hi, 0xfff")
for p in range(16):
    a("s_mov_b32 s%d, %d" % (sT, p * PH))
    a("buffer_store_dwordx4 v[36:39], v40, %s, s%d offen sc1" % (S(WS, 4), sT))
a("s_mov_b64 exec, -1")
srd(WT, 16, "5120")
a("s_mul_i32 s%d, s%d, 1280" % (sT, sWv))
for r in range(5):
    a("buffer_load_dword v%d, v%d, %s, s%d offen offset:%d" % (20 + r, vL4, S(WT, 4), sT, 256 * r))


def _between():
    comm_setup()
    a("s_waitcnt vmcnt(%d)" % (0 if P["CDEL"] else 30))
    a("s_mul_i32 s%d, s%d, 1280" % (sT2, sWv))
    a("v_add_u32 v43, s%d, v%d" % (sT2, vL4))
    a("v_mov_b32 v42, 0x3f803f80")
    for r in range(5):
        a("ds_write_b32 v43, v%d offset:%d" % (20 + r, L_X + 256 * r))
        a("ds_write_b32 v%d, v42 offset:%d" % (vL4, L_X + 4 * 1280 + 256 * r))
    a("s_waitcnt lgkmcnt(0)")
    a("s_barrier")
    a("s_cmp_lg_u32 s%d, 0" % sWv)
    a("s_cbranch_scc1 L_CNF")
    ready_add(42, vL4)
    a.label("L_CNF")


WOS = [52, 56]
wa, wb = TMP + 4, TMP + 5


def wo_addr():
    a("v_mad_u32_u24 v%d, v%d, s74, v%d" % (wa, vG16, vHa))
    a("v_and_b32 v%d, 63, v%d" % (wb, vL4))
    a("v_add_u32 v%d, 256, v%d" % (wb, wb))
    a("v_mad_u32_u24 v%d, v%d, s70, v%d" % (wb, vG16, wb))


def wo_issue(srdn, k, R, tag=None):
    for e in range(8):
        if e % 4 == 0:
            a("s_add_u32 s%d, s%d, %d" % (sT, sWF, (32 * k + e) * 1280))
        a("buffer_load_dwordx4 %s, v%d, %s, s%d offen offset:%d" % (V(R + 4 * e, 4), wa, S(srdn, 4), sT, (e % 4) * 1280), tag=tag)
        a("buffer_load_dword v%d, v%d, %s, s%d offen offset:%d" % (R + 32 + e, wb, S(srdn, 4), sT, (e % 4) * 1280), tag=tag)


def wo_perm(R, dst_of):
    for t in range(10):
        for e in range(0, 8, 2):
            if t < 8:
                r0, r1 = R + 4 * e + t // 2, R + 4 * e + 4 + t // 2
            else:
                r0, r1 = R + 32 + e, R + 33 + e
            a("v_perm_b32 v%d, v%d, v%d, s%d" % (dst_of(t) + e // 2, r1, r0, SEL_HI if t & 1 else SEL_LO))


def wo_to_lds(mat):
    FO = 52
    for n_, k in enumerate((1, 3)):
        a.wait_tag("wo%d_%d" % (mat, k))
        wo_perm(G + 40 * n_, lambda t: XF + 4 * mat if (t == 9 and k == 3) else FO + 4 * t)
        for t in range(10):
            i = 4 * t + k
            if in_lds(i):
                a("ds_write_b128 v%d, %s offset:%d" % (vWL, V(FO + 4 * t, 4), mat * 19456 + (i // 2) * 1024))
        a("s_waitcnt lgkmcnt(0)")


def tlb_touch():
    a("s_cmp_eq_u32 s%d, 1" % sWv)
    a("s_cselect_b32 s%d, s20, s18" % WT)
    a("s_cselect_b32 s%d, s21, s19" % (WT + 1))
    a("s_cmp_eq_u32 s%d, 2" % sWv)
    a("s_cselect_b32 s%d, s28, s%d" % (WT, WT))
    a("s_cselect_b32 s%d, s29, s%d" % (WT + 1, WT + 1))
    a("s_cmp_eq_u32 s%d, 3" % sWv)
    a("s_cselect_b32 s%d, s30, s%d" % (WT, WT))
    a("s_cselect_b32 s%d, s31, s%d" % (WT + 1, WT + 1))
    a("s_and_b32 s%d, s%d, 0xffff" % (WT + 1, WT + 1))
    a("s_mov_b32 s%d, 0x%x" % (WT + 2, TENSOR))
    a("s_lshl_b32 s%d, s72, 25" % sT)
    a("s_lshr_b32 s%d, s%d, 2" % (sT2, sH))
    a("s_lshl_b32 s%d, s%d, 22" % (sT2, sT2))
    a("s_add_u32 s%d, s%d, s%d" % (sT, sT, sT2))
    a("v_lshlrev_b32 v42, 14, v%d" % vL4)
    a("buffer_load_dword v43, v42, %s, s%d offen nt" % (S(WT, 4), sT))


def call_wq(ty, slot, mode, blk):
    a("s_mov_b32 s%d, %d" % (sTy, ty))
    a("s_mov_b32 s%d, %d" % (sX, L_X + 1280 * slot))
    a("s_mov_b32 s%d, %d" % (sMode, mode))
    a("s_add_u32 s%d, s%d, %d" % (sHC, sHCo, blk * PH))
    a("s_call_b64 %s, R_WQ" % S(RA, 2))


a.vmq[:] = []
a.vmopt.clear()
srd(WT2, 22, "0x%x" % (640 * 8192))
srd(WT2 + 4, 32, "0x%x" % (640 * 8192))
srd(WOS[0], 24, "0x%x" % (4096 * 1280))
srd(WOS[1], 34, "0x%x" % (4096 * 1280))
if P["CDEL"]:
    _between()
for n in range(3):
    wq_issue(n)
if not P["CDEL"]:
    _between()
wo_addr()
for n in range(4):
    wq_step(n)
    if n == 0:
        wo_issue(WOS[0], 1, G, "wo0_1")
        wo_issue(WOS[0], 3, G + 40, "wo0_3")
stamp()
call_wq(1, 4, 1, 0)
call_wq(1, 0, 0, 0)
if P["TLB"] == 2:
    tlb_touch()
stamp()
for n in range(4, 8):
    wq_step(n)
stamp()
wo_to_lds(0)
wo_issue(WOS[1], 1, G, "wo1_1")
wo_issue(WOS[1], 3, G + 40, "wo1_3")
call_wq(0, 4, 1, 0)
for b in range(1, 4):
    call_wq(1, b, 0, 4 * b)
stamp()
wo_to_lds(1)
if P["TLB"] == 1:
    tlb_touch()
a("s_barrier")
stamp()

a("v_and_b32 v44, 56, v%d" % vL8)
a("v_lshlrev_b32 v44, 2, v44")
a.label("L_AFW")
a("buffer_load_dword v42, v44, %s, 0 offen offset:4 sc1" % S(DBG, 4))
a("s_waitcnt vmcnt(0)")
a("v_and_b32 v43, 0xffff, v42")
a("v_cmp_gt_u32 vcc, 32, v43")
a("s_cbranch_vccz L_AFD")
budget("L_AFD", "L_AFW", 2)
a.label("L_AFD")
ready_local(42)
a("s_mov_b32 s%d, 0" % sN)
a("s_mov_b32 s%d, 0" % sMode)
a("s_mov_b32 s%d, 2" % sGty)
TAB = 0xfedbca9786534210 if P["ORD"] else 0xfbedc7a983654210
a("s_mov_b32 s18, 0x%08x" % (TAB & 0xffffffff))
a("s_mov_b32 s19, 0x%08x" % (TAB >> 32))
a("s_mov_b32 s%d, 0x%x" % (WT + 2, 4096 * 1280))

ta, ts = TMP + 14, TMP + 15
DQ, XS, s2, s1, one = AC, AF, TMP, TMP + 1, TMP + 2


def wq_pre():
    a("v_add_u32 v%d, s%d, v%d" % (ta, sX, vG16))
    a("v_add_u32 v%d, s%d, v%d" % (ts, sX, vL4))
    a("v_mov_b32 v%d, 0" % s2)
    a("v_mov_b32 v%d, 0" % s1)
    a("v_mov_b32 v%d, 0x3f803f80" % one)


cM, cL, cW, cX, cA = TMP, TMP + 1, TMP + 2, TMP + 3, TMP + 4
tLW, tx1, tx3, xo = TMP + 8, TMP + 9, TMP + 10, TMP + 11
a.label("L_CH")
lgq.clear()
a("s_lshl_b32 s%d, s%d, 2" % (sT, sN))
a("s_lshr_b64 s[16:17], s[18:19], s%d" % sT)
a("s_and_b32 s%d, s16, 15" % sP)
a("s_and_b32 s%d, s%d, 1" % (sTy, sP))


def g_issue(ty):
    a("s_cmp_eq_u32 s%d, 0" % ty)
    a("s_cselect_b32 s%d, s%d, s%d" % (WT, WOS[0], WOS[1]))
    a("s_cselect_b32 s%d, s%d, s%d" % (WT + 1, WOS[0] + 1, WOS[1] + 1))
    wo_addr()
    wo_issue(WT, 2, G)
    wo_issue(WT, 0, G + 40)


a("s_cmp_eq_u32 s%d, s%d" % (sTy, sGty))
a("s_cbranch_scc1 L_GOK")
a("s_cmp_eq_u32 s%d, 3" % sGty)
a("s_cbranch_scc1 L_GIS")
g_issue(sTy)
a.label("L_GIS")
a("s_mov_b32 s%d, s%d" % (sGty, sTy))
a("s_cmp_eq_u32 s%d, 0" % sTy)
a("s_cselect_b64 vcc, -1, 0")
for r in range(4):
    a("v_cndmask_b32 v%d, v%d, v%d, vcc" % (XC + r, XF + 4 + r, XF + r))
a("s_waitcnt vmcnt(16)")
wo_perm(G, lambda t: AF + 4 * t)
a("s_waitcnt vmcnt(0)")
wo_perm(G + 40, lambda t: G + 4 * t)
for r in range(0, 40, 2):
    a("v_mov_b64 %s, %s" % (V(G + 40 + r, 2), V(AF + r, 2)))
a.label("L_GOK")
if DIAG == 2:
    stamp()
a("s_mul_i32 s%d, s%d, %d" % (sT, sP, PH))
a("s_add_u32 s%d, s%d, s%d" % (sHA, sT, sHAo))
a("s_add_u32 s%d, s%d, s%d" % (sHB, sT, sHBo))
a("s_add_u32 s%d, s%d, s75" % (sHBm, sT))
a("s_add_u32 s%d, s%d, s%d" % (sHC, sT, sHCo))
a("s_add_u32 s%d, s%d, %d" % (sHC, sHC, PH))
a("s_lshr_b32 s%d, s%d, 2" % (sX, sP))
a("s_mul_i32 s%d, s%d, 1280" % (sX, sX))
a("s_mul_i32 s%d, s%d, 19456" % (sT, sTy))
a("v_add_u32 v%d, s%d, v%d" % (tLW, sT, vWL))
a("v_add_u32 v%d, s%d, v%d" % (tx1, sX, vX1))
a("v_add_u32 v%d, s%d, v%d" % (tx3, sX, vX3))
ds("ds_read_u16 v%d, v%d" % (xo, tx1))
ds("ds_read_u16 v%d, v%d offset:8" % (xo + 1, tx1))
ds("ds_read_u16 v%d, v%d" % (xo + 2, tx3))
SLOT = [STG, STG + 4, STG + 8, STG + 12, SET, SET + 4, SET + 8, SET + 12]


def lfrag(n):
    ds("ds_read_b128 %s, v%d offset:%d" % (V(SLOT[n % 8], 4), tLW, n * 1024), "lf%d" % n)


for n in range(4):
    lfrag(n)
wait_lg()
for r in range(3):
    a("v_lshlrev_b32 v%d, 16, v%d" % (xo + r, xo + r))
if P["TCH"]:
    a("v_lshrrev_b32 v%d, 2, v%d" % (AF, vL4))
    a("v_and_b32 v%d, 32, v%d" % (AF + 1, AF))
    a("v_add_u32 v%d, v%d, v%d" % (AF, AF, AF + 1))
    a("v_mul_u32_u24 v%d, 1280, v%d" % (AF, AF))
    a("s_mov_b32 s21, 0")
a.label("HA_L")
a("buffer_load_dwordx2 %s, v%d, %s, s%d offen sc1" % (V(SET + 14, 2), vML, S(WS, 4), sHA))
for p in range(7):
    a("buffer_load_dwordx2 %s, v%d, %s, s%d offen offset:%d sc1" % (V(SET + 2 * p, 2), vL8, S(WS, 4), sHA, p * 512))
ml = SET + 14
a("s_waitcnt vmcnt(7)")
a("v_max_f32_dpp v%d, v%d, v%d %s %s" % (cM, ml, ml, QP[0], DPPM))
a("v_mul_f32 v%d, v%d, v%d" % (cL, ml + 1, vM01))
a("v_max_f32_dpp v%d, v%d, v%d %s %s" % (cM, cM, cM, QP[1], DPPM))
a("v_max_f32_dpp v%d, v%d, v%d %s %s" % (cM, cM, cM, QP[2], DPPM))
a("v_sub_f32 v%d, v%d, v%d" % (cW, ml, cM))
a("v_exp_f32 v%d, v%d" % (cW, cW))
a("v_mul_f32 v%d, v%d, v%d" % (cL, cL, cW))
a("s_waitcnt vmcnt(0)")
lsum = ["v_add_f32_dpp v%d, v%d, v%d %s %s" % (cL, cL, cL, q, DPPM) for q in QP[:3]]
for p in range(7):
    for c in range(2):
        d = cA + 2 * (p & 1) + c
        op = "v_mul_f32_dpp" if p < 2 else "v_fmac_f32_dpp"
        a("%s v%d, v%d, v%d row_newbcast:%d %s" % (op, d, cW, SET + 2 * p + c, p, DPPM))
    if p in (0, 2, 4):
        a(lsum[p // 2])
    if p == 5:
        a("v_rcp_f32 v%d, v%d" % (cL, cL))
pk(cA, cA, cA + 2)
a("v_mul_f32 v%d, v%d, v%d" % (cA, cA, cL))
a("v_mul_f32 v%d, v%d, v%d" % (cA + 1, cA + 1, cL))
a("v_cmp_u_f32 vcc, v%d, v%d" % (cA, cA + 1))
a("v_cvt_pk_bf16_f32 v%d, v%d, v%d" % (cA, cA, cA + 1))
rawbr("s_cbranch_vccz HA_P")
exact_check(range(SET, SET + 16), cX)
a("s_cbranch_vccz HA_P")
if P["TCH"]:
    budget("HA_P", None)
    a("s_add_u32 s21, s21, 1")
    a("s_and_b32 s%d, s21, %d" % (sT, P["TCH"] - 1))
    a("s_cmp_lg_u32 s%d, 1" % sT)
    a("s_cbranch_scc1 HA_L")
    for m_ in range(2):
        for o in (0, 128, 256, 316):
            a("buffer_load_dword v%d, v%d, %s, s%d offen offset:%d" % (AF + 1, AF, S(WOS[m_], 4), sWF, o))
    a("s_branch HA_L")
else:
    budget("HA_P", "HA_L")
a.label("HA_P")
stamp()
ds("ds_write_b32 v%d, v%d" % (vOw, cA))
for k in range(4):
    ds("ds_read_b128 %s, v%d offset:%d" % (V(AF + 4 * k, 4), vOr, 64 * k), "af%d" % k)
for n in range(4, 8):
    lfrag(n)
ASL = [0, 1, 2, 3, 0, 1, 2, 3, 0, 1]


def ywrite(t):
    a("s_mov_b64 exec, 0xffff")
    if t < 8:
        o = 64 * (t // 4) + t % 4
        ds("ds_write2_b32 v%d, v%d, v%d offset0:%d offset1:%d" % (vY1, AC + 4 * ASL[t], AC + 4 * ASL[t + 1], o, o + 1))
    else:
        ds("ds_write2_b32 v%d, v%d, v%d offset0:128 offset1:129" % (vY2, AC + 4 * ASL[t], AC + 4 * ASL[t + 1]))
    a("s_mov_b64 exec, -1")


for i in range(40):
    t, k = i // 4, i % 4
    D = AC + 4 * ASL[t]
    wait_lg("af%d" % k)
    if in_lds(i):
        n = i // 2
        wait_lg("lf%d" % n)
        src = SLOT[n % 8]
    else:
        src = greg(i)
    mfma(D, AF + 4 * k, src, "0" if k == 0 else V(D, 4))
    if in_lds(i) and i // 2 + 8 < 19:
        lfrag(i // 2 + 8)
    if i in (13, 21, 29, 37):
        ywrite((i - 13) // 4)
ywrite(8)
wait_lg()
fstamp()
a("s_barrier")
fstamp()
a("s_cmp_lg_u32 s%d, 0" % sWv)
rawbr("s_cbranch_scc1 HB_W")
YR = SET
a("s_mov_b32 exec_hi, 0xff")
for w_ in range(4):
    a("ds_read_b128 %s, v%d offset:%d" % (V(YR + 4 * w_, 4), vY1, 640 * w_))
a("s_waitcnt lgkmcnt(2)")
pk(YR, YR, YR + 4); pk(YR + 2, YR + 2, YR + 6)
a("s_waitcnt lgkmcnt(0)")
pk(YR + 8, YR + 8, YR + 12); pk(YR + 10, YR + 10, YR + 14)
pk(YR, YR, YR + 8); pk(YR + 2, YR + 2, YR + 10)
for r in range(4):
    a("v_min_u32 v%d, -2, v%d" % (YR + r, YR + r))
a("buffer_store_dwordx4 %s, v%d, %s, s%d offen sc1" % (V(YR, 4), vL16, S(WS, 4), sHBm))
a("s_mov_b64 exec, -1")
rawbr("s_branch HB_0")
a.label("HB_W")
if P["HBW"]:
    a("s_sleep %d" % P["HBW"])
a.label("HB_0")
fstamp()
a("s_and_b32 s%d, s%d, 3" % (sT, sP))
a("s_cmp_eq_u32 s%d, 3" % sT)
rawbr("s_cbranch_scc1 L_FINAL")
a.label("HB_L")
NS = P["HBS"]
T = AF
UB = G if NS > 1 else AF + 10


def hb_issue(k):
    for p in range(2):
        U = UB + 20 * k + 10 * p
        a("buffer_load_dwordx4 %s, v%d, %s, s%d offen offset:%d sc1" % (V(U, 4), vHa, S(WS, 4), sHB, p * 640))
        a("buffer_load_dwordx4 %s, v%d, %s, s%d offen offset:%d sc1" % (V(U + 4, 4), vHa, S(WS, 4), sHB, p * 640 + 256))
        a("buffer_load_dwordx2 %s, v%d, %s, s%d offen offset:%d sc1" % (V(U + 8, 2), vHc, S(WS, 4), sHB, p * 640))


if NS > 1:
    a("s_mov_b32 s%d, 2" % sGty)
if P["HBD"]:
    a("s_sleep %d" % P["HBD"])
for k in range(NS):
    if k and P["HBSL"]:
        a("s_sleep %d" % P["HBSL"])
    hb_issue(k)
a.label("HB_R")
for k in range(NS):
    U0 = UB + 20 * k
    a("s_waitcnt vmcnt(%d)" % (6 * (NS - 1)))
    for r in range(0, 10, 2):
        pk(T + r, U0 + r, U0 + 10 + r)
    for r in (0, 2, 4, 6, 8):
        a("v_permlane32_swap_b32 v%d, v%d" % (T + r, T + r + 1))
    for r in (8, 0, 2, 4, 6):
        a("v_add_f32 v%d, v%d, v%d" % (T + r, T + r, T + r + 1))
        if r == 8:
            a("v_mov_b32 v%d, v%d" % (T + 9, T + 8))
    a("v_permlane16_swap_b32 v%d, v%d" % (T + 8, T + 9))
    a("v_permlane16_swap_b32 v%d, v%d" % (T, T + 2))
    a("v_permlane16_swap_b32 v%d, v%d" % (T + 4, T + 6))
    a("v_add_f32 v%d, v%d, v%d" % (T + 8, T + 8, T + 9))
    a("v_add_f32 v%d, v%d, v%d" % (T, T, T + 2))
    a("v_add_f32 v%d, v%d, v%d" % (T + 4, T + 4, T + 6))
    a("v_add_f32 v%d, v%d, v%d" % (T + 9, T + 8, T))
    a("v_cmp_u_f32 vcc, v%d, v%d" % (T + 9, T + 4))
    rawbr("s_cbranch_vccz HB_P")
    exact_check(range(U0, U0 + 20), cX)
    a("s_cbranch_vccz HB_P")
    budget("HB_P", None)
    hb_issue(k)
a("s_branch HB_R")
a.label("HB_P")
if DIAG != 2:
    stamp()
a("v_cvt_pk_bf16_f32 v%d, v%d, v%d" % (T + 8, T + 8, T + 8))
a("v_cvt_pk_bf16_f32 v%d, v%d, v%d" % (T, T, T + 4))
a("v_lshlrev_b32 v%d, 16, v%d" % (T + 8, T + 8))
a("v_lshlrev_b32 v%d, 16, v%d" % (T + 1, T))
a("v_and_b32 v%d, 0xffff0000, v%d" % (T + 2, T))
a("v_add_f32 v%d, v%d, v%d" % (T + 8, T + 8, xo + 2))
a("v_add_f32 v%d, v%d, v%d" % (T + 1, T + 1, xo))
a("v_add_f32 v%d, v%d, v%d" % (T + 2, T + 2, xo + 1))
a("v_cvt_pk_bf16_f32 v%d, v%d, v%d" % (cA + 1, T + 8, T + 8))
a("v_cvt_pk_bf16_f32 v%d, v%d, v%d" % (cA, T + 1, T + 2))
a("s_cmp_eq_u32 s%d, 16" % sN)
rawbr("s_cbranch_scc1 L_OUT")
a("ds_write_b16 v%d, v%d" % (tx3, cA + 1))
a("ds_write_b16 v%d, v%d" % (tx1, cA))
a("ds_write_b16_d16_hi v%d, v%d offset:8" % (tx1, cA))
wq_pre()
a("s_waitcnt lgkmcnt(0)")
fstamp()
a("s_barrier")
fstamp()
if P["EGB"]:
    a("s_add_u32 s%d, s%d, 1" % (sT, sN))
    a("s_lshl_b32 s%d, s%d, 2" % (sT, sT))
    a("s_lshr_b64 s[16:17], s[18:19], s%d" % sT)
    a("s_and_b32 s20, s16, 1")
    a("s_mov_b32 s%d, 2" % sMode)
    a("s_mov_b32 s%d, 3" % sGty)
a("s_call_b64 %s, R_WQ2" % S(RA, 2))
a("s_mov_b32 s%d, 0" % sMode)
stamp()
a("s_add_u32 s%d, s%d, 1" % (sN, sN))
a("s_branch L_CH")
a.label("L_FINAL")
a("s_barrier")
stamp()
a("s_add_u32 s%d, s%d, 1" % (sN, sN))
a("s_cmp_lt_u32 s%d, 16" % sN)
a("s_cbranch_scc1 L_CH")
a("s_cmp_gt_u32 s%d, 3" % sH)
a("s_cbranch_scc1 L_FIN")
a("s_cmp_eq_u32 s%d, 3" % sH)
a("s_cbranch_scc1 HB_L")
a("s_lshl_b32 s%d, s%d, 2" % (sT, sH))
a("s_add_u32 s%d, s%d, 3" % (sT, sT))
a("s_mul_i32 s%d, s%d, %d" % (sT, sT, PH))
a("s_add_u32 s%d, s%d, s%d" % (sHB, sT, sHBo))
a("s_mul_i32 s%d, s%d, 1280" % (sX, sH))
a("v_add_u32 v%d, s%d, v%d" % (tx1, sX, vX1))
a("v_add_u32 v%d, s%d, v%d" % (tx3, sX, vX3))
a("ds_read_u16 v%d, v%d" % (xo, tx1))
a("ds_read_u16 v%d, v%d offset:8" % (xo + 1, tx1))
a("ds_read_u16 v%d, v%d" % (xo + 2, tx3))
a("s_waitcnt lgkmcnt(0)")
for r in range(3):
    a("v_lshlrev_b32 v%d, 16, v%d" % (xo + r, xo + r))
a("s_branch HB_L")
a.label("L_OUT")
a("buffer_store_short v%d, v%d, %s, s%d offen" % (cA + 1, vX3, S(OUT, 4), sX))
a("buffer_store_short v%d, v%d, %s, s%d offen" % (cA, vX1, S(OUT, 4), sX))
a("buffer_store_short_d16_hi v%d, v%d, %s, s%d offen offset:8" % (cA, vX1, S(OUT, 4), sX))
a("s_branch L_FIN")

a.label("R_WQ")
lgq.clear()
wq_pre()
a.label("R_WQ2")
NPRE = 7
for k in range(3):
    ds("ds_read_b128 %s, v%d offset:%d" % (V(SLOT[k % 8], 4), ta, 64 * k), "xf%d" % k)
a("s_cmp_eq_u32 s%d, 0" % sTy)
rawbr("s_cbranch_scc1 WQ_B")
lg_save = list(lgq)


def stats_ops():
    ops = []
    for r in range(5):
        ops.append("v_dot2c_f32_bf16 v%d, v%d, v%d" % (s2, XS + r, XS + r))
        ops.append("v_dot2c_f32_bf16 v%d, v%d, v%d" % (s1, XS + r, one))
    ops += [
        "v_permlane32_swap_b32 v%d, v%d" % (s2, s1),
        "v_add_f32 v%d, v%d, v%d" % (s2, s2, s1),
        "v_mov_b32 v%d, v%d" % (s1, s2),
        "v_permlane16_swap_b32 v%d, v%d" % (s2, s1),
        "v_add_f32 v%d, v%d, v%d" % (s2, s2, s1),
    ]
    for q in QP:
        ops.append("v_add_f32_dpp v%d, v%d, v%d %s %s" % (s2, s2, s2, q, DPPM))
    ops += [
        "v_mul_f32 v%d, 0x%08x, v%d" % (s2, f32(1.0 / 640), s2),
        "v_mov_b32 v%d, v%d" % (s1, s2),
        "v_permlane32_swap_b32 v%d, v%d" % (s2, s1),
        "v_fma_f32 v%d, -v%d, v%d, v%d" % (s2, s1, s1, s2),
        "v_max_f32 v%d, 0, v%d" % (s2, s2),
        "v_cvt_pk_bf16_f32 v%d, v%d, v%d" % (s2, s1, s2),
        "v_lshlrev_b32 v%d, 16, v%d" % (s1, s2),
        "v_and_b32 v%d, 0xffff0000, v%d" % (s2, s2),
        "v_add_f32 v%d, 0x%08x, v%d" % (s2, f32(1e-5), s2),
        "v_cvt_pk_bf16_f32 v%d, v%d, v%d" % (s2, s2, s2),
        "v_and_b32 v%d, 0xffff0000, v%d" % (s2, s2),
        "v_sqrt_f32 v%d, v%d" % (s2, s2),
        "v_cvt_pk_bf16_f32 v%d, v%d, v%d" % (s2, s2, s2),
        "v_and_b32 v%d, 0xffff0000, v%d" % (s2, s2),
        "v_rcp_f32 v%d, v%d" % (s2, s2),
    ]
    return ops


for mat in (0, 1):
    if mat == 1:
        a.label("WQ_B")
        lgq[:] = lg_save
    for k in range(3, NPRE):
        ds("ds_read_b128 %s, v%d offset:%d" % (V(SLOT[k % 8], 4), ta, 64 * k), "xf%d" % k)
    ds("ds_read2st64_b32 %s, v%d offset0:0 offset1:1" % (V(XS, 2), ts))
    ds("ds_read2st64_b32 %s, v%d offset0:2 offset1:3" % (V(XS + 2, 2), ts))
    ds("ds_read_b32 v%d, v%d offset:1024" % (XS + 4, ts), "xs")
    so = stats_ops() + ["v_mul_f32 v%d, v%d, v%d" % (s1, s1, s2),
                        "v_mul_f32 v%d, v%d, v%d" % (XS, s1, vC + 2 * mat),
                        "v_mul_f32 v%d, v%d, v%d" % (XS + 1, s1, vC + 2 * mat + 1)]
    for k in range(20):
        if k < 3 or k % 2 == 0:
            wait_lg("xf%d" % min(19, k + (1 if k >= 3 else 0)))
        wait_lg("xf%d" % k)
        for ct in range(2):
            mfma(DQ + 4 * ct, SLOT[k % 8], WQF(mat, k, ct), "0" if k == 0 else V(DQ + 4 * ct, 4))
            if ct == 1 and k + NPRE < 20:
                ds("ds_read_b128 %s, v%d offset:%d" % (V(SLOT[(k + NPRE) % 8], 4), ta, 64 * (k + NPRE)), "xf%d" % (k + NPRE))
            if k >= 3:
                if k == 3 and ct == 0:
                    wait_lg("xs")
                for _ in range(2 if k >= 13 else 1):
                    if so:
                        a(so.pop(0))
    for op in so:
        a(op)
    Cr = vC + 2 * mat
    lab = a.newlabel("WQC")
    a("s_cmp_eq_u32 s%d, 1" % sMode)
    rawbr("s_cbranch_scc1 %s" % lab)
    a("s_mov_b64 exec, 0xffff")
    a("s_cmp_eq_u32 s%d, 0" % sLoc)
    a("v_fma_f32 v%d, v%d, v%d, -v%d" % (DQ, DQ, s2, XS))
    a("v_fma_f32 v%d, v%d, v%d, -v%d" % (DQ + 4, DQ + 4, s2, XS + 1))
    a("v_cvt_pk_bf16_f32 v%d, v%d, v%d" % (DQ, DQ, DQ + 4))
    a("v_min_u32 v%d, -2, v%d" % (DQ, DQ))
    lab2 = a.newlabel("QLOC")
    rawbr("s_cbranch_scc1 %s" % lab2)
    a("buffer_store_dword v%d, v%d, %s, s%d offen" % (DQ, vL4, S(WS, 4), sHC))
    a("s_mov_b64 exec, -1")
    a("s_setpc_b64 %s" % S(RA, 2))
    a.label(lab2)
    a("buffer_store_dword v%d, v%d, %s, s%d offen sc1" % (DQ, vL4, S(WS, 4), sHC))
    a("s_mov_b64 exec, -1")
    a("s_setpc_b64 %s" % S(RA, 2))
    a.label(lab)
    a.nop(8)
    a("v_mov_b32 v%d, v%d" % (Cr, DQ))
    a("v_mov_b32 v%d, v%d" % (Cr + 1, DQ + 4))
    a("s_setpc_b64 %s" % S(RA, 2))

a.label("L_FIN")
if DIAG:
    stamp()
    a("v_mbcnt_lo_u32_b32 v1, -1, 0")
    a("v_mbcnt_hi_u32_b32 v1, -1, v1")
    a("v_lshlrev_b32 v1, 2, v1")
    a("s_lshl_b32 s%d, s%d, 3" % (sT, sH))
    a("s_add_u32 s%d, s%d, s%d" % (sT, sT, sS))
    a("s_lshl_b32 s%d, s%d, 2" % (sT, sT))
    a("s_add_u32 s%d, s%d, s%d" % (sT, sT, sWv))
    a("s_lshl_b32 s%d, s%d, 8" % (sT, sT))
    a("s_add_u32 s%d, s%d, 0x%x" % (sT, sT, WS_DIAG))
    a("buffer_store_dword v0, v1, %s, s%d offen" % (S(WS, 4), sT))
a.label("L_END")
a("s_endpgm")

DESIGN = """
"""
ref = open(os.path.join(os.path.dirname(__file__), "..", "cdna_kernels", NAME + ".s.ref")).read().splitlines()
head = [l for l in ref if l.startswith(";") and "@launch" not in l and not l.startswith("; Override") and not l.startswith("; grid=")]
out = "\n".join(head) + DESIGN
out += "; @launch grid=(256,1,1) block=(256,1,1) lds=%d\n" % LDS_BYTES
out += '.amdgcn_target "amdgcn-amd-amdhsa--gfx950"\n.text\n.globl %s_kernel\n.p2align 8\n.type %s_kernel,@function\n%s_kernel:\n' % (NAME, NAME, NAME)
if P["ALN"]:
    import align
    a.lines = align.run(a.lines, NAME + "_kernel")
out += a.text()
out += """.section .rodata,"a"
.p2align 6
.amdhsa_kernel %s_kernel
  .amdhsa_next_free_vgpr 512
  .amdhsa_next_free_sgpr 102
  .amdhsa_accum_offset 256
  .amdhsa_group_segment_fixed_size 0
  .amdhsa_kernarg_size 104
  .amdhsa_user_sgpr_count 2
  .amdhsa_user_sgpr_kernarg_segment_ptr 1
  .amdhsa_system_sgpr_workgroup_id_x 1
  .amdhsa_float_denorm_mode_32 3
.end_amdhsa_kernel
""" % NAME
open(sys.argv[1], "w").write(out)
print("wrote", sys.argv[1], len(a.lines), "lines")
```

```python
import sys, os, math, struct
from collections import deque
sys.path.insert(0, os.path.dirname(__file__))
from asmlib import Asm, V, S

NAME = "interleave_layers__gqa_block_cached__gqa_block_cached__decode"

P = dict(W=6, DIAG=0, PF=20, NG=0, SPR=3, ALN=1, HBD=10, HBW=4, FAST=1, NOW0=1, TLB=0, EARLY=1, PRO=0, L2N=1, L2E=8, TURBO=20, TG0=1, TG1=6, WG3=6, NVJ=24, L2B=0, L2R=8, PBAR=1, TCH=0, EGB=0, WOT=2, ORD=1, PF4=16, Q2POS=34, WPF=1, SCALE=1000, W0=6, CUD=0, ROT=0, CPF=1, WQNT=0, CDEL=1, LOCAL=1, HBS=1, HBSL=3, APF=4, WCU=6, XB=1, HLP=0, WH=4, B4R=4, WPFW=2, WEND=6, NEND=12)
for arg in sys.argv[2:]:
    k, v = arg.split("=")
    P[k] = int(v)
W = P["W"]
DIAG = P["DIAG"]
PF = P["PF"]
NG = P["NG"]
NVJ = P["NVJ"]


def f32(x):
    return struct.unpack("<I", struct.pack("<f", x))[0]


LDS_BYTES = 163840
L_CNT = [0, 4]
L_ROLE = 8184
L_PART = [64, 64 + 2112]
L_VA = 8192
L_X = 0
L_YB = 5120
L_WO = 8192
PH = 184320
HB0 = 147456
HC0 = 167936
WF0 = 4 << 20
WS_DIAG = 12 << 20
WS_BYTES = 13 << 20
BATCH = 1 << 25
TENSOR = 1 << 27
DPPM = "row_mask:0xf bank_mask:0xf"
QP = ["quad_perm:[1,0,3,2]", "quad_perm:[2,3,0,1]", "row_half_mirror", "row_mirror"]

a = Asm()

sH, sS, sWv = 3, 4, 5
KA, VA, KB, VB, WS, DBG, WT, OUT = 44, 48, 52, 56, 80, 84, 88, 92
sNRK, sNRV = 60, 61
sTO, sC, sT, sT2, sLB, sTv = 62, 63, 64, 65, 66, 67
sQM = 70
sDI = 98
sXc, sLoc = 99, 79
RA = 100


def stamp():
    if not DIAG:
        return
    a("s_memrealtime s[96:97]")
    a("s_waitcnt lgkmcnt(0)")
    lgq.clear()
    a("s_lshl_b64 exec, 1, s%d" % sDI)
    a("v_mov_b32 v0, s96")
    a("s_mov_b64 exec, -1")
    a("s_add_u32 s%d, s%d, 1" % (sDI, sDI))


def fstamp():
    if DIAG != 3:
        return
    lab = a.newlabel("FS")
    a("s_cmp_lt_u32 s9, 11")
    a("s_cbranch_scc1 %s" % lab)
    sv = list(lgq)
    stamp()
    lgq[:] = sv
    a.label(lab)


def budget(done, loop, sleep=None):
    a("s_cmp_eq_u32 s%d, 0" % sTO)
    a("s_cbranch_scc1 %s" % done)
    a("s_sub_u32 s%d, s%d, 1" % (sTO, sTO))
    if sleep:
        a("s_sleep %d" % sleep)
    if loop:
        a("s_branch %s" % loop)


def rawbr(text):
    a.raw("    " + text)
    a.st += 1


def mfma(d, x, y, c):
    a("v_mfma_f32_16x16x32_bf16 %s, %s, %s, %s" % (V(d, 4), V(x, 4), V(y, 4), c))


def pk(d, x, y):
    a("v_pk_add_f32 %s, %s, %s" % (V(d, 2), V(x, 2), V(y, 2)))


def srd(dst, ptr, nrec):
    a("s_mov_b32 s%d, s%d" % (dst, ptr))
    a("s_and_b32 s%d, s%d, 0xffff" % (dst + 1, ptr + 1))
    a("s_mov_b32 s%d, %s" % (dst + 2, nrec))
    a("s_mov_b32 s%d, 0x20000" % (dst + 3))


def l2fetch(bit, vo, srdn, so, off=0, tag=None, old=""):
    so = "s%d" % so if so is not None else "0"
    if not P["PRO"] & bit:
        a("buffer_load_dwordx4 v[48:51], v%d, %s, %s offen offset:%d%s" % (vo, S(srdn, 4), so, off, old), tag=tag)
        return
    if P["PRO"] & 8:
        a("buffer_load_dwordx4 v[48:51], v%d, %s, %s offen offset:%d nt" % (vo, S(srdn, 4), so, off), tag=tag)
    else:
        a("buffer_load_dword v48, v%d, %s, %s offen offset:%d nt" % (vo, S(srdn, 4), so, off), tag=tag)
    a("buffer_load_dword v49, v%d, %s, %s offen offset:%d sc1" % (vo, S(srdn, 4), so, off), tag=tag)


lgq = []


def ds(text, tag=None):
    a(text)
    lgq.append(tag)


def wait_lg(tag=None):
    if tag is None:
        a("s_waitcnt lgkmcnt(0)")
        lgq.clear()
        return
    if tag not in lgq:
        return
    idx = max(i for i, t in enumerate(lgq) if t == tag)
    n = len(lgq) - 1 - idx
    a("s_waitcnt lgkmcnt(%d)" % min(n, 15))
    del lgq[:len(lgq) - min(n, 15)]


def exact_check(regs, t):
    regs = list(regs)
    a("v_max3_u32 v%d, v%d, v%d, v%d" % (t, regs[0], regs[1], regs[2]))
    i = 3
    while i < len(regs):
        r2 = regs[i + 1] if i + 1 < len(regs) else regs[i]
        a("v_max3_u32 v%d, v%d, v%d, v%d" % (t, t, regs[i], r2))
        i += 2
    a("v_cmp_eq_u32 vcc, -1, v%d" % t)


if DIAG:
    a("s_memrealtime s[96:97]")
a("s_cmp_ge_u32 s2, 256")
a("s_cbranch_scc1 L_END")
a("s_load_dwordx16 s[16:31], s[0:1], 0")
a("s_load_dwordx8 s[32:39], s[0:1], 64")
a("s_load_dwordx2 s[40:41], s[0:1], 96")
a("v_lshrrev_b32 v1, 6, v0")
a("v_and_b32 v47, 63, v0")
a("v_readfirstlane_b32 s%d, v1" % sWv)
a("s_getreg_b32 s6, hwreg(HW_REG_XCC_ID, 0, 4)")
a("s_cmp_lt_u32 s6, 8")
a("s_cselect_b32 s%d, 1, 0x10001" % sXc)
a("s_and_b32 s6, s6, 7")
a("v_mov_b32 v2, 0")
a("s_getpc_b64 %s" % S(WT, 2))
a.label("L_PC")
a("s_sub_u32 s%d, s%d, L_PC-%s_kernel" % (WT, WT, NAME))
a("s_subb_u32 s%d, s%d, 0" % (WT + 1, WT + 1))
a("s_and_b32 s%d, s%d, 0xffff" % (WT + 1, WT + 1))
a("s_mov_b32 s%d, L_END-%s_kernel" % (WT + 2, NAME))
a("s_mov_b32 s%d, 0x20000" % (WT + 3))
a("s_lshr_b32 s10, s2, 3")
a("s_lshl_b32 s8, s10, 12")
a("v_lshl_add_u32 v42, v0, 4, s8")
a("buffer_load_dwordx4 v[60:63], v42, %s, 0 offen" % S(WT, 4))
a("v_lshlrev_b32 v43, 4, v47")
a("s_lshl_b32 s10, s10, 2")
a("s_add_u32 s10, s10, s%d" % sWv)
a("s_lshl_b32 s10, s10, 13")
a("s_lshl_b32 s8, s6, 10")
a("s_add_u32 s10, s10, s8")
a("s_mov_b32 s7, 8")
a("s_waitcnt lgkmcnt(0)")
srd(DBG, 38, "256")
a("s_cmp_lg_u32 s%d, 0" % sWv)
a("s_cbranch_scc1 L_TKW")
a("s_mov_b64 exec, 1")
a.label("L_TK")
a("s_lshl_b32 s8, s6, 5")
a("v_mov_b32 v3, 1")
a("buffer_atomic_add v3, v2, %s, s8 offen sc0 sc1" % S(DBG, 4))
a("s_waitcnt vmcnt(0)")
a("v_readfirstlane_b32 s9, v3")
a("s_cmp_lt_u32 s9, 32")
a("s_cbranch_scc1 L_TKD")
a("s_mov_b32 s%d, 0x10001" % sXc)
a("s_add_u32 s6, s6, 1")
a("s_and_b32 s6, s6, 7")
a("s_sub_u32 s7, s7, 1")
a("s_cmp_lg_u32 s7, 0")
a("s_cbranch_scc1 L_TK")
a("s_and_b32 s6, s2, 7")
a("s_lshr_b32 s9, s2, 3")
a.label("L_TKD")
a("s_lshl_b32 s6, s6, 5")
a("s_or_b32 s6, s6, s9")
a("v_mov_b32 v3, s6")
a("ds_write_b32 v2, v3 offset:%d" % L_ROLE)
a("s_mov_b64 exec, -1")
a("s_waitcnt lgkmcnt(0)")
a.label("L_TKW")
srd(WT, 22, "0x%x" % (640 * 8192))
for r in range(5):
    a("buffer_load_dwordx4 v[60:63], v43, %s, s10 offen" % S(WT, 4))
    if r < 4:
        a("s_add_u32 s10, s10, %d" % (128 * 8192))
a("s_mov_b32 s%d, 200000" % sTO)
a("s_mov_b32 s%d, 0" % sDI)
a("s_mov_b32 s%d, 0" % sLoc)
a("v_and_b32 v46, 15, v47")
a("v_lshrrev_b32 v45, 4, v47")
a("s_barrier")
a("ds_read_b32 v3, v2 offset:%d" % L_ROLE)
a("s_waitcnt lgkmcnt(0)")
a("v_readfirstlane_b32 s6, v3")
a("s_and_b32 s6, s6, 255")
a("s_and_b32 s7, s6, 31")
a("v_mov_b32 v0, 0")
a("s_lshr_b32 s%d, s6, 5" % sH)
a("s_lshl_b32 s%d, s%d, 2" % (sH, sH))
a("s_and_b32 s8, s7, 3")
a("s_add_u32 s%d, s%d, s8" % (sH, sH))
a("s_lshr_b32 s%d, s7, 2" % sS)
a("s_add_u32 s%d, s%d, 7" % (sS, sS))
a("s_and_b32 s%d, s%d, 7" % (sS, sS))


def ready_add(vd, vz):
    a("s_lshr_b32 s%d, s%d, 2" % (sT2, sH))
    a("s_lshl_b32 s%d, s%d, 5" % (sT2, sT2))
    a("v_mov_b32 v%d, s%d" % (vd, sXc))
    a("s_mov_b64 exec, 1")
    a("buffer_atomic_add v%d, v%d, %s, s%d offen offset:4 sc1" % (vd, vz, S(DBG, 4), sT2))
    a.vmopt.add(len(a.vmq) - 1)
    a("s_mov_b64 exec, -1")


def ready_local(vd):
    if not P["LOCAL"]:
        return
    a("v_cmp_eq_u32 vcc, 32, v%d" % vd)
    a("s_lshr_b32 s%d, s%d, 2" % (sT2, sH))
    a("s_nop 3")
    a("s_lshr_b32 s%d, vcc_lo, s%d" % (sT2, sT2))
    a("s_and_b32 s%d, s%d, 1" % (sLoc, sT2))


def common_srds():
    if DIAG:
        a("s_mov_b64 exec, 1")
        a("v_mov_b32 v0, s96")
        a("s_mov_b64 exec, -1")
        a("s_mov_b32 s%d, 1" % sDI)
    srd(WS, 40, "0x%x" % WS_BYTES)
    srd(DBG, 38, "256")


a("s_cmp_eq_u32 s%d, 7" % sS)
a("s_cbranch_scc1 L_COMM")

vK, vL, vPt, MK, vBias = 1, 2, 3, 4, 8
SS = list(range(9, 19))
vQa = 19
ML, vT, vU = 20, 22, 23
D2, D1, D3 = 20, 24, 28
QF = 32
ACC = 32
QR = 48
sB, sCur, sNxt, sHas, sPq, sPa, sWi = 6, 7, 8, 9, 10, 11, 12
GO = 16


def home(kind, i):
    if kind == "KS":
        return 56 + 4 * (i - (36 - P["SPR"]))
    if kind == "KA":
        return 68 + 4 * i
    if kind == "KB":
        return 216 + 4 * i
    if kind == "VB":
        return 216 + 148 + 4 * i
    raise KeyError


assert home("VB", 36) + 4 == 512

a("s_mul_i32 s%d, s%d, 7" % (sWi, sWv))
a("s_add_u32 s%d, s%d, s%d" % (sWi, sWi, sS))
wpf = []
if P["WPF"]:
    a("s_and_b32 s15, s%d, 3" % sH)
    a("s_mul_i32 s15, s15, 28")
    a("s_add_u32 s15, s15, s%d" % sWi)
    a("s_lshr_b32 s42, s%d, 2" % sH)
    a("s_mul_i32 s43, s42, 655360")
    a("s_lshl_b32 s42, s42, 10")

    def wpf_load(ptr, isq, r):
        def fn():
            if r == 0:
                srd(WT, ptr, "0x%x" % (640 * 8192))
            a("s_add_u32 s%d, s15, %d" % (sT2, 112 * r))
            a("s_min_u32 s%d, s%d, 639" % (sT2, sT2))
            a("s_lshl_b32 s%d, s%d, %d" % (sT2, sT2, 13 if isq else 10))
            a("s_add_u32 s%d, s%d, s%d" % (sT2, sT2, 42 if isq else 43))
            l2fetch(2, 43, WT, sT2, tag="wpf")
        return fn
    for ptr, isq in ((24, 0), (34, 0), (32, 1)):
        for r in range(6):
            wpf.append(wpf_load(ptr, isq, r))

a("s_waitcnt lgkmcnt(0)")
common_srds()
a("s_mov_b32 s%d, 0x%08x" % (sC, f32(128 ** -0.5 * math.log2(math.e) * P["SCALE"] / 1000.0)))
for t in range(4):
    m = 0x000F000F << (4 * t)
    a("s_mov_b32 s%d, 0x%08x" % (sQM + 2 * t, m))
    a("s_mov_b32 s%d, 0x%08x" % (sQM + 2 * t + 1, m))
a("s_cmp_lt_u32 s%d, 16" % sWi)
a("s_cselect_b32 s%d, 1, 0" % sHas)
a("s_min_u32 s13, s%d, 16" % sWi)
a("s_mul_i32 s14, s%d, 36" % sWi)
a("s_add_u32 s13, s13, s14")
a("s_lshl_b32 s13, s13, 10")
a("s_lshl_b32 s14, s%d, 20" % sH)
a("s_add_u32 s13, s13, s14")
a("s_mul_i32 s%d, s%d, 37888" % (sLB, sWv))
a("s_add_u32 s%d, s%d, %d" % (sLB, sLB, L_VA))
a("s_sub_u32 s%d, 0x%x, s13" % (sNRK, TENSOR))
a("s_add_u32 s%d, s%d, s%d" % (sNRV, sNRK, sLB))
for dst, ptr, isv in ((KA, 18, 0), (VA, 20, 1), (KB, 28, 0), (VB, 30, 1)):
    a("s_add_u32 s%d, s%d, s13" % (dst, ptr))
    a("s_addc_u32 s%d, s%d, 0" % (dst + 1, ptr + 1))
    if isv:
        a("s_sub_u32 s%d, s%d, s%d" % (dst, dst, sLB))
        a("s_subb_u32 s%d, s%d, 0" % (dst + 1, dst + 1))
    a("s_and_b32 s%d, s%d, 0xffff" % (dst + 1, dst + 1))
    a("s_mov_b32 s%d, s%d" % (dst + 2, sNRV if isv else sNRK))
    a("s_mov_b32 s%d, 0x20000" % (dst + 3))
if P["HLP"]:
    a("s_add_u32 s14, s%d, 1" % sS)
    a("s_cmp_eq_u32 s14, 7")
    a("s_cselect_b32 s14, 0, s14")
    a("s_mul_i32 s15, s%d, 7" % sWv)
    a("s_add_u32 s14, s14, s15")
    a("s_min_u32 s15, s14, 16")
    a("s_mul_i32 s14, s14, 36")
    a("s_add_u32 s14, s14, s15")
    a("s_lshl_b32 s14, s14, 10")
    a("s_lshl_b32 s15, s%d, 20" % sH)
    a("s_add_u32 s14, s14, s15")
    a("s_add_u32 s%d, s30, s14" % OUT)
    a("s_addc_u32 s%d, s31, 0" % (OUT + 1))
    a("s_sub_u32 s%d, s%d, s%d" % (OUT, OUT, sLB))
    a("s_subb_u32 s%d, s%d, 0" % (OUT + 1, OUT + 1))
    a("s_and_b32 s%d, s%d, 0xffff" % (OUT + 1, OUT + 1))
    a("s_sub_u32 s%d, 0x%x, s14" % (OUT + 2, TENSOR))
    a("s_add_u32 s%d, s%d, s%d" % (OUT + 2, OUT + 2, sLB))
    a("s_mov_b32 s%d, 0x20000" % (OUT + 3))
a("v_and_b32 v44, 3, v47")
a("v_lshlrev_b32 v%d, 4, v44" % vQa)
a("v_lshl_add_u32 v%d, v45, 6, v%d" % (vQa, vQa))
a("v_bfe_u32 v44, v47, 2, 2")
a("v_lshl_add_u32 v%d, v44, 8, v%d" % (vK, vQa))
a("v_lshl_add_u32 v%d, v45, 6, v%d" % (vQa, vQa))
a("v_add_u32 v%d, s%d, v43" % (vL, sLB))
a("s_lshl_b32 s%d, s%d, 9" % (sPq, sH))
a("s_add_u32 s%d, s%d, %d" % (sPq, sPq, HC0))
a("s_mul_i32 s%d, s%d, 4608" % (sPa, sH))
a("s_mov_b32 s%d, 0" % sB)
a("s_mov_b32 s%d, 0" % sCur)

curh = {"K": None, "V": None, "m0": None}
fab = []
done_idx = [-1]
live = {}


def waitvm(n):
    assert n <= 63, n
    a("s_waitcnt vmcnt(%d)" % n)
    i, c = len(a.vmq) - 1, 0
    while i >= 0 and c < n:
        if i not in a.vmopt:
            c += 1
        i -= 1
    done_idx[0] = max(done_idx[0], i)


def tag_idx(tag):
    return max(i for i, t in enumerate(a.vmq) if t == tag)


def landed(tag):
    return tag_idx(tag) <= done_idx[0]


def wait_tag(tag):
    if not landed(tag):
        waitvm(a.vm_after_idx(tag_idx(tag)))


WIN = [P["W0"]]


def pace():
    w = WIN[0]
    if len(fab) >= w and fab[-w] > done_idx[0]:
        waitvm(a.vm_after_idx(fab[-w]))


def reset_vm():
    a.vmq[:] = ["old"] * W
    a.vmopt.clear()
    fab[:] = list(range(W))
    done_idx[0] = -1
    curh.update(K=None, V=None, m0=None)


def load_tile(kind, off, i, mode, fabric, paced):
    g, t = i // 4, i % 4
    srdn = {"KA": KA, "VA": VA, "KB": KB, "VB": VB, "VN": OUT, "KS": KA}[kind]
    c = kind[0]
    vo, so = (vK, sT) if c == "K" else (vL, sTv)
    if mode == "home":
        assert not live.get((kind, i), False), ("slot busy", kind, i)
        live[(kind, i)] = True
    if curh[c] != (kind, off, g):
        a("s_add_u32 s%d, s%d, s%d" % (so, off, GO + g))
        curh[c] = (kind, off, g)
    lds = kind == "VA" and mode == "home"
    if lds and curh["m0"] != g:
        a("s_add_u32 m0, s%d, %d" % (sLB, g * 4096))
        curh["m0"] = g
    if fabric and paced:
        pace()
    opt = i == 36
    if opt:
        lab = a.newlabel("NT")
        a("s_cmp_eq_u32 s%d, 0" % sHas)
        rawbr("s_cbranch_scc1 %s" % lab)
    tag = "%s%d" % (kind, g) if mode == "home" else "pf"
    if lds:
        a("buffer_load_dwordx4 v%d, %s, s%d offen offset:%d nt lds" % (vo, S(srdn, 4), so, t * 1024), tag=tag)
    elif mode == "home":
        a("buffer_load_dwordx4 %s, v%d, %s, s%d offen offset:%d nt" % (V(home(kind, i), 4), vo, S(srdn, 4), so, t * 1024), tag=tag)
    else:
        a("buffer_load_dwordx4 %s, v%d, %s, s%d offen offset:%d" % (V(QR, 4), vo, S(srdn, 4), so, t * 1024), tag=tag)
    if opt:
        a.label(lab)
        a.st -= 1
        a.vmopt.add(len(a.vmq) - 1)
    elif fabric:
        fab.append(len(a.vmq) - 1)


Q = deque()


def pump(n=1, paced=True):
    while n > 0 and Q:
        it = Q.popleft()
        if callable(it):
            it()
            continue
        load_tile(*it, paced)
        n -= 1
        while Q and (callable(Q[0]) or not Q[0][4]):
            it = Q.popleft()
            if callable(it):
                it()
            else:
                load_tile(*it, paced)


def free(kind, g):
    for i in range(4 * g, min(4 * g + 4, 37)):
        live[(kind, i)] = False


def qload(blk_off):
    a("s_add_u32 s%d, s%d, %d" % (sT2, sPq, blk_off * PH))
    a("buffer_load_dwordx4 %s, v%d, %s, s%d offen sc1" % (V(QR, 4), vQa, S(WS, 4), sT2), tag="q")


def qcheck(blk_off, early, QR=QR, dn=None):
    lp, dn = a.newlabel("QL"), dn or a.newlabel("QD")
    if early:
        wait_tag("q")
        exact_check(range(QR, QR + 4), vT)
        a("s_cbranch_vccz %s" % dn)
    a("s_add_u32 s%d, s%d, %d" % (sT2, sPq, blk_off * PH))
    a.label(lp)
    a("buffer_load_dwordx4 %s, v%d, %s, s%d offen sc1" % (V(QR, 4), vQa, S(WS, 4), sT2), tag="qspin")
    if early:
        a.vmopt.add(len(a.vmq) - 1)
        a("s_waitcnt vmcnt(0)")
    else:
        waitvm(0)
    exact_check(range(QR, QR + 4), vT)
    a("s_cbranch_vccz %s" % dn)
    budget(dn, lp)
    a.label(dn)
    for t in range(4):
        for r in range(4):
            a("v_cndmask_b32 %s, 0, %s, %s" % (V(QF + 4 * t + r), V(QR + r), S(sQM + 2 * t, 2)))


SDST = {}


def red_ops(D, g):
    Sr = SDST.get(g, SS[g])
    first = ("v_mov_b32_dpp %s, %s quad_perm:[0,0,0,0] %s" % (V(Sr), V(D), DPPM) if g < 9 else
             "v_add_f32_dpp %s, %s, %s quad_perm:[0,0,0,0] %s" % (V(Sr), V(D), V(vBias), DPPM))
    return [first] + [
        "v_add_f32_dpp %s, %s, %s quad_perm:[%d,%d,%d,%d] %s" % (V(Sr), V(D + r), V(Sr), r, r, r, r, DPPM)
        for r in (1, 2, 3)]


SX = [56, 57, 58, 59, 60]


def qk_early():
    for g in range(NG):
        SDST[g] = SX[g]
    qk_burst("KA", list(range(NG)), release=True)
    SDST.clear()


def qk_burst(kind, order, hook=None, release=False, pre=None):
    Ds = [D1, D2, D3]
    n = len(order)
    for i, g in enumerate(order):
        if pre:
            pre(g)
        D = Ds[i % 3]
        r = red_ops(Ds[(i - 2) % 3], order[i - 2]) if i >= 2 else [None] * 4
        for t in range(4):
            if g < 9 or t == 0:
                mfma(D, home(kind, 4 * g + t), QF + 4 * t, "0" if t == 0 else V(D, 4))
            if r[t]:
                a(r[t])
        if release:
            free(kind, g)
        if hook:
            hook(i)
    assert n >= 2
    ra, rb = red_ops(Ds[(n - 2) % 3], order[n - 2]), red_ops(Ds[(n - 1) % 3], order[n - 1])
    for x, y in zip(ra, rb):
        a(x)
        a(y)


def xlane(op, X, U):
    a("%s_dpp %s, %s, %s row_ror:4 %s" % (op, V(X), V(X), V(X), DPPM))
    a("%s_dpp %s, %s, %s row_ror:8 %s" % (op, V(X), V(X), V(X), DPPM))
    a("v_mov_b32 %s, %s" % (V(U), V(X)))
    a("v_permlane16_swap_b32 %s, %s" % (V(X), V(U)))
    a("%s %s, %s, %s" % (op, V(X), V(X), V(U)))
    a("v_mov_b32 %s, %s" % (V(U), V(X)))
    a("v_permlane32_swap_b32 %s, %s" % (V(X), V(U)))
    a("%s %s, %s, %s" % (op, V(X), V(X), V(U)))


def softmax():
    M, L = ML, ML + 1
    a("v_max3_f32 %s, %s, %s, %s" % (V(M), V(SS[0]), V(SS[1]), V(SS[2])))
    a("v_max3_f32 %s, %s, %s, %s" % (V(L), V(SS[3]), V(SS[4]), V(SS[5])))
    a("v_max3_f32 %s, %s, %s, %s" % (V(M), V(M), V(SS[6]), V(SS[7])))
    a("v_max3_f32 %s, %s, %s, %s" % (V(L), V(L), V(SS[8]), V(SS[9])))
    a("v_max_f32 %s, %s, %s" % (V(M), V(M), V(L)))
    xlane("v_max_f32", M, vU)
    a("v_mul_f32 %s, s%d, %s" % (V(M), sC, V(M)))
    for s_ in SS:
        a("v_fma_f32 %s, %s, s%d, -%s" % (V(s_), V(s_), sC, V(M)))
    for s_ in SS:
        a("v_exp_f32 %s, %s" % (V(s_), V(s_)))
    a("v_add_f32 %s, %s, %s" % (V(L), V(SS[0]), V(SS[1])))
    for s_ in SS[2:]:
        a("v_add_f32 %s, %s, %s" % (V(L), V(L), V(s_)))
    for s_ in SS:
        a("v_cvt_pk_bf16_f32 %s, %s, %s" % (V(s_), V(s_), V(s_)))


def pv_ops(Pr, AX, AY):
    ax = ["v_and_b32 %s, %s, %s" % (V(AX), V(Pr), V(MK)),
          "v_and_b32 %s, %s, %s" % (V(AX + 1), V(Pr), V(MK + 1)),
          "v_and_b32_dpp %s, %s, %s row_ror:4 %s" % (V(AX + 2), V(Pr), V(MK + 2), DPPM),
          "v_and_b32_dpp %s, %s, %s row_ror:4 %s" % (V(AX + 3), V(Pr), V(MK + 3), DPPM)]
    ay = ["v_and_b32_dpp %s, %s, %s row_ror:12 %s" % (V(AY), V(Pr), V(MK), DPPM),
          "v_and_b32_dpp %s, %s, %s row_ror:12 %s" % (V(AY + 1), V(Pr), V(MK + 1), DPPM),
          "v_and_b32 %s, %s, %s" % (V(AY + 2), V(Pr), V(MK + 2)),
          "v_and_b32 %s, %s, %s" % (V(AY + 3), V(Pr), V(MK + 3))]
    return ax, ay


def pv_seq(groups, first, pre=None, post=None):
    lo, hi, AX, AY = ACC, ACC + 4, ACC + 8, ACC + 12
    n = len(groups)
    ops = [pv_ops(SS[g], AX, AY) for g, _ in groups]
    for o in ops[0][0]:
        a(o)
    for i in range(n):
        g, Vr = groups[i]
        ax, ay = ops[i]
        z = first and i == 0
        nx = ops[i + 1][0] if i + 1 < n else [None] * 4
        if g == 9:
            assert i == n - 1 and not z
            if pre:
                pre(i)
            mfma(lo, AX, Vr, V(lo, 4))
        else:
            a(ay[0]); a(ay[1])
            if pre:
                pre(i)
            mfma(lo, AX, Vr, "0" if z else V(lo, 4))
            a(ay[2]); a(ay[3])
            mfma(hi, AX, Vr + 8, "0" if z else V(hi, 4))
            if nx[0]:
                a(nx[0]); a(nx[1])
            mfma(lo, AY, Vr + 4, V(lo, 4))
            if nx[2]:
                a(nx[2]); a(nx[3])
            mfma(hi, AY, Vr + 12, V(hi, 4))
        if post:
            post(i)


def publish(typ, blk_off):
    lo, hi = ACC, ACC + 4
    tA, tO, tR, tE = D1, D1 + 1, D1 + 2, D1 + 3
    tM, tW = D3, D3 + 1
    mlr = D3 + 2
    OB = ACC + 8
    part = L_PART[typ]
    a("v_mov_b32 %s, 0" % V(tA))
    a("v_mov_b32 %s, 1" % V(tO))
    a("v_subrev_u32 %s, s%d, %s" % (V(tE), sLB, V(vL)))
    a("v_lshrrev_b32 %s, 1, %s" % (V(tE), V(tE)))
    a("v_and_b32 %s, 24, %s" % (V(tW), V(tE)))
    a("v_mov_b32 %s, s13" % V(tM))
    xlane("v_add_f32", ML + 1, vU)
    a("v_permlane32_swap_b32 %s, %s" % (V(lo), V(lo + 2)))
    a("v_permlane32_swap_b32 %s, %s" % (V(lo + 1), V(lo + 3)))
    a("v_permlane32_swap_b32 %s, %s" % (V(hi), V(hi + 2)))
    a("v_permlane32_swap_b32 %s, %s" % (V(hi + 1), V(hi + 3)))
    a("v_add_f32 %s, %s, %s" % (V(lo), V(lo), V(hi + 2)))
    a("v_add_f32 %s, %s, %s" % (V(lo + 1), V(lo + 1), V(hi + 3)))
    ds("ds_write_b64 %s, %s offset:%d" % (V(vPt), V(lo, 2), part))
    a("s_mov_b64 exec, 1")
    ds("ds_write_b64 %s, %s offset:%d" % (V(tM), V(ML, 2), part + 2048))
    ds("ds_add_rtn_u32 %s, %s, %s offset:%d" % (V(tR), V(tA), V(tO), L_CNT[typ]), "cnt")
    a("s_mov_b64 exec, -1")
    ds("ds_read_b64 %s, %s offset:%d" % (V(mlr, 2), V(tW), part + 2048), "ml")
    for p in range(4):
        ds("ds_read_b64 %s, %s offset:%d" % (V(OB + 2 * p, 2), V(tE), part + 512 * p))
    a("s_add_u32 s%d, s%d, %d" % (sT2, sPa, blk_off * PH))
    wait_lg("ml")
    a("v_readfirstlane_b32 s15, %s" % V(tR))
    cM, cL, cW = ML, ML + 1, vT
    a("v_max_f32_dpp v%d, v%d, v%d %s %s" % (cM, mlr, mlr, QP[0], DPPM))
    a("s_and_b32 s15, s15, 3")
    a("s_cmp_lg_u32 s15, 3")
    lab = a.newlabel("NOTLAST")
    rawbr("s_cbranch_scc1 %s" % lab)
    a("v_max_f32_dpp v%d, v%d, v%d %s %s" % (cM, cM, cM, QP[1], DPPM))
    a("v_sub_f32 v%d, v%d, v%d" % (cW, mlr, cM))
    a("v_exp_f32 v%d, v%d" % (cW, cW))
    a("v_mul_f32 v%d, v%d, v%d" % (cL, mlr + 1, cW))
    a("s_waitcnt lgkmcnt(0)")
    lsum = ["v_add_f32_dpp v%d, v%d, v%d %s %s" % (cL, cL, cL, q, DPPM) for q in QP[:2]]
    for p in range(4):
        for c in range(2):
            d = lo + 2 * (p & 1) + c
            op = "v_mul_f32_dpp" if p < 2 else "v_fmac_f32_dpp"
            a("%s v%d, v%d, v%d row_newbcast:%d %s" % (op, d, cW, OB + 2 * p + c, p, DPPM))
        if p in (0, 2):
            a(lsum[p // 2])
    pk(lo, lo, lo + 2)
    a("v_min_u32 v%d, -2, v%d" % (cM, cM))
    a("v_min_u32 v%d, -2, v%d" % (cL, cL))
    a("v_min_u32 v%d, -2, v%d" % (lo, lo))
    a("v_min_u32 v%d, -2, v%d" % (lo + 1, lo + 1))
    a("s_add_u32 s15, s%d, s14" % sT2)
    a("s_add_u32 s%d, s%d, s68" % (sT2, sT2))
    lab2 = a.newlabel("PLOC")
    a("s_cmp_eq_u32 s%d, 0" % sLoc)
    rawbr("s_cbranch_scc0 %s" % lab2)
    for sc in (" sc1", ""):
        a("buffer_store_dwordx2 %s, %s, %s, s15 offen%s" % (V(lo, 2), V(tE), S(WS, 4), sc))
        a.vmopt.add(len(a.vmq) - 1)
        a("s_mov_b64 exec, 1")
        a("buffer_store_dwordx2 %s, %s, %s, s%d offen%s" % (V(cM, 2), V(tE), S(WS, 4), sT2, sc))
        a.vmopt.add(len(a.vmq) - 1)
        a("s_mov_b64 exec, -1")
        if sc:
            rawbr("s_branch %s" % lab)
            a.label(lab2)
    a.label(lab)
    a("s_waitcnt lgkmcnt(0)")
    lgq.clear()
    a.nop(2)


def stage(g, dst):
    for t in range(4 if g < 9 else 1):
        ds("ds_read_b128 %s, v%d offset:%d" % (V(dst + 4 * t, 4), vL, g * 4096 + t * 1024), "st%d" % g)


reset_vm()
a.vmq[:] = []
fab[:] = []
if False:
    a("s_getpc_b64 %s" % S(WT, 2))
    a.label("L_PC")
    a("s_sub_u32 s%d, s%d, L_PC-%s_kernel" % (WT, WT, NAME))
    a("s_subb_u32 s%d, s%d, 0" % (WT + 1, WT + 1))
    a("s_and_b32 s%d, s%d, 0xffff" % (WT + 1, WT + 1))
    a("s_mov_b32 s%d, L_END-%s_kernel" % (WT + 2, NAME))
    a("s_mov_b32 s%d, 0x20000" % (WT + 3))
    a("s_lshl_b32 s%d, s15, 10" % sT2)
    a("v_add_u32 v42, s%d, v43" % sT2)
    a("buffer_load_dwordx4 %s, v42, %s, 0 offen" % (V(QR, 4), S(WT, 4)))
for _ in range(5):
    a.vmq.append("wpf")
    fab.append(len(a.vmq) - 1)
a("s_lshl_b32 s14, s%d, 9" % sS)
a("s_lshl_b32 s68, s%d, 7" % sS)
a("s_add_u32 s68, s68, 3584")
a("s_lshl_b32 s13, s%d, 3" % sWv)
a("s_cmp_lg_u32 s%d, 0" % sWv)
a("s_cbranch_scc1 L_NOCLR")
a("v_add_u32 v40, s14, v43")
a("v_subrev_u32 v41, 512, v43")
a("v_add_u32 v41, s68, v41")
a("v_cmp_gt_u32 vcc, 32, v47")
a("v_cndmask_b32 v40, v41, v40, vcc")
for r in range(4):
    a("v_mov_b32 v%d, -1" % (QF + r))
a("v_mov_b32 v41, 0")
a("v_mov_b32 v36, 0")
a("v_mov_b32 v37, 0")
a("ds_write_b64 v41, v[36:37]")
a("s_mov_b32 exec_hi, 0xff")
for p in range(16):
    a("s_add_u32 s%d, s%d, %d" % (sT2, sPa, p * PH))
    a("buffer_store_dwordx4 %s, v40, %s, s%d offen sc1" % (V(QF, 4), S(WS, 4), sT2), tag="clr")
    a.vmopt.add(len(a.vmq) - 1)
a("s_mov_b64 exec, -1")
a("s_waitcnt lgkmcnt(0)")
a.label("L_NOCLR")
a("s_barrier")
for fn in wpf:
    pace()
    fn()
    fab.append(len(a.vmq) - 1)
if P["WOT"]:
    srd(WT, 24, "0x%x" % (4096 * 1280))
    a("s_sub_u32 s%d, s%d, s%d" % (WT, WT, sLB))
    a("s_subb_u32 s%d, s%d, 0" % (WT + 1, WT + 1))
    a("s_and_b32 s%d, s%d, 0xffff" % (WT + 1, WT + 1))
    a("s_add_u32 s%d, s%d, s%d" % (WT + 2, WT + 2, sLB))
    assert not P["HLP"]
    srd(OUT, 34, "s%d" % (WT + 2))
    a("s_sub_u32 s%d, s%d, s%d" % (OUT, OUT, sLB))
    a("s_subb_u32 s%d, s%d, 0" % (OUT + 1, OUT + 1))
    a("s_and_b32 s%d, s%d, 0xffff" % (OUT + 1, OUT + 1))
    a("s_mul_i32 s15, s%d, 163840" % sH)
    for r in range(3):
        a("s_add_u32 s%d, s%d, %d" % (29 + r, sWi, 28 * r))
        a("s_min_u32 s%d, s%d, 79" % (29 + r, 29 + r))
        a("s_cmp_lt_u32 s%d, 40" % (29 + r))
        a("s_cselect_b32 s%d, 0, 40" % sT2)
        a("s_add_u32 s%d, s%d, s%d" % (29 + r, 29 + r, sT2))
        a("s_lshl_b32 s%d, s%d, 10" % (29 + r, 29 + r))
        a("s_add_u32 s%d, s%d, s15" % (29 + r, 29 + r))
a("s_and_b32 s15, s%d, 3" % sH)
a("s_lshl_b32 s15, s15, 2")
a("s_add_u32 s15, s15, s%d" % sWv)
a("s_mul_i32 s15, s15, %d" % P["ROT"])
a("s_mul_hi_u32 s%d, s15, 0x%x" % (sT2, (1 << 32) // 9 + 1))
a("s_mul_i32 s%d, s%d, 9" % (sT2, sT2))
a("s_sub_u32 s15, s15, s%d" % sT2)
a("s_lshl_b32 s15, s15, 12")
for g in range(9):
    a("s_mov_b32 s%d, s15" % (GO + g))
    a("s_add_u32 s15, s15, 4096")
    a("s_cmp_eq_u32 s15, %d" % (9 * 4096))
    a("s_cselect_b32 s15, 0, s15")
a("s_mov_b32 s%d, %d" % (GO + 9, 9 * 4096))
for i in range(37):
    Q.append(("KA", sCur, i, "home", True))
pump(4)
a("v_and_b32 v44, 1, v47")
a("v_lshlrev_b32 v44, 4, v44")
a("v_mov_b32 v%d, 0xffff" % (MK + 3))
a("v_lshlrev_b32 v%d, v44, v%d" % (MK + 3, MK + 3))
a("v_bfe_u32 v44, v47, 1, 2")
for r in range(4):
    a("v_cmp_eq_u32 vcc, %d, v44" % r)
    a("v_cndmask_b32 v%d, 0, v%d, vcc" % (MK + r, MK + 3))
a("v_lshlrev_b32 v%d, 5, v46" % vPt)
a("v_and_b32 v44, 1, v45")
a("v_lshl_add_u32 v%d, v44, 4, v%d" % (vPt, vPt))
a("v_lshrrev_b32 v44, 1, v45")
a("v_lshl_add_u32 v%d, v44, 3, v%d" % (vPt, vPt))
a("s_lshl_b32 s69, s%d, 9" % sWv)
a("v_add_u32 v%d, s69, v%d" % (vPt, vPt))
a("v_mov_b32 v44, 0xff800000")
a("v_cndmask_b32 v%d, v44, 0, %s" % (vBias, S(sQM, 2)))
a("s_cmp_lg_u32 s%d, 0" % sHas)
a("s_cbranch_scc1 L_HAS")
a("v_mov_b32 v%d, v44" % vBias)
for r in range(4):
    a("v_mov_b32 v%d, 0" % (home("KA", 36) + r))
    a("v_mov_b32 v%d, 0" % (36 + r))
    a("v_accvgpr_write_b32 %s, 0" % V(home("KB", 36) + r))
    a("v_accvgpr_write_b32 %s, 0" % V(home("VB", 36) + r))
a("ds_write_b128 v%d, v[36:39] offset:%d" % (vL, 36 * 1024))
a("s_waitcnt lgkmcnt(0)")
a.label("L_HAS")
pump(8)
wait_tag("clr")
a("s_cmp_lg_u32 s%d, 0" % sWv)
a("s_cbranch_scc1 L_NOFLAG")
a("v_mov_b32 v41, 0")
ready_add(40, 41)
a.label("L_NOFLAG")
pump(100)
for i in range(NVJ):
    Q.append(("VA", sCur, i, "home", True))
a("v_and_b32 v41, 7, v47")
a("v_lshlrev_b32 v41, 5, v41")
a("buffer_load_dword v40, v41, %s, 0 offen offset:4 sc1" % S(DBG, 4), tag="fl")
pump(WIN[0] + 1)
wait_tag("fl")
a("v_and_b32 v39, 0xffff, v40")
a("v_cmp_gt_u32 vcc, 32, v39")
a("s_cbranch_vccz L_FLD")
a.label("L_FLW")
a("buffer_load_dword v40, v41, %s, 0 offen offset:4 sc1" % S(DBG, 4))
a.vmopt.add(len(a.vmq) - 1)
a("s_waitcnt vmcnt(0)")
a("v_and_b32 v39, 0xffff, v40")
a("v_cmp_gt_u32 vcc, 32, v39")
a("s_cbranch_vccz L_FLD")
budget("L_FLD", "L_FLW", 2)
a.label("L_FLD")
ready_local(40)
pump(100)
stamp()

QR2 = 52
sPf, sPe, sFl = 26, 27, 28
assert P["ROT"] == 0 and PF % 2 == 0


def qbuild(R):
    for t in range(4):
        for r in range(4):
            a("v_cndmask_b32 %s, 0, %s, %s" % (V(QF + 4 * t + r), V(R + r), S(sQM + 2 * t, 2)))


def qwait_pf(dn, srdn=KA, win=None, wot=False):
    la, lb = a.newlabel("QA"), a.newlabel("QB")
    n0 = len(a.vmq)
    a.label(la)
    a("s_cmp_ge_u32 s%d, s%d" % (sPf, sPe))
    a("s_cbranch_scc1 %s" % lb)
    a("buffer_load_dwordx4 %s, v%d, %s, s15 offen sc1" % (V(QR2, 4), vQa, S(WS, 4)))
    for t in range(2):
        a("s_waitcnt vmcnt(%d)" % ((win or P["WPFW"]) * (5 if P["PRO"] & 1 else 3) // 2))
        l2fetch(1, vK, srdn, sPf, t * 1024)
    a("s_add_u32 s%d, s%d, 2048" % (sPf, sPf))
    exact_check(range(QR2, QR2 + 4), vT)
    a("s_cbranch_vccnz %s" % la)
    a("s_branch %s" % dn)
    a.label(lb)
    if wot:
        for d_ in (WT, OUT)[:P["WOT"]]:
            for r in range(3):
                l2fetch(4, vL, d_, 29 + r, old=" sc1")
        lb = a.newlabel("QC")
        a.label(lb)
    a("buffer_load_dwordx4 %s, v%d, %s, s15 offen sc1" % (V(QR2, 4), vQa, S(WS, 4)))
    a("s_waitcnt vmcnt(0)")
    exact_check(range(QR2, QR2 + 4), vT)
    a("s_cbranch_vccz %s" % dn)
    budget(dn, lb)
    for i in range(n0, len(a.vmq)):
        a.vmopt.add(i)


a.drain()
a.label("L_J")
WIN[0] = W
reset_vm()
lgq.clear()
for i in range(37):
    live[("KA", i)] = live[("KB", i)] = live[("VB", i)] = True
    live[("VA", i)] = i < NVJ
    live[("KA", i)] = i >= 4 * NG
for i in range(NVJ, 37):
    Q.append(("VA", sCur, i, "home", True))
nva = 37 - NVJ
nva -= P["B4R"]
pump(max(0, nva - W))
a("s_cmp_eq_u32 s%d, 0" % sB)
a("s_cselect_b32 s15, 0, %d" % PH)
a("s_sub_u32 s15, s%d, s15" % sPq)
a("buffer_load_dwordx4 %s, v%d, %s, s15 offen sc1" % (V(QR2, 4), vQa, S(WS, 4)), tag="q4")
pump(min(W, nva))
for i in range(37):
    Q.append(("KB", sCur, i, "home", True))
a("s_cmp_eq_u32 s%d, 0" % sB)
a("s_cbranch_scc1 L_B0")
sav = (list(a.vmq), set(a.vmopt), list(fab), done_idx[0], dict(curh), deque(Q), dict(live))
stamp()
wait_tag("q4")
exact_check(range(QR2, QR2 + 4), vT)
a("s_cbranch_vccz L_Q4D")
a("s_mov_b32 s%d, s%d" % (sPf, sCur))
a("s_add_u32 s%d, s%d, %d" % (sPe, sCur, P["PF4"] * 1024))
qwait_pf("L_Q4D", KB, W)
a.label("L_Q4D")
qbuild(QR2)
stamp()
qload(0)
NB4 = [0]


def _h4(i):
    n = ({0: 2, 2: 1, 5: 1, 8: 1} if P["XB"] else {0: 2, 3: 1, 7: 1}).get(i, 0)
    pump(n, paced=False)
    NB4[0] += n


qk_burst("KB", list(range(10)), hook=_h4, release=True)
softmax()


def _p4(i):
    free("VB", i)
    if i in ((0, 3, 6, 9) if P["XB"] else (0, 4, 8)):
        pump(1, paced=False)
        NB4[0] += 1


pv_seq([(g, home("VB", 4 * g)) for g in range(10)], True, post=_p4)
publish(1, -1)
stamp()
a("s_cmp_eq_u32 s%d, 4" % sB)
a("s_cbranch_scc1 L_FIN")
a("s_branch L_B1")
a.label("L_B0")
end_state = (list(a.vmq), set(a.vmopt), list(fab), done_idx[0], dict(curh), deque(Q), dict(live))
a.vmq[:], a.vmopt, fab[:], done_idx[0] = sav[0], sav[1], sav[2], sav[3]
curh.update(sav[4]); Q.clear(); Q.extend(sav[5]); live.update(sav[6])
for g in range(10):
    free("KB", g); free("VB", g)
qload(0)
pump(NB4[0])
if NG:
    qcheck(0, True)
    wait_tag("old")
    qk_early()
a.drain()
a.label("L_B1")
a.vmq[:], a.vmopt, fab[:] = end_state[0], end_state[1], end_state[2]
done_idx[0] = sav[3]
Q.clear(); Q.extend(end_state[5]); live.update(end_state[6])
curh.update(K=None, V=None, m0=None)
lgq.clear()

STG1 = [home("VB", 24), home("VB", 28), home("VB", 32)]
for g in (6, 7, 8):
    for i in range(4 * g, 4 * g + 4):
        live[("VB", i)] = True
pump(1)
qcheck(0, True)
stamp()
wait_tag("old")


def va_ready(g):
    while any((not callable(it)) and it[0] == "VA" and it[2] // 4 == g for it in Q):
        pump(1)
    if 4 * g + 3 >= NVJ:
        wait_tag("VA%d" % g)


for g in range(3):
    va_ready(g)
    stage(g, STG1[g])
qk_burst("KA", list(range(NG, 10)), hook=lambda i: pump(1) if i in (0, 3, 6, 9) else None)
for g in range(NG):
    a("v_mov_b32 %s, %s" % (V(SS[g]), V(SX[g])))
softmax()
pump(1)


def _pre1(i):
    wait_lg("st%d" % i)


def _post1(i):
    if i + 3 < 10:
        va_ready(i + 3)
        stage(i + 3, STG1[i % 3])
    if i in ((2, 5, 8) if P["XB"] else (3, 7)):
        pump(1)


pv_seq([(g, STG1[g % 3]) for g in range(10)], True, pre=_pre1, post=_post1)
publish(0, 0)
stamp()
for g in (6, 7, 8):
    free("VB", g)

a("s_add_u32 s%d, s%d, 0x%x" % (sNxt, sCur, BATCH))
a("s_cmp_lt_u32 s%d, 3" % sB)
a("s_cselect_b32 s%d, s%d, 0" % (KA + 2, sNRK))
a("s_cselect_b32 s%d, s%d, 0" % (VA + 2, sNRV))
pump(100)
Q2POS = P["Q2POS"]
for i in range(37):
    if i == 37 - P["NEND"]:
        Q.append(lambda: WIN.__setitem__(0, P["WEND"]))
    Q.append(("VB", sCur, i, "home", True))
for i in range(4 * NG):
    Q.append(("KA", sNxt, i, "home", True))
SPR = P["SPR"]
assert not (SPR and NG)
for i in range(36 - SPR, 36):
    live[("KS", i)] = False
    Q.append(("KS", sNxt, i, "home", True))
a("s_add_u32 s%d, s%d, %d" % (sPf, sNxt, (36 - SPR - PF) * 1024))
a("s_add_u32 s%d, s%d, %d" % (sPe, sNxt, (36 - SPR) * 1024))
a("s_mov_b32 s%d, 0" % sFl)
a("s_add_u32 s15, s%d, %d" % (sPq, PH))
TURBO, TG0, TG1 = P["TURBO"], P["TG0"], P["TG1"]
nissued = 0
tpolls = []
if TURBO:
    assert landed("KB0")
    for r in range(4):
        a("v_mov_b32 %s, -1" % V(QR2 + r))
    pump(4 * TG0)
    nissued = 4 * TG0
    tdone = done_idx[0]
    tstate = {}
    for g in range(TG0, TG1):
        a("buffer_load_dwordx4 %s, v%d, %s, s15 offen sc1" % (V(QR2, 4), vQa, S(WS, 4)))
        tpolls.append(len(a.vmq) - 1)
        pump(4)
        nissued += 4
        if g == TG0:
            tstate = (deque(Q), dict(live))
        exact_check(range(QR2, QR2 + 4), vT)
        a("s_cbranch_vccz L_TB%d" % (g + 1))
    assert nissued <= Q2POS - W
pump(Q2POS - W - nissued)
a("buffer_load_dwordx4 %s, v%d, %s, s15 offen sc1" % (V(QR2, 4), vQa, S(WS, 4)), tag="q")
tpolls.append(len(a.vmq) - 1)
pump(W)
stamp()
wait_tag("q")
exact_check(range(QR2, QR2 + 4), vT)
a("s_cbranch_vccz L_Q2D")
sav = (list(a.vmq), set(a.vmopt), list(fab), done_idx[0], dict(curh), deque(Q), dict(live))
pump(100)
a("s_mov_b32 s%d, 2" % sFl)
qwait_pf("L_Q2D")
if TURBO:
    live.update(tstate[1])
    for it in tstate[0]:
        if callable(it):
            continue
        if it[0] == "VB" and it[2] % 4 == 0 and it[2] // 4 <= TG1:
            a.label("L_TB%d" % (it[2] // 4))
            curh.update(K=None, V=None, m0=None)
        a("s_waitcnt vmcnt(%d)" % (TURBO - 1))
        load_tile(*it, False)
    stamp()
    a("s_mov_b32 s%d, 1" % sFl)
a.vmq[:], a.vmopt, fab[:], done_idx[0] = sav[0], sav[1], sav[2], sav[3]
if TURBO:
    done_idx[0] = tdone
    a.vmopt.update(tpolls)
Q.clear(); Q.extend(sav[5]); live.update(sav[6])
curh.update(K=None, V=None, m0=None)
a.label("L_Q2D")
qbuild(QR2)
stamp()
wait_tag("KB9")


if NG:
    qload(4)


def cpump(n, paced=False):
    if not Q:
        return
    lab = a.newlabel("H2")
    a("s_cmp_lg_u32 s%d, 0" % sFl)
    rawbr("s_cbranch_scc1 %s" % lab)
    st0, dn0 = a.st, done_idx[0]
    pump(n, paced=paced)
    a.st, done_idx[0] = st0, dn0
    a.label(lab)


NREST = 37 - Q2POS
qk_burst("KB", list(range(10)), hook=lambda i: cpump(-(-NREST // 3)) if i in (1, 4, 7) else None)
softmax()
assert not any((not callable(it)) and it[0] == "VB" for it in Q)
pv_seq([(x, home("VB", 4 * x)) for x in range(10)], True, pre=lambda i: wait_tag("VB%d" % i),
       post=lambda i: cpump(1) if i in (0, 3, 6) else None)
publish(1, 1)
stamp()
cpump(100, paced=True)
curh.update(K=None, V=None, m0=None)
a("s_cmp_lt_u32 s%d, 3" % sB)
a("s_cselect_b32 s%d, s%d, 0" % (KB + 2, sNRK))
if NG or not P["NOW0"]:
    waitvm(0)
else:
    assert all(i <= done_idx[0] for i in tpolls)
    a("s_cmp_lg_u32 s%d, 2" % sFl)
    rawbr("s_cbranch_scc1 L_NW0")
    a("s_waitcnt vmcnt(0)")
    a.label("L_NW0")
for r in range(4):
    a("v_mov_b32 %s, -1" % V(QR2 + r))
if NG:
    a("s_cmp_eq_u32 s%d, 3" % sB)
    a("s_cbranch_scc1 L_NOG2")
    qcheck(4, True)
    qk_early()
    a.drain()
    a.label("L_NOG2")
    a("s_mov_b32 s15, s%d" % (KA + 2))
    a("s_mov_b32 s%d, s%d" % (KA + 2, sNRK))
    WIN[0] = P["WG3"]
    for i in range(4 * NG):
        Q.append(("KA", sCur, i, "home", True))
    pump(100)
    a("s_mov_b32 s%d, s15" % (KA + 2))
a("s_add_u32 s15, s%d, %d" % (sPq, 2 * PH))
qwait_pf("L_Q3D", wot=P["WOT"])
a.label("L_Q3D")

WIN[0] = W
qbuild(QR2)
curh.update(K=None, V=None, m0=None)
stamp()
STG3 = [home("KA", 24), home("KA", 28), home("KA", 32)]
F0 = 36 - SPR - PF
FQ = deque([("KA", sNxt, i, "home", True) for i in list(range(4 * NG, min(F0, 4 * NG + 4))) + [36] + list(range(4 * NG + 4, F0))] +
           [("VA", sNxt, i, "home", True) for i in range(NVJ)])
LQ = deque([("KA", sNxt, i, "home", False) for i in range(F0, 36 - SPR)])
order3 = [NG, 6, 9, 7, 8] + list(range(NG + 1, 6)) + list(range(NG))
if P["L2B"] == 3:
    g0 = F0 // 4
    rest3 = [g for g in range(6) if g not in (g0, g0 + 1)]
    rest3 = [g for g in rest3 if g > g0] + [g for g in rest3 if g < g0]
    order3 = [g0, 6, g0 + 1, 7, 8] + rest3 + [9]
assert F0 >= 4 * NG


def take(q, n):
    for it in list(q):
        if n == 0:
            break
        if not live.get((it[0], it[2]), False):
            q.remove(it)
            load_tile(*it, False)
            n -= 1


def _h3(i):
    g = order3[i]
    if g in (6, 7, 8):
        for x in range(4 * g, 4 * g + 4):
            live[("KA", x)] = True
        stage(g - 6, STG3[g - 6])
    if i in (4, 5, 6):
        wait_lg("st%d" % (i - 4))
        free("VA", i - 4)
    if P["L2B"] == 3:
        take(LQ, P["L2N"] if i < P["L2E"] else 0)
        take(FQ, {P["L2E"]: 4, P["L2E"] + 1: W - 4}.get(i, 0))
        return
    take(FQ, {0: 4, 2: 1, 4: W - 5, 7: 1, 9: 1}.get(i, 0))
    if P["L2B"] == 1:
        take(LQ, 2)


qk_burst("KA", order3, hook=_h3, release=True, pre=lambda g: wait_tag("KA%d" % g) if g < NG else None)
softmax()


def _post3(i):
    if i >= 3:
        free("VA", i)
    if i + 3 < 10:
        stage(i + 3, STG3[i % 3])
    if i in (0, 3, 6, 9):
        take(FQ, 1)
    if P["L2B"] in (1, 2) and i < 8:
        take(LQ, 1)


pv_seq([(g, STG3[g % 3]) for g in range(10)], True, pre=_pre1, post=_post3)
publish(0, 2)
if P["PBAR"]:
    a("s_barrier")
stamp()
for g in (6, 7, 8):
    free("KA", g)
for i in range(36 - SPR, 36):
    wait_tag("KS8")
    for r in (0, 2):
        a("v_mov_b64 %s, %s" % (V(home("KA", i) + r, 2), V(home("KS", i) + r, 2)))
assert not Q
for n_, it in enumerate(FQ):
    if n_ == P["CUD"]:
        Q.append(lambda: WIN.__setitem__(0, P["WCU"]))
    Q.append(it)
    if n_ >= P["CUD"] and LQ:
        for _ in range(P["L2R"]):
            if LQ:
                Q.append(LQ.popleft())
        if not LQ:
            assert len(FQ) - n_ > W
            Q.append(lambda: WIN.__setitem__(0, W))
assert not LQ
pump(100)
a("s_add_u32 s%d, s%d, 1" % (sB, sB))
a("s_mov_b32 s%d, s%d" % (sCur, sNxt))
a("s_add_u32 s%d, s%d, %d" % (sPq, sPq, 4 * PH))
a("s_add_u32 s%d, s%d, %d" % (sPa, sPa, 4 * PH))
stamp()
a("s_branch L_J")

a.label("L_COMM")
lgq.clear()
a("s_waitcnt lgkmcnt(0)")
common_srds()
vL8, vML, vM01, vHa, vHc, vOw, vOr, vX1, vX3, vG16, vL4, vC, vWL, vL16, vY1, vY2 = 1, 2, 3, 4, 5, 6, 7, 8, 9, 10, 11, 12, 16, 17, 18, 19
SET, TMP, AF, AC, STG, XF, G, XC = 20, 36, 52, 68, 84, 100, 108, 188
sP, sHA, sHB, sN, sHBm, sHC, sX, sTy, sMode, sGty, sWF, sHAo, sHBo, sHCo = 6, 7, 8, 9, 10, 11, 12, 13, 14, 15, 42, 43, 68, 69
SEL_LO, SEL_HI = 78, 77


def WQF(mat, k, ct):
    n = mat * 40 + 2 * k + ct
    return 256 + 4 * n if n < 64 else 192 + 4 * (n - 64)


def in_lds(i):
    return (i & 1) and i < 38


def greg(i):
    t, k = i // 4, i % 4
    return XC if i == 39 else G + 40 * (k // 2) + 4 * t


a("s_mov_b32 s%d, 0x05040100" % SEL_LO)
a("s_mov_b32 s%d, 0x07060302" % SEL_HI)
srd(OUT, 36, "5120")
a("v_lshlrev_b32 v%d, 2, v47" % vL4)
a("v_lshlrev_b32 v%d, 4, v47" % vL16)
a("v_lshrrev_b32 v44, 2, v47")
a("v_lshlrev_b32 v44, 13, v44")
a("v_and_b32 v43, 3, v47")
a("v_lshl_add_u32 v44, v43, 4, v44")
a("s_lshl_b32 s76, s%d, 8" % sH)
a("s_lshl_b32 s%d, s%d, 6" % (sT, sWv))
a("s_add_u32 s76, s76, s%d" % sT)
a("s_mul_i32 s71, s%d, 38912" % sWv)
a("s_add_u32 s71, s71, %d" % L_WO)
a("v_lshlrev_b32 v48, 9, v45")
a("v_lshl_add_u32 v48, v46, 2, v48")
a("v_add_u32 v48, s71, v48")
RAW = [52, 92, 132]
WT2 = 44


def wq_issue(n):
    mat, bt = n // 4, n % 4
    for r in range(10):
        a("s_add_u32 s%d, s76, %d" % (sT, (160 * bt + 16 * r) * 8192))
        a("s_add_u32 m0, s71, %d" % ((n % 3) * 10240 + r * 1024))
        a("buffer_load_dwordx4 v44, %s, s%d offen %slds" % (S(WT2 + 4 * mat, 4), sT, "nt " if P["WQNT"] else ""), tag="wq%d" % n)


def wq_read(n):
    for kk in range(5):
        a("v_add_u32 v49, %d, v48" % ((n % 3) * 10240 + kk * 2048))
        for e in range(0, 8, 2):
            a("ds_read2_b32 %s, v49 offset0:%d offset1:%d" % (V(RAW[0] + 8 * kk + e, 2), 16 * e, 16 * e + 16))
        if kk == 2:
            a("s_waitcnt lgkmcnt(6)")


def wq_perm(n):
    mat, bt = n // 4, n % 4
    tq = 92
    c = 0
    for kk in range(5):
        a("s_waitcnt lgkmcnt(%d)" % min(15, 4 * (4 - kk)))
        for ct in range(2):
            for e in range(0, 8, 2):
                r0 = RAW[0] + 8 * kk + e
                dst = WQF(mat, 5 * bt + kk, ct) + e // 2
                sel = SEL_HI if ct else SEL_LO
                if dst < 256:
                    a("v_perm_b32 v%d, v%d, v%d, s%d" % (dst, r0 + 1, r0, sel))
                else:
                    a("v_perm_b32 v%d, v%d, v%d, s%d" % (tq + c % 4, r0 + 1, r0, sel))
                    a("v_accvgpr_write_b32 %s, v%d" % (V(dst), tq + c % 4))
                    c += 1


def wq_step(n):
    a.wait_tag("wq%d" % n)
    wq_read(n)
    wq_perm(n)
    if n + 3 < 8:
        wq_issue(n + 3)


def comm_setup():
    a("v_lshlrev_b32 v%d, 3, v47" % vL8)
    a("v_and_b32 v43, 7, v47")
    a("v_cmp_eq_u32 vcc, 7, v43")
    a("v_min_u32 v43, 6, v43")
    a("v_lshlrev_b32 v%d, 7, v43" % vML)
    a("v_add_u32 v%d, 3584, v%d" % (vML, vML))
    a("v_cndmask_b32 v%d, 1.0, 0, vcc" % vM01)
    a("v_mul_u32_u24 v43, 1280, v45")
    a("v_lshl_add_u32 v%d, v46, 4, v43" % vHa)
    a("v_lshl_add_u32 v%d, v46, 3, v43" % vHc)
    a("v_add_u32 v%d, 512, v%d" % (vHc, vHc))
    a("s_mul_i32 s%d, s%d, 640" % (sT2, sWv))
    a("s_add_u32 s%d, s%d, %d" % (sT2, sT2, L_YB))
    a("v_add_u32 v%d, s%d, v%d" % (vOw, sT2, vL4))
    a("v_add_u32 v%d, s%d, v%d" % (vY1, sT2, vL16))
    a("v_add_u32 v%d, s%d, v%d" % (vY2, sT2, vL8))
    a("v_lshlrev_b32 v%d, 4, v45" % vG16)
    a("v_add_u32 v%d, s%d, v%d" % (vOr, sT2, vG16))
    a("s_mul_i32 s%d, s%d, 320" % (sT2, sWv))
    a("v_lshlrev_b32 v%d, 4, v46" % vX1)
    a("v_and_b32 v43, 1, v45")
    a("v_lshl_add_u32 v%d, v43, 2, v%d" % (vX1, vX1))
    a("v_lshrrev_b32 v43, 1, v45")
    a("v_lshl_add_u32 v%d, v43, 1, v%d" % (vX1, vX1))
    a("v_add_u32 v%d, s%d, v%d" % (vX1, sT2, vX1))
    a("v_lshlrev_b32 v%d, 2, v46" % vX3)
    a("v_lshl_add_u32 v%d, v43, 1, v%d" % (vX3, vX3))
    a("s_add_u32 s%d, s%d, 256" % (sT2, sT2))
    a("v_add_u32 v%d, s%d, v%d" % (vX3, sT2, vX3))
    a("v_add_u32 v%d, s71, v%d" % (vWL, vL16))
    a("s_mul_i32 s%d, s73, 163840" % sWF)
    a("s_mul_i32 s%d, s72, 320" % sT2)
    a("s_add_u32 s%d, s%d, s%d" % (sWF, sWF, sT2))
    a("s_movk_i32 s74, 560")
    a("s_movk_i32 s70, 640")
    for r in range(4):
        a("v_mov_b32 v%d, 0" % (vC + r))


a("s_andn2_b32 s73, s%d, 3" % sH)
a("s_add_u32 s73, s73, s%d" % sWv)
a("s_and_b32 s72, s%d, 3" % sH)
a("s_mul_i32 s%d, s73, 4608" % sHAo)
a("s_mul_i32 s%d, s%d, 5120" % (sHBo, sWv))
a("s_add_u32 s%d, s%d, %d" % (sHBo, sHBo, HB0))
a("s_lshl_b32 s%d, s76, 1" % sHCo)
a("s_add_u32 s%d, s%d, %d" % (sHCo, sHCo, HC0))
a("s_mul_i32 s75, s72, 5120")
a("s_lshr_b32 s%d, s%d, 2" % (sT2, sH))
a("s_mul_i32 s%d, s%d, 640" % (sT2, sT2))
a("s_add_u32 s75, s75, s%d" % sT2)
a("s_add_u32 s75, s75, %d" % HB0)
a("v_add_u32 v40, s75, v%d" % vL16)
a("v_subrev_u32 v41, 640, v%d" % vL16)
a("v_add_u32 v41, s%d, v41" % sHCo)
a("v_cmp_gt_u32 vcc, 40, v47")
a("v_cndmask_b32 v40, v41, v40, vcc")
for r in range(4):
    a("v_mov_b32 v%d, -1" % (36 + r))
a("s_mov_b32 exec_hi, 0xfff")
for p in range(16):
    a("s_mov_b32 s%d, %d" % (sT, p * PH))
    a("buffer_store_dwordx4 v[36:39], v40, %s, s%d offen sc1" % (S(WS, 4), sT))
a("s_mov_b64 exec, -1")
srd(WT, 16, "5120")
a("s_mul_i32 s%d, s%d, 1280" % (sT, sWv))
for r in range(5):
    a("buffer_load_dword v%d, v%d, %s, s%d offen offset:%d" % (20 + r, vL4, S(WT, 4), sT, 256 * r))


def _between():
    comm_setup()
    a("s_waitcnt vmcnt(%d)" % (0 if P["CDEL"] else 30))
    a("s_mul_i32 s%d, s%d, 1280" % (sT2, sWv))
    a("v_add_u32 v43, s%d, v%d" % (sT2, vL4))
    a("v_mov_b32 v42, 0x3f803f80")
    for r in range(5):
        a("ds_write_b32 v43, v%d offset:%d" % (20 + r, L_X + 256 * r))
        a("ds_write_b32 v%d, v42 offset:%d" % (vL4, L_X + 4 * 1280 + 256 * r))
    a("s_waitcnt lgkmcnt(0)")
    a("s_barrier")
    a("s_cmp_lg_u32 s%d, 0" % sWv)
    a("s_cbranch_scc1 L_CNF")
    ready_add(42, vL4)
    a.label("L_CNF")


WOS = [52, 56]
wa, wb = TMP + 4, TMP + 5


def wo_addr():
    a("v_mad_u32_u24 v%d, v%d, s74, v%d" % (wa, vG16, vHa))
    a("v_and_b32 v%d, 63, v%d" % (wb, vL4))
    a("v_add_u32 v%d, 256, v%d" % (wb, wb))
    a("v_mad_u32_u24 v%d, v%d, s70, v%d" % (wb, vG16, wb))


def wo_issue(srdn, k, R, tag=None):
    for e in range(8):
        if e % 4 == 0:
            a("s_add_u32 s%d, s%d, %d" % (sT, sWF, (32 * k + e) * 1280))
        a("buffer_load_dwordx4 %s, v%d, %s, s%d offen offset:%d" % (V(R + 4 * e, 4), wa, S(srdn, 4), sT, (e % 4) * 1280), tag=tag)
        a("buffer_load_dword v%d, v%d, %s, s%d offen offset:%d" % (R + 32 + e, wb, S(srdn, 4), sT, (e % 4) * 1280), tag=tag)


def wo_perm(R, dst_of):
    for t in range(10):
        for e in range(0, 8, 2):
            if t < 8:
                r0, r1 = R + 4 * e + t // 2, R + 4 * e + 4 + t // 2
            else:
                r0, r1 = R + 32 + e, R + 33 + e
            a("v_perm_b32 v%d, v%d, v%d, s%d" % (dst_of(t) + e // 2, r1, r0, SEL_HI if t & 1 else SEL_LO))


def wo_to_lds(mat):
    FO = 52
    for n_, k in enumerate((1, 3)):
        a.wait_tag("wo%d_%d" % (mat, k))
        wo_perm(G + 40 * n_, lambda t: XF + 4 * mat if (t == 9 and k == 3) else FO + 4 * t)
        for t in range(10):
            i = 4 * t + k
            if in_lds(i):
                a("ds_write_b128 v%d, %s offset:%d" % (vWL, V(FO + 4 * t, 4), mat * 19456 + (i // 2) * 1024))
        a("s_waitcnt lgkmcnt(0)")


def tlb_touch():
    a("s_cmp_eq_u32 s%d, 1" % sWv)
    a("s_cselect_b32 s%d, s20, s18" % WT)
    a("s_cselect_b32 s%d, s21, s19" % (WT + 1))
    a("s_cmp_eq_u32 s%d, 2" % sWv)
    a("s_cselect_b32 s%d, s28, s%d" % (WT, WT))
    a("s_cselect_b32 s%d, s29, s%d" % (WT + 1, WT + 1))
    a("s_cmp_eq_u32 s%d, 3" % sWv)
    a("s_cselect_b32 s%d, s30, s%d" % (WT, WT))
    a("s_cselect_b32 s%d, s31, s%d" % (WT + 1, WT + 1))
    a("s_and_b32 s%d, s%d, 0xffff" % (WT + 1, WT + 1))
    a("s_mov_b32 s%d, 0x%x" % (WT + 2, TENSOR))
    a("s_lshl_b32 s%d, s72, 25" % sT)
    a("s_lshr_b32 s%d, s%d, 2" % (sT2, sH))
    a("s_lshl_b32 s%d, s%d, 22" % (sT2, sT2))
    a("s_add_u32 s%d, s%d, s%d" % (sT, sT, sT2))
    a("v_lshlrev_b32 v42, 14, v%d" % vL4)
    a("buffer_load_dword v43, v42, %s, s%d offen nt" % (S(WT, 4), sT))


def call_wq(ty, slot, mode, blk):
    a("s_mov_b32 s%d, %d" % (sTy, ty))
    a("s_mov_b32 s%d, %d" % (sX, L_X + 1280 * slot))
    a("s_mov_b32 s%d, %d" % (sMode, mode))
    a("s_add_u32 s%d, s%d, %d" % (sHC, sHCo, blk * PH))
    a("s_call_b64 %s, R_WQ" % S(RA, 2))


a.vmq[:] = []
a.vmopt.clear()
srd(WT2, 22, "0x%x" % (640 * 8192))
srd(WT2 + 4, 32, "0x%x" % (640 * 8192))
srd(WOS[0], 24, "0x%x" % (4096 * 1280))
srd(WOS[1], 34, "0x%x" % (4096 * 1280))
if P["CDEL"]:
    _between()
for n in range(3):
    wq_issue(n)
if not P["CDEL"]:
    _between()
wo_addr()
for n in range(4):
    wq_step(n)
    if n == 0:
        wo_issue(WOS[0], 1, G, "wo0_1")
        wo_issue(WOS[0], 3, G + 40, "wo0_3")
stamp()
call_wq(1, 4, 1, 0)
call_wq(1, 0, 0, 0)
if P["TLB"] == 2:
    tlb_touch()
stamp()
for n in range(4, 8):
    wq_step(n)
stamp()
wo_to_lds(0)
wo_issue(WOS[1], 1, G, "wo1_1")
wo_issue(WOS[1], 3, G + 40, "wo1_3")
call_wq(0, 4, 1, 0)
for b in range(1, 4):
    call_wq(1, b, 0, 4 * b)
stamp()
wo_to_lds(1)
if P["TLB"] == 1:
    tlb_touch()
a("s_barrier")
stamp()

a("v_and_b32 v44, 56, v%d" % vL8)
a("v_lshlrev_b32 v44, 2, v44")
a.label("L_AFW")
a("buffer_load_dword v42, v44, %s, 0 offen offset:4 sc1" % S(DBG, 4))
a("s_waitcnt vmcnt(0)")
a("v_and_b32 v43, 0xffff, v42")
a("v_cmp_gt_u32 vcc, 32, v43")
a("s_cbranch_vccz L_AFD")
budget("L_AFD", "L_AFW", 2)
a.label("L_AFD")
ready_local(42)
a("s_mov_b32 s%d, 0" % sN)
a("s_mov_b32 s%d, 0" % sMode)
a("s_mov_b32 s%d, 2" % sGty)
TAB = 0xfedbca9786534210 if P["ORD"] else 0xfbedc7a983654210
a("s_mov_b32 s18, 0x%08x" % (TAB & 0xffffffff))
a("s_mov_b32 s19, 0x%08x" % (TAB >> 32))
a("s_mov_b32 s%d, 0x%x" % (WT + 2, 4096 * 1280))

ta, ts = TMP + 14, TMP + 15
DQ, XS, s2, s1, one = AC, AF, TMP, TMP + 1, TMP + 2


def wq_pre():
    a("v_add_u32 v%d, s%d, v%d" % (ta, sX, vG16))
    a("v_add_u32 v%d, s%d, v%d" % (ts, sX, vL4))
    a("v_mov_b32 v%d, 0" % s2)
    a("v_mov_b32 v%d, 0" % s1)
    a("v_mov_b32 v%d, 0x3f803f80" % one)


cM, cL, cW, cX, cA = TMP, TMP + 1, TMP + 2, TMP + 3, TMP + 4
tLW, tx1, tx3, xo = TMP + 8, TMP + 9, TMP + 10, TMP + 11
a.label("L_CH")
lgq.clear()
a("s_lshl_b32 s%d, s%d, 2" % (sT, sN))
a("s_lshr_b64 s[16:17], s[18:19], s%d" % sT)
a("s_and_b32 s%d, s16, 15" % sP)
a("s_and_b32 s%d, s%d, 1" % (sTy, sP))


def g_issue(ty):
    a("s_cmp_eq_u32 s%d, 0" % ty)
    a("s_cselect_b32 s%d, s%d, s%d" % (WT, WOS[0], WOS[1]))
    a("s_cselect_b32 s%d, s%d, s%d" % (WT + 1, WOS[0] + 1, WOS[1] + 1))
    wo_addr()
    wo_issue(WT, 2, G)
    wo_issue(WT, 0, G + 40)


a("s_cmp_eq_u32 s%d, s%d" % (sTy, sGty))
a("s_cbranch_scc1 L_GOK")
a("s_cmp_eq_u32 s%d, 3" % sGty)
a("s_cbranch_scc1 L_GIS")
g_issue(sTy)
a.label("L_GIS")
a("s_mov_b32 s%d, s%d" % (sGty, sTy))
a("s_cmp_eq_u32 s%d, 0" % sTy)
a("s_cselect_b64 vcc, -1, 0")
for r in range(4):
    a("v_cndmask_b32 v%d, v%d, v%d, vcc" % (XC + r, XF + 4 + r, XF + r))
a("s_waitcnt vmcnt(16)")
wo_perm(G, lambda t: AF + 4 * t)
a("s_waitcnt vmcnt(0)")
wo_perm(G + 40, lambda t: G + 4 * t)
for r in range(0, 40, 2):
    a("v_mov_b64 %s, %s" % (V(G + 40 + r, 2), V(AF + r, 2)))
a.label("L_GOK")
if DIAG == 2:
    stamp()
a("s_mul_i32 s%d, s%d, %d" % (sT, sP, PH))
a("s_add_u32 s%d, s%d, s%d" % (sHA, sT, sHAo))
a("s_add_u32 s%d, s%d, s%d" % (sHB, sT, sHBo))
a("s_add_u32 s%d, s%d, s75" % (sHBm, sT))
a("s_add_u32 s%d, s%d, s%d" % (sHC, sT, sHCo))
a("s_add_u32 s%d, s%d, %d" % (sHC, sHC, PH))
a("s_lshr_b32 s%d, s%d, 2" % (sX, sP))
a("s_mul_i32 s%d, s%d, 1280" % (sX, sX))
a("s_mul_i32 s%d, s%d, 19456" % (sT, sTy))
a("v_add_u32 v%d, s%d, v%d" % (tLW, sT, vWL))
a("v_add_u32 v%d, s%d, v%d" % (tx1, sX, vX1))
a("v_add_u32 v%d, s%d, v%d" % (tx3, sX, vX3))
ds("ds_read_u16 v%d, v%d" % (xo, tx1))
ds("ds_read_u16 v%d, v%d offset:8" % (xo + 1, tx1))
ds("ds_read_u16 v%d, v%d" % (xo + 2, tx3))
SLOT = [STG, STG + 4, STG + 8, STG + 12, SET, SET + 4, SET + 8, SET + 12]


def lfrag(n):
    ds("ds_read_b128 %s, v%d offset:%d" % (V(SLOT[n % 8], 4), tLW, n * 1024), "lf%d" % n)


for n in range(4):
    lfrag(n)
wait_lg()
for r in range(3):
    a("v_lshlrev_b32 v%d, 16, v%d" % (xo + r, xo + r))
if P["TCH"]:
    a("v_lshrrev_b32 v%d, 2, v%d" % (AF, vL4))
    a("v_and_b32 v%d, 32, v%d" % (AF + 1, AF))
    a("v_add_u32 v%d, v%d, v%d" % (AF, AF, AF + 1))
    a("v_mul_u32_u24 v%d, 1280, v%d" % (AF, AF))
    a("s_mov_b32 s21, 0")
a.label("HA_L")
a("buffer_load_dwordx2 %s, v%d, %s, s%d offen sc1" % (V(SET + 14, 2), vML, S(WS, 4), sHA))
for p in range(7):
    a("buffer_load_dwordx2 %s, v%d, %s, s%d offen offset:%d sc1" % (V(SET + 2 * p, 2), vL8, S(WS, 4), sHA, p * 512))
ml = SET + 14
a("s_waitcnt vmcnt(7)")
a("v_max_f32_dpp v%d, v%d, v%d %s %s" % (cM, ml, ml, QP[0], DPPM))
a("v_mul_f32 v%d, v%d, v%d" % (cL, ml + 1, vM01))
a("v_max_f32_dpp v%d, v%d, v%d %s %s" % (cM, cM, cM, QP[1], DPPM))
a("v_max_f32_dpp v%d, v%d, v%d %s %s" % (cM, cM, cM, QP[2], DPPM))
a("v_sub_f32 v%d, v%d, v%d" % (cW, ml, cM))
a("v_exp_f32 v%d, v%d" % (cW, cW))
a("v_mul_f32 v%d, v%d, v%d" % (cL, cL, cW))
a("s_waitcnt vmcnt(0)")
lsum = ["v_add_f32_dpp v%d, v%d, v%d %s %s" % (cL, cL, cL, q, DPPM) for q in QP[:3]]
for p in range(7):
    for c in range(2):
        d = cA + 2 * (p & 1) + c
        op = "v_mul_f32_dpp" if p < 2 else "v_fmac_f32_dpp"
        a("%s v%d, v%d, v%d row_newbcast:%d %s" % (op, d, cW, SET + 2 * p + c, p, DPPM))
    if p in (0, 2, 4):
        a(lsum[p // 2])
    if p == 5:
        a("v_rcp_f32 v%d, v%d" % (cL, cL))
pk(cA, cA, cA + 2)
a("v_mul_f32 v%d, v%d, v%d" % (cA, cA, cL))
a("v_mul_f32 v%d, v%d, v%d" % (cA + 1, cA + 1, cL))
a("v_cmp_u_f32 vcc, v%d, v%d" % (cA, cA + 1))
a("v_cvt_pk_bf16_f32 v%d, v%d, v%d" % (cA, cA, cA + 1))
rawbr("s_cbranch_vccz HA_P")
exact_check(range(SET, SET + 16), cX)
a("s_cbranch_vccz HA_P")
if P["TCH"]:
    budget("HA_P", None)
    a("s_add_u32 s21, s21, 1")
    a("s_and_b32 s%d, s21, %d" % (sT, P["TCH"] - 1))
    a("s_cmp_lg_u32 s%d, 1" % sT)
    a("s_cbranch_scc1 HA_L")
    for m_ in range(2):
        for o in (0, 128, 256, 316):
            a("buffer_load_dword v%d, v%d, %s, s%d offen offset:%d" % (AF + 1, AF, S(WOS[m_], 4), sWF, o))
    a("s_branch HA_L")
else:
    budget("HA_P", "HA_L")
a.label("HA_P")
stamp()
ds("ds_write_b32 v%d, v%d" % (vOw, cA))
for k in range(4):
    ds("ds_read_b128 %s, v%d offset:%d" % (V(AF + 4 * k, 4), vOr, 64 * k), "af%d" % k)
for n in range(4, 8):
    lfrag(n)
ASL = [0, 1, 2, 3, 0, 1, 2, 3, 0, 1]


def ywrite(t):
    a("s_mov_b64 exec, 0xffff")
    if t < 8:
        o = 64 * (t // 4) + t % 4
        ds("ds_write2_b32 v%d, v%d, v%d offset0:%d offset1:%d" % (vY1, AC + 4 * ASL[t], AC + 4 * ASL[t + 1], o, o + 1))
    else:
        ds("ds_write2_b32 v%d, v%d, v%d offset0:128 offset1:129" % (vY2, AC + 4 * ASL[t], AC + 4 * ASL[t + 1]))
    a("s_mov_b64 exec, -1")


for i in range(40):
    t, k = i // 4, i % 4
    D = AC + 4 * ASL[t]
    wait_lg("af%d" % k)
    if in_lds(i):
        n = i // 2
        wait_lg("lf%d" % n)
        src = SLOT[n % 8]
    else:
        src = greg(i)
    mfma(D, AF + 4 * k, src, "0" if k == 0 else V(D, 4))
    if in_lds(i) and i // 2 + 8 < 19:
        lfrag(i // 2 + 8)
    if i in (13, 21, 29, 37):
        ywrite((i - 13) // 4)
ywrite(8)
wait_lg()
fstamp()
a("s_barrier")
fstamp()
a("s_cmp_lg_u32 s%d, 0" % sWv)
rawbr("s_cbranch_scc1 HB_W")
YR = SET
a("s_mov_b32 exec_hi, 0xff")
for w_ in range(4):
    a("ds_read_b128 %s, v%d offset:%d" % (V(YR + 4 * w_, 4), vY1, 640 * w_))
a("s_waitcnt lgkmcnt(2)")
pk(YR, YR, YR + 4); pk(YR + 2, YR + 2, YR + 6)
a("s_waitcnt lgkmcnt(0)")
pk(YR + 8, YR + 8, YR + 12); pk(YR + 10, YR + 10, YR + 14)
pk(YR, YR, YR + 8); pk(YR + 2, YR + 2, YR + 10)
for r in range(4):
    a("v_min_u32 v%d, -2, v%d" % (YR + r, YR + r))
a("buffer_store_dwordx4 %s, v%d, %s, s%d offen sc1" % (V(YR, 4), vL16, S(WS, 4), sHBm))
a("s_mov_b64 exec, -1")
rawbr("s_branch HB_0")
a.label("HB_W")
if P["HBW"]:
    a("s_sleep %d" % P["HBW"])
a.label("HB_0")
fstamp()
a("s_and_b32 s%d, s%d, 3" % (sT, sP))
a("s_cmp_eq_u32 s%d, 3" % sT)
rawbr("s_cbranch_scc1 L_FINAL")
a.label("HB_L")
NS = P["HBS"]
T = AF
UB = G if NS > 1 else AF + 10


def hb_issue(k):
    for p in range(2):
        U = UB + 20 * k + 10 * p
        a("buffer_load_dwordx4 %s, v%d, %s, s%d offen offset:%d sc1" % (V(U, 4), vHa, S(WS, 4), sHB, p * 640))
        a("buffer_load_dwordx4 %s, v%d, %s, s%d offen offset:%d sc1" % (V(U + 4, 4), vHa, S(WS, 4), sHB, p * 640 + 256))
        a("buffer_load_dwordx2 %s, v%d, %s, s%d offen offset:%d sc1" % (V(U + 8, 2), vHc, S(WS, 4), sHB, p * 640))


if NS > 1:
    a("s_mov_b32 s%d, 2" % sGty)
if P["HBD"]:
    a("s_sleep %d" % P["HBD"])
for k in range(NS):
    if k and P["HBSL"]:
        a("s_sleep %d" % P["HBSL"])
    hb_issue(k)
a.label("HB_R")
for k in range(NS):
    U0 = UB + 20 * k
    a("s_waitcnt vmcnt(%d)" % (6 * (NS - 1)))
    for r in range(0, 10, 2):
        pk(T + r, U0 + r, U0 + 10 + r)
    for r in (0, 2, 4, 6, 8):
        a("v_permlane32_swap_b32 v%d, v%d" % (T + r, T + r + 1))
    for r in (8, 0, 2, 4, 6):
        a("v_add_f32 v%d, v%d, v%d" % (T + r, T + r, T + r + 1))
        if r == 8:
            a("v_mov_b32 v%d, v%d" % (T + 9, T + 8))
    a("v_permlane16_swap_b32 v%d, v%d" % (T + 8, T + 9))
    a("v_permlane16_swap_b32 v%d, v%d" % (T, T + 2))
    a("v_permlane16_swap_b32 v%d, v%d" % (T + 4, T + 6))
    a("v_add_f32 v%d, v%d, v%d" % (T + 8, T + 8, T + 9))
    a("v_add_f32 v%d, v%d, v%d" % (T, T, T + 2))
    a("v_add_f32 v%d, v%d, v%d" % (T + 4, T + 4, T + 6))
    a("v_add_f32 v%d, v%d, v%d" % (T + 9, T + 8, T))
    a("v_cmp_u_f32 vcc, v%d, v%d" % (T + 9, T + 4))
    rawbr("s_cbranch_vccz HB_P")
    exact_check(range(U0, U0 + 20), cX)
    a("s_cbranch_vccz HB_P")
    budget("HB_P", None)
    hb_issue(k)
a("s_branch HB_R")
a.label("HB_P")
if DIAG != 2:
    stamp()
a("v_cvt_pk_bf16_f32 v%d, v%d, v%d" % (T + 8, T + 8, T + 8))
a("v_cvt_pk_bf16_f32 v%d, v%d, v%d" % (T, T, T + 4))
a("v_lshlrev_b32 v%d, 16, v%d" % (T + 8, T + 8))
a("v_lshlrev_b32 v%d, 16, v%d" % (T + 1, T))
a("v_and_b32 v%d, 0xffff0000, v%d" % (T + 2, T))
a("v_add_f32 v%d, v%d, v%d" % (T + 8, T + 8, xo + 2))
a("v_add_f32 v%d, v%d, v%d" % (T + 1, T + 1, xo))
a("v_add_f32 v%d, v%d, v%d" % (T + 2, T + 2, xo + 1))
a("v_cvt_pk_bf16_f32 v%d, v%d, v%d" % (cA + 1, T + 8, T + 8))
a("v_cvt_pk_bf16_f32 v%d, v%d, v%d" % (cA, T + 1, T + 2))
a("s_cmp_eq_u32 s%d, 16" % sN)
rawbr("s_cbranch_scc1 L_OUT")
a("ds_write_b16 v%d, v%d" % (tx3, cA + 1))
a("ds_write_b16 v%d, v%d" % (tx1, cA))
a("ds_write_b16_d16_hi v%d, v%d offset:8" % (tx1, cA))
wq_pre()
a("s_waitcnt lgkmcnt(0)")
fstamp()
a("s_barrier")
fstamp()
if P["EGB"]:
    a("s_add_u32 s%d, s%d, 1" % (sT, sN))
    a("s_lshl_b32 s%d, s%d, 2" % (sT, sT))
    a("s_lshr_b64 s[16:17], s[18:19], s%d" % sT)
    a("s_and_b32 s20, s16, 1")
    a("s_mov_b32 s%d, 2" % sMode)
    a("s_mov_b32 s%d, 3" % sGty)
a("s_call_b64 %s, R_WQ2" % S(RA, 2))
a("s_mov_b32 s%d, 0" % sMode)
stamp()
a("s_add_u32 s%d, s%d, 1" % (sN, sN))
a("s_branch L_CH")
a.label("L_FINAL")
a("s_barrier")
stamp()
a("s_add_u32 s%d, s%d, 1" % (sN, sN))
a("s_cmp_lt_u32 s%d, 16" % sN)
a("s_cbranch_scc1 L_CH")
a("s_cmp_gt_u32 s%d, 3" % sH)
a("s_cbranch_scc1 L_FIN")
a("s_cmp_eq_u32 s%d, 3" % sH)
a("s_cbranch_scc1 HB_L")
a("s_lshl_b32 s%d, s%d, 2" % (sT, sH))
a("s_add_u32 s%d, s%d, 3" % (sT, sT))
a("s_mul_i32 s%d, s%d, %d" % (sT, sT, PH))
a("s_add_u32 s%d, s%d, s%d" % (sHB, sT, sHBo))
a("s_mul_i32 s%d, s%d, 1280" % (sX, sH))
a("v_add_u32 v%d, s%d, v%d" % (tx1, sX, vX1))
a("v_add_u32 v%d, s%d, v%d" % (tx3, sX, vX3))
a("ds_read_u16 v%d, v%d" % (xo, tx1))
a("ds_read_u16 v%d, v%d offset:8" % (xo + 1, tx1))
a("ds_read_u16 v%d, v%d" % (xo + 2, tx3))
a("s_waitcnt lgkmcnt(0)")
for r in range(3):
    a("v_lshlrev_b32 v%d, 16, v%d" % (xo + r, xo + r))
a("s_branch HB_L")
a.label("L_OUT")
a("buffer_store_short v%d, v%d, %s, s%d offen" % (cA + 1, vX3, S(OUT, 4), sX))
a("buffer_store_short v%d, v%d, %s, s%d offen" % (cA, vX1, S(OUT, 4), sX))
a("buffer_store_short_d16_hi v%d, v%d, %s, s%d offen offset:8" % (cA, vX1, S(OUT, 4), sX))
a("s_branch L_FIN")

a.label("R_WQ")
lgq.clear()
wq_pre()
a.label("R_WQ2")
NPRE = 7
for k in range(3):
    ds("ds_read_b128 %s, v%d offset:%d" % (V(SLOT[k % 8], 4), ta, 64 * k), "xf%d" % k)
a("s_cmp_eq_u32 s%d, 0" % sTy)
rawbr("s_cbranch_scc1 WQ_B")
lg_save = list(lgq)


def stats_ops():
    ops = []
    for r in range(5):
        ops.append("v_dot2c_f32_bf16 v%d, v%d, v%d" % (s2, XS + r, XS + r))
        ops.append("v_dot2c_f32_bf16 v%d, v%d, v%d" % (s1, XS + r, one))
    ops += [
        "v_permlane32_swap_b32 v%d, v%d" % (s2, s1),
        "v_add_f32 v%d, v%d, v%d" % (s2, s2, s1),
        "v_mov_b32 v%d, v%d" % (s1, s2),
        "v_permlane16_swap_b32 v%d, v%d" % (s2, s1),
        "v_add_f32 v%d, v%d, v%d" % (s2, s2, s1),
    ]
    for q in QP:
        ops.append("v_add_f32_dpp v%d, v%d, v%d %s %s" % (s2, s2, s2, q, DPPM))
    ops += [
        "v_mul_f32 v%d, 0x%08x, v%d" % (s2, f32(1.0 / 640), s2),
        "v_mov_b32 v%d, v%d" % (s1, s2),
        "v_permlane32_swap_b32 v%d, v%d" % (s2, s1),
        "v_fma_f32 v%d, -v%d, v%d, v%d" % (s2, s1, s1, s2),
        "v_max_f32 v%d, 0, v%d" % (s2, s2),
        "v_cvt_pk_bf16_f32 v%d, v%d, v%d" % (s2, s1, s2),
        "v_lshlrev_b32 v%d, 16, v%d" % (s1, s2),
        "v_and_b32 v%d, 0xffff0000, v%d" % (s2, s2),
        "v_add_f32 v%d, 0x%08x, v%d" % (s2, f32(1e-5), s2),
        "v_cvt_pk_bf16_f32 v%d, v%d, v%d" % (s2, s2, s2),
        "v_and_b32 v%d, 0xffff0000, v%d" % (s2, s2),
        "v_sqrt_f32 v%d, v%d" % (s2, s2),
        "v_cvt_pk_bf16_f32 v%d, v%d, v%d" % (s2, s2, s2),
        "v_and_b32 v%d, 0xffff0000, v%d" % (s2, s2),
        "v_rcp_f32 v%d, v%d" % (s2, s2),
    ]
    return ops


for mat in (0, 1):
    if mat == 1:
        a.label("WQ_B")
        lgq[:] = lg_save
    for k in range(3, NPRE):
        ds("ds_read_b128 %s, v%d offset:%d" % (V(SLOT[k % 8], 4), ta, 64 * k), "xf%d" % k)
    ds("ds_read2st64_b32 %s, v%d offset0:0 offset1:1" % (V(XS, 2), ts))
    ds("ds_read2st64_b32 %s, v%d offset0:2 offset1:3" % (V(XS + 2, 2), ts))
    ds("ds_read_b32 v%d, v%d offset:1024" % (XS + 4, ts), "xs")
    so = stats_ops() + ["v_mul_f32 v%d, v%d, v%d" % (s1, s1, s2),
                        "v_mul_f32 v%d, v%d, v%d" % (XS, s1, vC + 2 * mat),
                        "v_mul_f32 v%d, v%d, v%d" % (XS + 1, s1, vC + 2 * mat + 1)]
    for k in range(20):
        if k < 3 or k % 2 == 0:
            wait_lg("xf%d" % min(19, k + (1 if k >= 3 else 0)))
        wait_lg("xf%d" % k)
        for ct in range(2):
            mfma(DQ + 4 * ct, SLOT[k % 8], WQF(mat, k, ct), "0" if k == 0 else V(DQ + 4 * ct, 4))
            if ct == 1 and k + NPRE < 20:
                ds("ds_read_b128 %s, v%d offset:%d" % (V(SLOT[(k + NPRE) % 8], 4), ta, 64 * (k + NPRE)), "xf%d" % (k + NPRE))
            if k >= 3:
                if k == 3 and ct == 0:
                    wait_lg("xs")
                for _ in range(2 if k >= 13 else 1):
                    if so:
                        a(so.pop(0))
    for op in so:
        a(op)
    Cr = vC + 2 * mat
    lab = a.newlabel("WQC")
    a("s_cmp_eq_u32 s%d, 1" % sMode)
    rawbr("s_cbranch_scc1 %s" % lab)
    a("s_mov_b64 exec, 0xffff")
    a("s_cmp_eq_u32 s%d, 0" % sLoc)
    a("v_fma_f32 v%d, v%d, v%d, -v%d" % (DQ, DQ, s2, XS))
    a("v_fma_f32 v%d, v%d, v%d, -v%d" % (DQ + 4, DQ + 4, s2, XS + 1))
    a("v_cvt_pk_bf16_f32 v%d, v%d, v%d" % (DQ, DQ, DQ + 4))
    a("v_min_u32 v%d, -2, v%d" % (DQ, DQ))
    lab2 = a.newlabel("QLOC")
    rawbr("s_cbranch_scc1 %s" % lab2)
    a("buffer_store_dword v%d, v%d, %s, s%d offen" % (DQ, vL4, S(WS, 4), sHC))
    a("s_mov_b64 exec, -1")
    a("s_setpc_b64 %s" % S(RA, 2))
    a.label(lab2)
    a("buffer_store_dword v%d, v%d, %s, s%d offen sc1" % (DQ, vL4, S(WS, 4), sHC))
    a("s_mov_b64 exec, -1")
    a("s_setpc_b64 %s" % S(RA, 2))
    a.label(lab)
    a.nop(8)
    a("v_mov_b32 v%d, v%d" % (Cr, DQ))
    a("v_mov_b32 v%d, v%d" % (Cr + 1, DQ + 4))
    a("s_setpc_b64 %s" % S(RA, 2))

a.label("L_FIN")
if DIAG:
    stamp()
    a("v_mbcnt_lo_u32_b32 v1, -1, 0")
    a("v_mbcnt_hi_u32_b32 v1, -1, v1")
    a("v_lshlrev_b32 v1, 2, v1")
    a("s_lshl_b32 s%d, s%d, 3" % (sT, sH))
    a("s_add_u32 s%d, s%d, s%d" % (sT, sT, sS))
    a("s_lshl_b32 s%d, s%d, 2" % (sT, sT))
    a("s_add_u32 s%d, s%d, s%d" % (sT, sT, sWv))
    a("s_lshl_b32 s%d, s%d, 8" % (sT, sT))
    a("s_add_u32 s%d, s%d, 0x%x" % (sT, sT, WS_DIAG))
    a("buffer_store_dword v0, v1, %s, s%d offen" % (S(WS, 4), sT))
a.label("L_END")
a("s_endpgm")

DESIGN = """
"""
ref = open(os.path.join(os.path.dirname(__file__), "..", "cdna_kernels", NAME + ".s.ref")).read().splitlines()
head = [l for l in ref if l.startswith(";") and "@launch" not in l and not l.startswith("; Override") and not l.startswith("; grid=")]
out = "\n".join(head) + DESIGN
out += "; @launch grid=(256,1,1) block=(256,1,1) lds=%d\n" % LDS_BYTES
out += '.amdgcn_target "amdgcn-amd-amdhsa--gfx950"\n.text\n.globl %s_kernel\n.p2align 8\n.type %s_kernel,@function\n%s_kernel:\n' % (NAME, NAME, NAME)
if P["ALN"]:
    import align
    a.lines = align.run(a.lines, NAME + "_kernel")
out += a.text()
out += """.section .rodata,"a"
.p2align 6
.amdhsa_kernel %s_kernel
  .amdhsa_next_free_vgpr 512
  .amdhsa_next_free_sgpr 102
  .amdhsa_accum_offset 256
  .amdhsa_group_segment_fixed_size 0
  .amdhsa_kernarg_size 104
  .amdhsa_user_sgpr_count 2
  .amdhsa_user_sgpr_kernarg_segment_ptr 1
  .amdhsa_system_sgpr_workgroup_id_x 1
  .amdhsa_float_denorm_mode_32 3
.end_amdhsa_kernel
""" % NAME
open(sys.argv[1], "w").write(out)
print("wrote", sys.argv[1], len(a.lines), "lines")
```

```python
import sys, os, math, struct
from collections import deque
sys.path.insert(0, os.path.dirname(__file__))
from asmlib import Asm, V, S

NAME = "interleave_layers__gqa_block_cached__gqa_block_cached__decode"

P = dict(W=7, W1=6, W1P=12, DIAG=0, PF=20, NG=0, SPR=3, ALN=1, HBD=10, HBW=4, FAST=1, NOW0=1, TLB=0, EARLY=1, RANK=0, RTH=19, RGL=0, PRO=0, L2N=1, L2E=8, TURBO=20, TG0=1, TG1=6, WG3=6, NVJ=24, L2B=0, L2R=8, PBAR=1, TCH=0, EGB=0, WOT=2, ORD=1, PF4=16, Q2POS=34, WPF=1, SCALE=1000, W0=6, CUD=0, ROT=0, CPF=1, WQNT=0, CDEL=1, LOCAL=1, HBS=1, HBSL=3, APF=4, WCU=7, XB=1, HLP=0, WH=4, B4R=4, WPFW=2, WEND=7, NEND=12)
for arg in sys.argv[2:]:
    k, v = arg.split("=")
    P[k] = int(v)
W = P["W"]
DIAG = P["DIAG"]
PF = P["PF"]
NG = P["NG"]
NVJ = P["NVJ"]


def f32(x):
    return struct.unpack("<I", struct.pack("<f", x))[0]


LDS_BYTES = 163840
L_CNT = [0, 4]
L_ROLE = 8184
L_PART = [64, 64 + 2112]
L_VA = 8192
L_X = 0
L_YB = 5120
L_WO = 8192
PH = 185344
RK0 = 184320
HB0 = 147456
HC0 = 167936
WF0 = 4 << 20
WS_DIAG = 12 << 20
WS_BYTES = 13 << 20
BATCH = 1 << 25
TENSOR = 1 << 27
DPPM = "row_mask:0xf bank_mask:0xf"
QP = ["quad_perm:[1,0,3,2]", "quad_perm:[2,3,0,1]", "row_half_mirror", "row_mirror"]

a = Asm()

sH, sS, sWv = 3, 4, 5
KA, VA, KB, VB, WS, DBG, WT, OUT = 44, 48, 52, 56, 80, 84, 88, 92
sNRK, sNRV = 60, 61
sTO, sC, sT, sT2, sLB, sTv = 62, 63, 64, 65, 66, 67
sQM = 70
sDI = 98
sXc, sLoc = 99, 79
RA = 100


def stamp():
    if not DIAG:
        return
    a("s_memrealtime s[96:97]")
    a("s_waitcnt lgkmcnt(0)")
    lgq.clear()
    a("s_lshl_b64 exec, 1, s%d" % sDI)
    a("v_mov_b32 v0, s96")
    a("s_mov_b64 exec, -1")
    a("s_add_u32 s%d, s%d, 1" % (sDI, sDI))


def fstamp():
    if DIAG != 3:
        return
    lab = a.newlabel("FS")
    a("s_cmp_lt_u32 s9, 11")
    a("s_cbranch_scc1 %s" % lab)
    sv = list(lgq)
    stamp()
    lgq[:] = sv
    a.label(lab)


def budget(done, loop, sleep=None):
    a("s_cmp_eq_u32 s%d, 0" % sTO)
    a("s_cbranch_scc1 %s" % done)
    a("s_sub_u32 s%d, s%d, 1" % (sTO, sTO))
    if sleep:
        a("s_sleep %d" % sleep)
    if loop:
        a("s_branch %s" % loop)


def rawbr(text):
    a.raw("    " + text)
    a.st += 1


def mfma(d, x, y, c):
    a("v_mfma_f32_16x16x32_bf16 %s, %s, %s, %s" % (V(d, 4), V(x, 4), V(y, 4), c))


def pk(d, x, y):
    a("v_pk_add_f32 %s, %s, %s" % (V(d, 2), V(x, 2), V(y, 2)))


def srd(dst, ptr, nrec):
    a("s_mov_b32 s%d, s%d" % (dst, ptr))
    a("s_and_b32 s%d, s%d, 0xffff" % (dst + 1, ptr + 1))
    a("s_mov_b32 s%d, %s" % (dst + 2, nrec))
    a("s_mov_b32 s%d, 0x20000" % (dst + 3))


def l2fetch(bit, vo, srdn, so, off=0, tag=None, old=""):
    so = "s%d" % so if so is not None else "0"
    if not P["PRO"] & bit:
        a("buffer_load_dwordx4 v[48:51], v%d, %s, %s offen offset:%d%s" % (vo, S(srdn, 4), so, off, old), tag=tag)
        return
    if P["PRO"] & 8:
        a("buffer_load_dwordx4 v[48:51], v%d, %s, %s offen offset:%d nt" % (vo, S(srdn, 4), so, off), tag=tag)
    else:
        a("buffer_load_dword v48, v%d, %s, %s offen offset:%d nt" % (vo, S(srdn, 4), so, off), tag=tag)
    a("buffer_load_dword v49, v%d, %s, %s offen offset:%d sc1" % (vo, S(srdn, 4), so, off), tag=tag)


lgq = []


def ds(text, tag=None):
    a(text)
    lgq.append(tag)


def wait_lg(tag=None):
    if tag is None:
        a("s_waitcnt lgkmcnt(0)")
        lgq.clear()
        return
    if tag not in lgq:
        return
    idx = max(i for i, t in enumerate(lgq) if t == tag)
    n = len(lgq) - 1 - idx
    a("s_waitcnt lgkmcnt(%d)" % min(n, 15))
    del lgq[:len(lgq) - min(n, 15)]


def exact_check(regs, t):
    regs = list(regs)
    a("v_max3_u32 v%d, v%d, v%d, v%d" % (t, regs[0], regs[1], regs[2]))
    i = 3
    while i < len(regs):
        r2 = regs[i + 1] if i + 1 < len(regs) else regs[i]
        a("v_max3_u32 v%d, v%d, v%d, v%d" % (t, t, regs[i], r2))
        i += 2
    a("v_cmp_eq_u32 vcc, -1, v%d" % t)


if DIAG:
    a("s_memrealtime s[96:97]")
a("s_cmp_ge_u32 s2, 256")
a("s_cbranch_scc1 L_END")
a("s_load_dwordx16 s[16:31], s[0:1], 0")
a("s_load_dwordx8 s[32:39], s[0:1], 64")
a("s_load_dwordx2 s[40:41], s[0:1], 96")
a("v_lshrrev_b32 v1, 6, v0")
a("v_and_b32 v47, 63, v0")
a("v_readfirstlane_b32 s%d, v1" % sWv)
a("s_getreg_b32 s6, hwreg(HW_REG_XCC_ID, 0, 4)")
a("s_cmp_lt_u32 s6, 8")
a("s_cselect_b32 s%d, 1, 0x10001" % sXc)
a("s_and_b32 s6, s6, 7")
a("v_mov_b32 v2, 0")
a("s_getpc_b64 %s" % S(WT, 2))
a.label("L_PC")
a("s_sub_u32 s%d, s%d, L_PC-%s_kernel" % (WT, WT, NAME))
a("s_subb_u32 s%d, s%d, 0" % (WT + 1, WT + 1))
a("s_and_b32 s%d, s%d, 0xffff" % (WT + 1, WT + 1))
a("s_mov_b32 s%d, L_END-%s_kernel" % (WT + 2, NAME))
a("s_mov_b32 s%d, 0x20000" % (WT + 3))
a("s_lshr_b32 s10, s2, 3")
a("s_lshl_b32 s8, s10, 12")
a("v_lshl_add_u32 v42, v0, 4, s8")
a("buffer_load_dwordx4 v[60:63], v42, %s, 0 offen" % S(WT, 4))
a("v_lshlrev_b32 v43, 4, v47")
a("s_lshl_b32 s10, s10, 2")
a("s_add_u32 s10, s10, s%d" % sWv)
a("s_lshl_b32 s10, s10, 13")
a("s_lshl_b32 s8, s6, 10")
a("s_add_u32 s10, s10, s8")
a("s_mov_b32 s7, 8")
a("s_waitcnt lgkmcnt(0)")
srd(DBG, 38, "256")
a("s_cmp_lg_u32 s%d, 0" % sWv)
a("s_cbranch_scc1 L_TKW")
a("s_mov_b64 exec, 1")
a.label("L_TK")
a("s_lshl_b32 s8, s6, 5")
a("v_mov_b32 v3, 1")
a("buffer_atomic_add v3, v2, %s, s8 offen sc0 sc1" % S(DBG, 4))
a("s_waitcnt vmcnt(0)")
a("v_readfirstlane_b32 s9, v3")
a("s_cmp_lt_u32 s9, 32")
a("s_cbranch_scc1 L_TKD")
a("s_mov_b32 s%d, 0x10001" % sXc)
a("s_add_u32 s6, s6, 1")
a("s_and_b32 s6, s6, 7")
a("s_sub_u32 s7, s7, 1")
a("s_cmp_lg_u32 s7, 0")
a("s_cbranch_scc1 L_TK")
a("s_and_b32 s6, s2, 7")
a("s_lshr_b32 s9, s2, 3")
a.label("L_TKD")
a("s_lshl_b32 s6, s6, 5")
a("s_or_b32 s6, s6, s9")
a("v_mov_b32 v3, s6")
a("ds_write_b32 v2, v3 offset:%d" % L_ROLE)
a("s_mov_b64 exec, -1")
a("s_waitcnt lgkmcnt(0)")
a.label("L_TKW")
srd(WT, 22, "0x%x" % (640 * 8192))
for r in range(5):
    if P["PRO"] & 2:
        a("buffer_load_dwordx4 v[60:63], v43, %s, s10 offen nt" % S(WT, 4))
        a("buffer_load_dword v61, v43, %s, s10 offen sc1" % S(WT, 4))
    else:
        a("buffer_load_dwordx4 v[60:63], v43, %s, s10 offen" % S(WT, 4))
    if r < 4:
        a("s_add_u32 s10, s10, %d" % (128 * 8192))
a("s_mov_b32 s%d, 200000" % sTO)
a("s_mov_b32 s%d, 0" % sDI)
a("s_mov_b32 s%d, 0" % sLoc)
a("v_and_b32 v46, 15, v47")
a("v_lshrrev_b32 v45, 4, v47")
a("s_barrier")
a("ds_read_b32 v3, v2 offset:%d" % L_ROLE)
a("s_waitcnt lgkmcnt(0)")
a("v_readfirstlane_b32 s6, v3")
a("s_and_b32 s6, s6, 255")
a("s_and_b32 s7, s6, 31")
a("v_mov_b32 v0, 0")
a("s_lshr_b32 s%d, s6, 5" % sH)
a("s_lshl_b32 s%d, s%d, 2" % (sH, sH))
a("s_and_b32 s8, s7, 3")
a("s_add_u32 s%d, s%d, s8" % (sH, sH))
a("s_lshr_b32 s%d, s7, 2" % sS)
a("s_add_u32 s%d, s%d, 7" % (sS, sS))
a("s_and_b32 s%d, s%d, 7" % (sS, sS))


def ready_add(vd, vz):
    a("s_lshr_b32 s%d, s%d, 2" % (sT2, sH))
    a("s_lshl_b32 s%d, s%d, 5" % (sT2, sT2))
    a("v_mov_b32 v%d, s%d" % (vd, sXc))
    a("s_mov_b64 exec, 1")
    a("buffer_atomic_add v%d, v%d, %s, s%d offen offset:4 sc1" % (vd, vz, S(DBG, 4), sT2))
    a.vmopt.add(len(a.vmq) - 1)
    a("s_mov_b64 exec, -1")


def ready_local(vd):
    if not P["LOCAL"]:
        return
    a("v_cmp_eq_u32 vcc, 32, v%d" % vd)
    a("s_lshr_b32 s%d, s%d, 2" % (sT2, sH))
    a("s_nop 3")
    a("s_lshr_b32 s%d, vcc_lo, s%d" % (sT2, sT2))
    a("s_and_b32 s%d, s%d, 1" % (sLoc, sT2))


def common_srds():
    if DIAG:
        a("s_mov_b64 exec, 1")
        a("v_mov_b32 v0, s96")
        a("s_mov_b64 exec, -1")
        a("s_mov_b32 s%d, 1" % sDI)
    srd(WS, 40, "0x%x" % WS_BYTES)
    srd(DBG, 38, "256")


a("s_cmp_eq_u32 s%d, 7" % sS)
a("s_cbranch_scc1 L_COMM")

vK, vL, vPt, MK, vBias = 1, 2, 3, 4, 8
SS = list(range(9, 19))
vQa = 19
ML, vT, vU = 20, 22, 23
D2, D1, D3 = 20, 24, 28
QF = 32
ACC = 32
QR = 48
sB, sCur, sNxt, sHas, sPq, sPa, sWi = 6, 7, 8, 9, 10, 11, 12
GO = 16


def home(kind, i):
    if kind == "KS":
        return 56 + 4 * (i - (36 - P["SPR"]))
    if kind == "KA":
        return 68 + 4 * i
    if kind == "KB":
        return 216 + 4 * i
    if kind == "VB":
        return 216 + 148 + 4 * i
    raise KeyError


assert home("VB", 36) + 4 == 512

a("s_mul_i32 s%d, s%d, 7" % (sWi, sWv))
a("s_add_u32 s%d, s%d, s%d" % (sWi, sWi, sS))
wpf = []
if P["WPF"]:
    a("s_and_b32 s15, s%d, 3" % sH)
    a("s_mul_i32 s15, s15, 28")
    a("s_add_u32 s15, s15, s%d" % sWi)
    a("s_lshr_b32 s42, s%d, 2" % sH)
    a("s_mul_i32 s43, s42, 655360")
    a("s_lshl_b32 s42, s42, 10")

    def wpf_load(ptr, isq, r):
        def fn():
            if r == 0:
                srd(WT, ptr, "0x%x" % (640 * 8192))
            a("s_add_u32 s%d, s15, %d" % (sT2, 112 * r))
            a("s_min_u32 s%d, s%d, 639" % (sT2, sT2))
            a("s_lshl_b32 s%d, s%d, %d" % (sT2, sT2, 13 if isq else 10))
            a("s_add_u32 s%d, s%d, s%d" % (sT2, sT2, 42 if isq else 43))
            l2fetch(2, 43, WT, sT2, tag="wpf")
        return fn
    def wo_load(ptr, odd, r):
        def fn():
            if r == 0 and odd:
                srd(WT, ptr, "0x%x" % (640 * 8192))
            a("s_add_u32 s%d, s15, %d" % (sT2, 112 * r))
            a("s_min_u32 s%d, s%d, 319" % (sT2, sT2))
            a("s_mul_hi_u32 s%d, s%d, 0x%x" % (sT, sT2, (1 << 32) // 40 + 1))
            a("s_mul_i32 s%d, s%d, 40" % (sT, sT))
            a("s_add_u32 s%d, s%d, s%d" % (sT2, sT2, sT))
            if odd:
                a("s_add_u32 s%d, s%d, 40" % (sT2, sT2))
            a("s_lshl_b32 s%d, s%d, 10" % (sT2, sT2))
            a("s_add_u32 s%d, s%d, s43" % (sT2, sT2))
            l2fetch(2 if odd else 16, 43, WT, sT2, tag="wpf")
        return fn
    for ptr in (24, 34):
        for odd in (1, 0):
            for r in range(3):
                wpf.append(wo_load(ptr, odd, r))
    for r in range(6):
        wpf.append(wpf_load(32, 1, r))

a("s_waitcnt lgkmcnt(0)")
common_srds()
a("s_mov_b32 s%d, 0x%08x" % (sC, f32(128 ** -0.5 * math.log2(math.e) * P["SCALE"] / 1000.0)))
for t in range(4):
    m = 0x000F000F << (4 * t)
    a("s_mov_b32 s%d, 0x%08x" % (sQM + 2 * t, m))
    a("s_mov_b32 s%d, 0x%08x" % (sQM + 2 * t + 1, m))
a("s_cmp_lt_u32 s%d, 16" % sWi)
a("s_cselect_b32 s%d, 1, 0" % sHas)
a("s_min_u32 s13, s%d, 16" % sWi)
a("s_mul_i32 s14, s%d, 36" % sWi)
a("s_add_u32 s13, s13, s14")
a("s_lshl_b32 s13, s13, 10")
a("s_lshl_b32 s14, s%d, 20" % sH)
a("s_add_u32 s13, s13, s14")
a("s_mul_i32 s%d, s%d, 37888" % (sLB, sWv))
a("s_add_u32 s%d, s%d, %d" % (sLB, sLB, L_VA))
a("s_sub_u32 s%d, 0x%x, s13" % (sNRK, TENSOR))
a("s_add_u32 s%d, s%d, s%d" % (sNRV, sNRK, sLB))
for dst, ptr, isv in ((KA, 18, 0), (VA, 20, 1), (KB, 28, 0), (VB, 30, 1)):
    a("s_add_u32 s%d, s%d, s13" % (dst, ptr))
    a("s_addc_u32 s%d, s%d, 0" % (dst + 1, ptr + 1))
    if isv:
        a("s_sub_u32 s%d, s%d, s%d" % (dst, dst, sLB))
        a("s_subb_u32 s%d, s%d, 0" % (dst + 1, dst + 1))
    a("s_and_b32 s%d, s%d, 0xffff" % (dst + 1, dst + 1))
    a("s_mov_b32 s%d, s%d" % (dst + 2, sNRV if isv else sNRK))
    a("s_mov_b32 s%d, 0x20000" % (dst + 3))
if P["HLP"]:
    a("s_add_u32 s14, s%d, 1" % sS)
    a("s_cmp_eq_u32 s14, 7")
    a("s_cselect_b32 s14, 0, s14")
    a("s_mul_i32 s15, s%d, 7" % sWv)
    a("s_add_u32 s14, s14, s15")
    a("s_min_u32 s15, s14, 16")
    a("s_mul_i32 s14, s14, 36")
    a("s_add_u32 s14, s14, s15")
    a("s_lshl_b32 s14, s14, 10")
    a("s_lshl_b32 s15, s%d, 20" % sH)
    a("s_add_u32 s14, s14, s15")
    a("s_add_u32 s%d, s30, s14" % OUT)
    a("s_addc_u32 s%d, s31, 0" % (OUT + 1))
    a("s_sub_u32 s%d, s%d, s%d" % (OUT, OUT, sLB))
    a("s_subb_u32 s%d, s%d, 0" % (OUT + 1, OUT + 1))
    a("s_and_b32 s%d, s%d, 0xffff" % (OUT + 1, OUT + 1))
    a("s_sub_u32 s%d, 0x%x, s14" % (OUT + 2, TENSOR))
    a("s_add_u32 s%d, s%d, s%d" % (OUT + 2, OUT + 2, sLB))
    a("s_mov_b32 s%d, 0x20000" % (OUT + 3))
a("v_and_b32 v44, 3, v47")
a("v_lshlrev_b32 v%d, 4, v44" % vQa)
a("v_lshl_add_u32 v%d, v45, 6, v%d" % (vQa, vQa))
a("v_bfe_u32 v44, v47, 2, 2")
a("v_lshl_add_u32 v%d, v44, 8, v%d" % (vK, vQa))
a("v_lshl_add_u32 v%d, v45, 6, v%d" % (vQa, vQa))
a("v_add_u32 v%d, s%d, v43" % (vL, sLB))
a("s_lshl_b32 s%d, s%d, 9" % (sPq, sH))
a("s_add_u32 s%d, s%d, %d" % (sPq, sPq, HC0))
a("s_mul_i32 s%d, s%d, 4608" % (sPa, sH))
a("s_mov_b32 s%d, 0" % sB)
a("s_mov_b32 s%d, 0" % sCur)

curh = {"K": None, "V": None, "m0": None}
fab = []
done_idx = [-1]
live = {}


def waitvm(n):
    assert n <= 63, n
    a("s_waitcnt vmcnt(%d)" % n)
    i, c = len(a.vmq) - 1, 0
    while i >= 0 and c < n:
        if i not in a.vmopt:
            c += 1
        i -= 1
    done_idx[0] = max(done_idx[0], i)


def tag_idx(tag):
    return max(i for i, t in enumerate(a.vmq) if t == tag)


def landed(tag):
    return tag_idx(tag) <= done_idx[0]


def wait_tag(tag):
    if not landed(tag):
        waitvm(a.vm_after_idx(tag_idx(tag)))


WIN = [P["W0"]]


DUAL = [False]


def pace():
    w = WIN[0]
    if DUAL[0] and P["RANK"] > w:
        w2 = P["RANK"]
        if len(fab) >= w2 and fab[-w2] > done_idx[0]:
            waitvm(a.vm_after_idx(fab[-w2]))
        if len(fab) >= w and fab[-w] > done_idx[0]:
            lab = a.newlabel("PC")
            rawbr("s_cbranch_vccnz %s" % lab)
            a("s_waitcnt vmcnt(%d)" % a.vm_after_idx(fab[-w]))
            a.st -= 1
            a.label(lab)
        return
    if len(fab) >= w and fab[-w] > done_idx[0]:
        waitvm(a.vm_after_idx(fab[-w]))


vRk = D3 if DIAG else 0
sLate, sRk = 34, 36


def rank_issue(blk):
    if not P["RANK"]:
        return
    lab = a.newlabel("RK")
    a("s_lshr_b32 s%d, s%d, 2" % (sT2, sB))
    a("s_or_b32 s%d, s%d, s%d" % (sT2, sT2, sWv))
    a("s_cbranch_scc1 %s" % lab)
    a("s_add_u32 s%d, s%d, %d" % (sT2, sRk, blk * PH))
    a("v_mov_b32 v%d, 1" % vRk)
    a("v_mov_b32 v%d, 0" % (D3 + 1))
    a("s_mov_b64 exec, 1")
    a("buffer_atomic_add v%d, v%d, %s, s%d offen sc0 sc1" % (vRk, D3 + 1, S(WS, 4), sT2), tag="rk")
    a.vmopt.add(len(a.vmq) - 1)
    a("s_mov_b64 exec, -1")
    a.label(lab)


def rank_use():
    if not P["RANK"]:
        return
    lab = a.newlabel("RU")
    wait_tag("rk")
    a("s_cmp_lg_u32 s%d, 0" % sWv)
    a("s_cbranch_scc1 %s" % lab)
    a("v_mov_b32 v%d, 0" % (D3 + 1))
    a("s_mov_b64 exec, 1")
    a("ds_write_b32 v%d, v%d offset:8" % (D3 + 1, vRk))
    a("s_mov_b64 exec, -1")
    a("s_waitcnt lgkmcnt(0)")
    a.label(lab)


def rank_get():
    if not P["RANK"]:
        return
    a("v_mov_b32 v%d, 0" % (D3 + 1))
    a("ds_read_b32 v%d, v%d offset:8" % (D3 + 2, D3 + 1))
    a("s_waitcnt lgkmcnt(0)")
    lgq.clear()
    a("v_readfirstlane_b32 s%d, v%d" % (sT2, D3 + 2))
    a("s_add_u32 s%d, s%d, 1" % (sT2, sT2))
    a("s_cmp_ge_u32 s%d, %d" % (sT2, P["RTH"]))
    a("s_cselect_b64 %s, -1, 0" % S(sLate, 2))


def dual_on():
    if P["RANK"]:
        a("s_mov_b64 vcc, %s" % S(sLate, 2))
        DUAL[0] = True


def dual_off():
    DUAL[0] = False


def reset_vm():
    a.vmq[:] = ["old"] * W
    a.vmopt.clear()
    fab[:] = list(range(W))
    done_idx[0] = -1
    curh.update(K=None, V=None, m0=None)


def load_tile(kind, off, i, mode, fabric, paced):
    g, t = i // 4, i % 4
    srdn = {"KA": KA, "VA": VA, "KB": KB, "VB": VB, "VN": OUT, "KS": KA}[kind]
    c = kind[0]
    vo, so = (vK, sT) if c == "K" else (vL, sTv)
    if mode == "home":
        assert not live.get((kind, i), False), ("slot busy", kind, i)
        live[(kind, i)] = True
    if curh[c] != (kind, off, g):
        a("s_add_u32 s%d, s%d, s%d" % (so, off, GO + g))
        curh[c] = (kind, off, g)
    lds = kind == "VA" and mode == "home"
    if lds and curh["m0"] != g:
        a("s_add_u32 m0, s%d, %d" % (sLB, g * 4096))
        curh["m0"] = g
    if fabric and paced:
        pace()
    opt = i == 36
    if opt:
        lab = a.newlabel("NT")
        a("s_cmp_eq_u32 s%d, 0" % sHas)
        rawbr("s_cbranch_scc1 %s" % lab)
    tag = "%s%d" % (kind, g) if mode == "home" else "pf"
    if lds:
        a("buffer_load_dwordx4 v%d, %s, s%d offen offset:%d nt lds" % (vo, S(srdn, 4), so, t * 1024), tag=tag)
    elif mode == "home":
        a("buffer_load_dwordx4 %s, v%d, %s, s%d offen offset:%d nt" % (V(home(kind, i), 4), vo, S(srdn, 4), so, t * 1024), tag=tag)
    else:
        a("buffer_load_dwordx4 %s, v%d, %s, s%d offen offset:%d" % (V(QR, 4), vo, S(srdn, 4), so, t * 1024), tag=tag)
    if opt:
        a.label(lab)
        a.st -= 1
        a.vmopt.add(len(a.vmq) - 1)
    elif fabric:
        fab.append(len(a.vmq) - 1)


Q = deque()


def pump(n=1, paced=True):
    while n > 0 and Q:
        it = Q.popleft()
        if callable(it):
            it()
            continue
        load_tile(*it, paced)
        n -= 1
        while Q and (callable(Q[0]) or not Q[0][4]):
            it = Q.popleft()
            if callable(it):
                it()
            else:
                load_tile(*it, paced)


def free(kind, g):
    for i in range(4 * g, min(4 * g + 4, 37)):
        live[(kind, i)] = False


def qload(blk_off):
    a("s_add_u32 s%d, s%d, %d" % (sT2, sPq, blk_off * PH))
    a("buffer_load_dwordx4 %s, v%d, %s, s%d offen sc1" % (V(QR, 4), vQa, S(WS, 4), sT2), tag="q")


def qcheck(blk_off, early, QR=QR, dn=None):
    lp, dn = a.newlabel("QL"), dn or a.newlabel("QD")
    if early:
        wait_tag("q")
        exact_check(range(QR, QR + 4), vT)
        a("s_cbranch_vccz %s" % dn)
    a("s_add_u32 s%d, s%d, %d" % (sT2, sPq, blk_off * PH))
    a.label(lp)
    a("buffer_load_dwordx4 %s, v%d, %s, s%d offen sc1" % (V(QR, 4), vQa, S(WS, 4), sT2), tag="qspin")
    if early:
        a.vmopt.add(len(a.vmq) - 1)
        a("s_waitcnt vmcnt(0)")
    else:
        waitvm(0)
    exact_check(range(QR, QR + 4), vT)
    a("s_cbranch_vccz %s" % dn)
    budget(dn, lp)
    a.label(dn)
    for t in range(4):
        for r in range(4):
            a("v_cndmask_b32 %s, 0, %s, %s" % (V(QF + 4 * t + r), V(QR + r), S(sQM + 2 * t, 2)))


SDST = {}


def red_ops(D, g):
    Sr = SDST.get(g, SS[g])
    first = ("v_mov_b32_dpp %s, %s quad_perm:[0,0,0,0] %s" % (V(Sr), V(D), DPPM) if g < 9 else
             "v_add_f32_dpp %s, %s, %s quad_perm:[0,0,0,0] %s" % (V(Sr), V(D), V(vBias), DPPM))
    return [first] + [
        "v_add_f32_dpp %s, %s, %s quad_perm:[%d,%d,%d,%d] %s" % (V(Sr), V(D + r), V(Sr), r, r, r, r, DPPM)
        for r in (1, 2, 3)]


SX = [56, 57, 58, 59, 60]


def qk_early():
    for g in range(NG):
        SDST[g] = SX[g]
    qk_burst("KA", list(range(NG)), release=True)
    SDST.clear()


def qk_burst(kind, order, hook=None, release=False, pre=None):
    Ds = [D1, D2, D3]
    n = len(order)
    for i, g in enumerate(order):
        if pre:
            pre(g)
        D = Ds[i % 3]
        r = red_ops(Ds[(i - 2) % 3], order[i - 2]) if i >= 2 else [None] * 4
        for t in range(4):
            if g < 9 or t == 0:
                mfma(D, home(kind, 4 * g + t), QF + 4 * t, "0" if t == 0 else V(D, 4))
            if r[t]:
                a(r[t])
        if release:
            free(kind, g)
        if hook:
            hook(i)
    assert n >= 2
    ra, rb = red_ops(Ds[(n - 2) % 3], order[n - 2]), red_ops(Ds[(n - 1) % 3], order[n - 1])
    for x, y in zip(ra, rb):
        a(x)
        a(y)


def xlane(op, X, U):
    a("%s_dpp %s, %s, %s row_ror:4 %s" % (op, V(X), V(X), V(X), DPPM))
    a("%s_dpp %s, %s, %s row_ror:8 %s" % (op, V(X), V(X), V(X), DPPM))
    a("v_mov_b32 %s, %s" % (V(U), V(X)))
    a("v_permlane16_swap_b32 %s, %s" % (V(X), V(U)))
    a("%s %s, %s, %s" % (op, V(X), V(X), V(U)))
    a("v_mov_b32 %s, %s" % (V(U), V(X)))
    a("v_permlane32_swap_b32 %s, %s" % (V(X), V(U)))
    a("%s %s, %s, %s" % (op, V(X), V(X), V(U)))


def softmax():
    M, L = ML, ML + 1
    a("v_max3_f32 %s, %s, %s, %s" % (V(M), V(SS[0]), V(SS[1]), V(SS[2])))
    a("v_max3_f32 %s, %s, %s, %s" % (V(L), V(SS[3]), V(SS[4]), V(SS[5])))
    a("v_max3_f32 %s, %s, %s, %s" % (V(M), V(M), V(SS[6]), V(SS[7])))
    a("v_max3_f32 %s, %s, %s, %s" % (V(L), V(L), V(SS[8]), V(SS[9])))
    a("v_max_f32 %s, %s, %s" % (V(M), V(M), V(L)))
    xlane("v_max_f32", M, vU)
    a("v_mul_f32 %s, s%d, %s" % (V(M), sC, V(M)))
    for s_ in SS:
        a("v_fma_f32 %s, %s, s%d, -%s" % (V(s_), V(s_), sC, V(M)))
    for s_ in SS:
        a("v_exp_f32 %s, %s" % (V(s_), V(s_)))
    a("v_add_f32 %s, %s, %s" % (V(L), V(SS[0]), V(SS[1])))
    for s_ in SS[2:]:
        a("v_add_f32 %s, %s, %s" % (V(L), V(L), V(s_)))
    for s_ in SS:
        a("v_cvt_pk_bf16_f32 %s, %s, %s" % (V(s_), V(s_), V(s_)))


def pv_ops(Pr, AX, AY):
    ax = ["v_and_b32 %s, %s, %s" % (V(AX), V(Pr), V(MK)),
          "v_and_b32 %s, %s, %s" % (V(AX + 1), V(Pr), V(MK + 1)),
          "v_and_b32_dpp %s, %s, %s row_ror:4 %s" % (V(AX + 2), V(Pr), V(MK + 2), DPPM),
          "v_and_b32_dpp %s, %s, %s row_ror:4 %s" % (V(AX + 3), V(Pr), V(MK + 3), DPPM)]
    ay = ["v_and_b32_dpp %s, %s, %s row_ror:12 %s" % (V(AY), V(Pr), V(MK), DPPM),
          "v_and_b32_dpp %s, %s, %s row_ror:12 %s" % (V(AY + 1), V(Pr), V(MK + 1), DPPM),
          "v_and_b32 %s, %s, %s" % (V(AY + 2), V(Pr), V(MK + 2)),
          "v_and_b32 %s, %s, %s" % (V(AY + 3), V(Pr), V(MK + 3))]
    return ax, ay


def pv_seq(groups, first, pre=None, post=None):
    lo, hi, AX, AY = ACC, ACC + 4, ACC + 8, ACC + 12
    n = len(groups)
    ops = [pv_ops(SS[g], AX, AY) for g, _ in groups]
    for o in ops[0][0]:
        a(o)
    for i in range(n):
        g, Vr = groups[i]
        ax, ay = ops[i]
        z = first and i == 0
        nx = ops[i + 1][0] if i + 1 < n else [None] * 4
        if g == 9:
            assert i == n - 1 and not z
            if pre:
                pre(i)
            mfma(lo, AX, Vr, V(lo, 4))
        else:
            a(ay[0]); a(ay[1])
            if pre:
                pre(i)
            mfma(lo, AX, Vr, "0" if z else V(lo, 4))
            a(ay[2]); a(ay[3])
            mfma(hi, AX, Vr + 8, "0" if z else V(hi, 4))
            if nx[0]:
                a(nx[0]); a(nx[1])
            mfma(lo, AY, Vr + 4, V(lo, 4))
            if nx[2]:
                a(nx[2]); a(nx[3])
            mfma(hi, AY, Vr + 12, V(hi, 4))
        if post:
            post(i)


def publish(typ, blk_off):
    lo, hi = ACC, ACC + 4
    tA, tO, tR, tE = D1, D1 + 1, D1 + 2, D1 + 3
    tM, tW = D3, D3 + 1
    mlr = D3 + 2
    OB = ACC + 8
    part = L_PART[typ]
    a("v_mov_b32 %s, 0" % V(tA))
    a("v_mov_b32 %s, 1" % V(tO))
    a("v_subrev_u32 %s, s%d, %s" % (V(tE), sLB, V(vL)))
    a("v_lshrrev_b32 %s, 1, %s" % (V(tE), V(tE)))
    a("v_and_b32 %s, 24, %s" % (V(tW), V(tE)))
    a("v_mov_b32 %s, s13" % V(tM))
    xlane("v_add_f32", ML + 1, vU)
    a("v_permlane32_swap_b32 %s, %s" % (V(lo), V(lo + 2)))
    a("v_permlane32_swap_b32 %s, %s" % (V(lo + 1), V(lo + 3)))
    a("v_permlane32_swap_b32 %s, %s" % (V(hi), V(hi + 2)))
    a("v_permlane32_swap_b32 %s, %s" % (V(hi + 1), V(hi + 3)))
    a("v_add_f32 %s, %s, %s" % (V(lo), V(lo), V(hi + 2)))
    a("v_add_f32 %s, %s, %s" % (V(lo + 1), V(lo + 1), V(hi + 3)))
    ds("ds_write_b64 %s, %s offset:%d" % (V(vPt), V(lo, 2), part))
    a("s_mov_b64 exec, 1")
    ds("ds_write_b64 %s, %s offset:%d" % (V(tM), V(ML, 2), part + 2048))
    ds("ds_add_rtn_u32 %s, %s, %s offset:%d" % (V(tR), V(tA), V(tO), L_CNT[typ]), "cnt")
    a("s_mov_b64 exec, -1")
    ds("ds_read_b64 %s, %s offset:%d" % (V(mlr, 2), V(tW), part + 2048), "ml")
    for p in range(4):
        ds("ds_read_b64 %s, %s offset:%d" % (V(OB + 2 * p, 2), V(tE), part + 512 * p))
    a("s_add_u32 s%d, s%d, %d" % (sT2, sPa, blk_off * PH))
    wait_lg("ml")
    a("v_readfirstlane_b32 s15, %s" % V(tR))
    cM, cL, cW = ML, ML + 1, vT
    a("v_max_f32_dpp v%d, v%d, v%d %s %s" % (cM, mlr, mlr, QP[0], DPPM))
    a("s_and_b32 s15, s15, 3")
    a("s_cmp_lg_u32 s15, 3")
    lab = a.newlabel("NOTLAST")
    rawbr("s_cbranch_scc1 %s" % lab)
    a("v_max_f32_dpp v%d, v%d, v%d %s %s" % (cM, cM, cM, QP[1], DPPM))
    a("v_sub_f32 v%d, v%d, v%d" % (cW, mlr, cM))
    a("v_exp_f32 v%d, v%d" % (cW, cW))
    a("v_mul_f32 v%d, v%d, v%d" % (cL, mlr + 1, cW))
    a("s_waitcnt lgkmcnt(0)")
    lsum = ["v_add_f32_dpp v%d, v%d, v%d %s %s" % (cL, cL, cL, q, DPPM) for q in QP[:2]]
    for p in range(4):
        for c in range(2):
            d = lo + 2 * (p & 1) + c
            op = "v_mul_f32_dpp" if p < 2 else "v_fmac_f32_dpp"
            a("%s v%d, v%d, v%d row_newbcast:%d %s" % (op, d, cW, OB + 2 * p + c, p, DPPM))
        if p in (0, 2):
            a(lsum[p // 2])
    pk(lo, lo, lo + 2)
    a("v_min_u32 v%d, -2, v%d" % (cM, cM))
    a("v_min_u32 v%d, -2, v%d" % (cL, cL))
    a("v_min_u32 v%d, -2, v%d" % (lo, lo))
    a("v_min_u32 v%d, -2, v%d" % (lo + 1, lo + 1))
    a("s_add_u32 s15, s%d, s14" % sT2)
    a("s_add_u32 s%d, s%d, s68" % (sT2, sT2))
    lab2 = a.newlabel("PLOC")
    a("s_cmp_eq_u32 s%d, 0" % sLoc)
    rawbr("s_cbranch_scc0 %s" % lab2)
    for sc in (" sc1", ""):
        a("buffer_store_dwordx2 %s, %s, %s, s15 offen%s" % (V(lo, 2), V(tE), S(WS, 4), sc))
        a.vmopt.add(len(a.vmq) - 1)
        a("s_mov_b64 exec, 1")
        a("buffer_store_dwordx2 %s, %s, %s, s%d offen%s" % (V(cM, 2), V(tE), S(WS, 4), sT2, sc))
        a.vmopt.add(len(a.vmq) - 1)
        a("s_mov_b64 exec, -1")
        if sc:
            rawbr("s_branch %s" % lab)
            a.label(lab2)
    a.label(lab)
    a("s_waitcnt lgkmcnt(0)")
    lgq.clear()
    a.nop(2)


def stage(g, dst):
    for t in range(4 if g < 9 else 1):
        ds("ds_read_b128 %s, v%d offset:%d" % (V(dst + 4 * t, 4), vL, g * 4096 + t * 1024), "st%d" % g)


reset_vm()
a.vmq[:] = []
fab[:] = []
if False:
    a("s_getpc_b64 %s" % S(WT, 2))
    a.label("L_PC")
    a("s_sub_u32 s%d, s%d, L_PC-%s_kernel" % (WT, WT, NAME))
    a("s_subb_u32 s%d, s%d, 0" % (WT + 1, WT + 1))
    a("s_and_b32 s%d, s%d, 0xffff" % (WT + 1, WT + 1))
    a("s_mov_b32 s%d, L_END-%s_kernel" % (WT + 2, NAME))
    a("s_mov_b32 s%d, 0x20000" % (WT + 3))
    a("s_lshl_b32 s%d, s15, 10" % sT2)
    a("v_add_u32 v42, s%d, v43" % sT2)
    a("buffer_load_dwordx4 %s, v42, %s, 0 offen" % (V(QR, 4), S(WT, 4)))
for _ in range(5):
    a.vmq.extend(["wpf"] * (2 if P["PRO"] & 2 else 1))
    fab.append(len(a.vmq) - 1)
a("s_lshl_b32 s14, s%d, 9" % sS)
a("s_lshl_b32 s68, s%d, 7" % sS)
a("s_add_u32 s68, s68, 3584")
a("s_lshl_b32 s13, s%d, 3" % sWv)
a("s_cmp_lg_u32 s%d, 0" % sWv)
a("s_cbranch_scc1 L_NOCLR")
a("v_add_u32 v40, s14, v43")
a("v_subrev_u32 v41, 512, v43")
a("v_add_u32 v41, s68, v41")
a("v_cmp_gt_u32 vcc, 32, v47")
a("v_cndmask_b32 v40, v41, v40, vcc")
for r in range(4):
    a("v_mov_b32 v%d, -1" % (QF + r))
a("v_mov_b32 v41, 0")
a("v_mov_b32 v36, 0")
a("v_mov_b32 v37, 0")
a("ds_write_b64 v41, v[36:37]")
a("s_mov_b32 exec_hi, 0xff")
for p in range(16):
    a("s_add_u32 s%d, s%d, %d" % (sT2, sPa, p * PH))
    a("buffer_store_dwordx4 %s, v40, %s, s%d offen sc1" % (V(QF, 4), S(WS, 4), sT2), tag="clr")
    a.vmopt.add(len(a.vmq) - 1)
a("s_mov_b64 exec, -1")
a("s_waitcnt lgkmcnt(0)")
a.label("L_NOCLR")
a("s_barrier")
for fn in wpf:
    pace()
    fn()
    fab.append(len(a.vmq) - 1)
if P["WOT"]:
    srd(WT, 24, "0x%x" % (4096 * 1280))
    a("s_sub_u32 s%d, s%d, s%d" % (WT, WT, sLB))
    a("s_subb_u32 s%d, s%d, 0" % (WT + 1, WT + 1))
    a("s_and_b32 s%d, s%d, 0xffff" % (WT + 1, WT + 1))
    a("s_add_u32 s%d, s%d, s%d" % (WT + 2, WT + 2, sLB))
    assert not P["HLP"]
    srd(OUT, 34, "s%d" % (WT + 2))
    a("s_sub_u32 s%d, s%d, s%d" % (OUT, OUT, sLB))
    a("s_subb_u32 s%d, s%d, 0" % (OUT + 1, OUT + 1))
    a("s_and_b32 s%d, s%d, 0xffff" % (OUT + 1, OUT + 1))
    a("s_mul_i32 s15, s%d, 163840" % sH)
    for r in range(3):
        a("s_add_u32 s%d, s%d, %d" % (29 + r, sWi, 28 * r))
        a("s_min_u32 s%d, s%d, 79" % (29 + r, 29 + r))
        a("s_cmp_lt_u32 s%d, 40" % (29 + r))
        a("s_cselect_b32 s%d, 0, 40" % sT2)
        a("s_add_u32 s%d, s%d, s%d" % (29 + r, 29 + r, sT2))
        a("s_lshl_b32 s%d, s%d, 10" % (29 + r, 29 + r))
        a("s_add_u32 s%d, s%d, s15" % (29 + r, 29 + r))
a("s_and_b32 s15, s%d, 3" % sH)
a("s_lshl_b32 s15, s15, 2")
a("s_add_u32 s15, s15, s%d" % sWv)
a("s_mul_i32 s15, s15, %d" % P["ROT"])
a("s_mul_hi_u32 s%d, s15, 0x%x" % (sT2, (1 << 32) // 9 + 1))
a("s_mul_i32 s%d, s%d, 9" % (sT2, sT2))
a("s_sub_u32 s15, s15, s%d" % sT2)
a("s_lshl_b32 s15, s15, 12")
for g in range(9):
    a("s_mov_b32 s%d, s15" % (GO + g))
    a("s_add_u32 s15, s15, 4096")
    a("s_cmp_eq_u32 s15, %d" % (9 * 4096))
    a("s_cselect_b32 s15, 0, s15")
a("s_mov_b32 s%d, %d" % (GO + 9, 9 * 4096))
for i in range(37):
    if i == P["W1P"]:
        Q.append(lambda: WIN.__setitem__(0, P["W1"]))
    Q.append(("KA", sCur, i, "home", True))
pump(4)
a("v_and_b32 v44, 1, v47")
a("v_lshlrev_b32 v44, 4, v44")
a("v_mov_b32 v%d, 0xffff" % (MK + 3))
a("v_lshlrev_b32 v%d, v44, v%d" % (MK + 3, MK + 3))
a("v_bfe_u32 v44, v47, 1, 2")
for r in range(4):
    a("v_cmp_eq_u32 vcc, %d, v44" % r)
    a("v_cndmask_b32 v%d, 0, v%d, vcc" % (MK + r, MK + 3))
a("v_lshlrev_b32 v%d, 5, v46" % vPt)
a("v_and_b32 v44, 1, v45")
a("v_lshl_add_u32 v%d, v44, 4, v%d" % (vPt, vPt))
a("v_lshrrev_b32 v44, 1, v45")
a("v_lshl_add_u32 v%d, v44, 3, v%d" % (vPt, vPt))
a("s_lshl_b32 s69, s%d, 9" % sWv)
a("v_add_u32 v%d, s69, v%d" % (vPt, vPt))
a("v_mov_b32 v44, 0xff800000")
a("v_cndmask_b32 v%d, v44, 0, %s" % (vBias, S(sQM, 2)))
a("s_cmp_lg_u32 s%d, 0" % sHas)
a("s_cbranch_scc1 L_HAS")
a("v_mov_b32 v%d, v44" % vBias)
for r in range(4):
    a("v_mov_b32 v%d, 0" % (home("KA", 36) + r))
    a("v_mov_b32 v%d, 0" % (36 + r))
    a("v_accvgpr_write_b32 %s, 0" % V(home("KB", 36) + r))
    a("v_accvgpr_write_b32 %s, 0" % V(home("VB", 36) + r))
a("ds_write_b128 v%d, v[36:39] offset:%d" % (vL, 36 * 1024))
a("s_waitcnt lgkmcnt(0)")
a.label("L_HAS")
pump(8)
wait_tag("clr")
a("s_cmp_lg_u32 s%d, 0" % sWv)
a("s_cbranch_scc1 L_NOFLAG")
a("v_mov_b32 v41, 0")
ready_add(40, 41)
a.label("L_NOFLAG")
pump(100)
for i in range(NVJ):
    Q.append(("VA", sCur, i, "home", True))
a("v_and_b32 v41, 7, v47")
a("v_lshlrev_b32 v41, 5, v41")
a("buffer_load_dword v40, v41, %s, 0 offen offset:4 sc1" % S(DBG, 4), tag="fl")
pump(WIN[0] + 1)
wait_tag("fl")
a("v_and_b32 v39, 0xffff, v40")
a("v_cmp_gt_u32 vcc, 32, v39")
a("s_cbranch_vccz L_FLD")
a.label("L_FLW")
a("buffer_load_dword v40, v41, %s, 0 offen offset:4 sc1" % S(DBG, 4))
a.vmopt.add(len(a.vmq) - 1)
a("s_waitcnt vmcnt(0)")
a("v_and_b32 v39, 0xffff, v40")
a("v_cmp_gt_u32 vcc, 32, v39")
a("s_cbranch_vccz L_FLD")
budget("L_FLD", "L_FLW", 2)
a.label("L_FLD")
ready_local(40)
pump(100)
stamp()

QR2 = 52
sPf, sPe, sFl = 26, 27, 28
assert P["ROT"] == 0 and PF % 2 == 0


def qbuild(R):
    for t in range(4):
        for r in range(4):
            a("v_cndmask_b32 %s, 0, %s, %s" % (V(QF + 4 * t + r), V(R + r), S(sQM + 2 * t, 2)))


def qwait_pf(dn, srdn=KA, win=None, wot=False):
    la, lb = a.newlabel("QA"), a.newlabel("QB")
    n0 = len(a.vmq)
    a.label(la)
    a("s_cmp_ge_u32 s%d, s%d" % (sPf, sPe))
    a("s_cbranch_scc1 %s" % lb)
    a("buffer_load_dwordx4 %s, v%d, %s, s15 offen sc1" % (V(QR2, 4), vQa, S(WS, 4)))
    for t in range(2):
        a("s_waitcnt vmcnt(%d)" % ((win or P["WPFW"]) * (5 if P["PRO"] & 1 else 3) // 2))
        l2fetch(1, vK, srdn, sPf, t * 1024)
    a("s_add_u32 s%d, s%d, 2048" % (sPf, sPf))
    exact_check(range(QR2, QR2 + 4), vT)
    a("s_cbranch_vccnz %s" % la)
    a("s_branch %s" % dn)
    a.label(lb)
    if wot:
        for d_ in (WT, OUT)[:P["WOT"]]:
            for r in range(3):
                l2fetch(4, vL, d_, 29 + r, old=" sc1")
        lb = a.newlabel("QC")
        a.label(lb)
    a("buffer_load_dwordx4 %s, v%d, %s, s15 offen sc1" % (V(QR2, 4), vQa, S(WS, 4)))
    a("s_waitcnt vmcnt(0)")
    exact_check(range(QR2, QR2 + 4), vT)
    a("s_cbranch_vccz %s" % dn)
    budget(dn, lb)
    for i in range(n0, len(a.vmq)):
        a.vmopt.add(i)


if P["RGL"]:
    a("s_and_b32 s%d, s%d, %d" % (sRk, sH, P["RGL"] - 1))
else:
    a("s_lshr_b32 s%d, s%d, 2" % (sRk, sH))
a("s_lshl_b32 s%d, s%d, 7" % (sRk, sRk))
a("s_add_u32 s%d, s%d, %d" % (sRk, sRk, RK0))
a("s_mov_b64 %s, 0" % S(sLate, 2))
a.drain()
a.label("L_J")
WIN[0] = W
reset_vm()
lgq.clear()
for i in range(37):
    live[("KA", i)] = live[("KB", i)] = live[("VB", i)] = True
    live[("VA", i)] = i < NVJ
    live[("KA", i)] = i >= 4 * NG
for i in range(NVJ, 37):
    Q.append(("VA", sCur, i, "home", True))
nva = 37 - NVJ
nva -= P["B4R"]
rank_issue(0)
pump(max(0, nva - W))
a("s_cmp_eq_u32 s%d, 0" % sB)
a("s_cselect_b32 s15, 0, %d" % PH)
a("s_sub_u32 s15, s%d, s15" % sPq)
a("buffer_load_dwordx4 %s, v%d, %s, s15 offen sc1" % (V(QR2, 4), vQa, S(WS, 4)), tag="q4")
pump(min(W, nva))
rank_use()
for i in range(37):
    Q.append(("KB", sCur, i, "home", True))
a("s_cmp_eq_u32 s%d, 0" % sB)
a("s_cbranch_scc1 L_B0")
sav = (list(a.vmq), set(a.vmopt), list(fab), done_idx[0], dict(curh), deque(Q), dict(live))
stamp()
wait_tag("q4")
exact_check(range(QR2, QR2 + 4), vT)
a("s_cbranch_vccz L_Q4D")
a("s_mov_b32 s%d, s%d" % (sPf, sCur))
a("s_add_u32 s%d, s%d, %d" % (sPe, sCur, P["PF4"] * 1024))
qwait_pf("L_Q4D", KB, W)
a.label("L_Q4D")
qbuild(QR2)
stamp()
qload(0)
NB4 = [0]


def _h4(i):
    n = ({0: 2, 2: 1, 5: 1, 8: 1} if P["XB"] else {0: 2, 3: 1, 7: 1}).get(i, 0)
    pump(n, paced=False)
    NB4[0] += n


qk_burst("KB", list(range(10)), hook=_h4, release=True)
softmax()


def _p4(i):
    free("VB", i)
    if i in ((0, 3, 6, 9) if P["XB"] else (0, 4, 8)):
        pump(1, paced=False)
        NB4[0] += 1


pv_seq([(g, home("VB", 4 * g)) for g in range(10)], True, post=_p4)
publish(1, -1)
stamp()
a("s_cmp_eq_u32 s%d, 4" % sB)
a("s_cbranch_scc1 L_FIN")
a("s_branch L_B1")
a.label("L_B0")
end_state = (list(a.vmq), set(a.vmopt), list(fab), done_idx[0], dict(curh), deque(Q), dict(live))
a.vmq[:], a.vmopt, fab[:], done_idx[0] = sav[0], sav[1], sav[2], sav[3]
curh.update(sav[4]); Q.clear(); Q.extend(sav[5]); live.update(sav[6])
for g in range(10):
    free("KB", g); free("VB", g)
qload(0)
pump(NB4[0])
if NG:
    qcheck(0, True)
    wait_tag("old")
    qk_early()
a.drain()
a.label("L_B1")
a.vmq[:], a.vmopt, fab[:] = end_state[0], end_state[1], end_state[2]
done_idx[0] = sav[3]
Q.clear(); Q.extend(end_state[5]); live.update(end_state[6])
curh.update(K=None, V=None, m0=None)
lgq.clear()

STG1 = [home("VB", 24), home("VB", 28), home("VB", 32)]
for g in (6, 7, 8):
    for i in range(4 * g, 4 * g + 4):
        live[("VB", i)] = True
pump(1)
qcheck(0, True)
stamp()
wait_tag("old")


def va_ready(g):
    while any((not callable(it)) and it[0] == "VA" and it[2] // 4 == g for it in Q):
        pump(1)
    if 4 * g + 3 >= NVJ:
        wait_tag("VA%d" % g)


for g in range(3):
    va_ready(g)
    stage(g, STG1[g])
qk_burst("KA", list(range(NG, 10)), hook=lambda i: pump(1) if i in (0, 3, 6, 9) else None)
for g in range(NG):
    a("v_mov_b32 %s, %s" % (V(SS[g]), V(SX[g])))
softmax()
pump(1)


def _pre1(i):
    wait_lg("st%d" % i)


def _post1(i):
    if i + 3 < 10:
        va_ready(i + 3)
        stage(i + 3, STG1[i % 3])
    if i in ((2, 5, 8) if P["XB"] else (3, 7)):
        pump(1)


pv_seq([(g, STG1[g % 3]) for g in range(10)], True, pre=_pre1, post=_post1)
publish(0, 0)
stamp()
for g in (6, 7, 8):
    free("VB", g)

a("s_add_u32 s%d, s%d, 0x%x" % (sNxt, sCur, BATCH))
a("s_cmp_lt_u32 s%d, 3" % sB)
a("s_cselect_b32 s%d, s%d, 0" % (KA + 2, sNRK))
a("s_cselect_b32 s%d, s%d, 0" % (VA + 2, sNRV))
rank_get()
dual_on()
pump(len(Q) - P["RANK"] - 1 if P["RANK"] else 0)
rank_issue(1)
pump(100)
rank_use()
dual_on()
Q2POS = P["Q2POS"]
for i in range(37):
    if i == 37 - P["NEND"]:
        Q.append(lambda: WIN.__setitem__(0, P["WEND"]))
    Q.append(("VB", sCur, i, "home", True))
for i in range(4 * NG):
    Q.append(("KA", sNxt, i, "home", True))
SPR = P["SPR"]
assert not (SPR and NG)
for i in range(36 - SPR, 36):
    live[("KS", i)] = False
    Q.append(("KS", sNxt, i, "home", True))
a("s_add_u32 s%d, s%d, %d" % (sPf, sNxt, (36 - SPR - PF) * 1024))
a("s_add_u32 s%d, s%d, %d" % (sPe, sNxt, (36 - SPR) * 1024))
a("s_mov_b32 s%d, 0" % sFl)
a("s_add_u32 s15, s%d, %d" % (sPq, PH))
TURBO, TG0, TG1 = P["TURBO"], P["TG0"], P["TG1"]
nissued = 0
tpolls = []
if TURBO:
    assert landed("KB0")
    for r in range(4):
        a("v_mov_b32 %s, -1" % V(QR2 + r))
    pump(4 * TG0)
    rank_get()
    dual_on()
    nissued = 4 * TG0
    tdone = done_idx[0]
    tstate = {}
    for g in range(TG0, TG1):
        a("buffer_load_dwordx4 %s, v%d, %s, s15 offen sc1" % (V(QR2, 4), vQa, S(WS, 4)))
        tpolls.append(len(a.vmq) - 1)
        pump(4)
        nissued += 4
        if g == TG0:
            tstate = (deque(Q), dict(live))
        exact_check(range(QR2, QR2 + 4), vT)
        a("s_cbranch_vccz L_TB%d" % (g + 1))
        dual_on()
    assert nissued <= Q2POS - W
pump(Q2POS - W - nissued)
a("buffer_load_dwordx4 %s, v%d, %s, s15 offen sc1" % (V(QR2, 4), vQa, S(WS, 4)), tag="q")
tpolls.append(len(a.vmq) - 1)
pump(W)
dual_off()
stamp()
wait_tag("q")
exact_check(range(QR2, QR2 + 4), vT)
a("s_cbranch_vccz L_Q2D")
sav = (list(a.vmq), set(a.vmopt), list(fab), done_idx[0], dict(curh), deque(Q), dict(live))
pump(100)
a("s_mov_b32 s%d, 2" % sFl)
qwait_pf("L_Q2D")
if TURBO:
    live.update(tstate[1])
    for it in tstate[0]:
        if callable(it):
            continue
        if it[0] == "VB" and it[2] % 4 == 0 and it[2] // 4 <= TG1:
            a.label("L_TB%d" % (it[2] // 4))
            curh.update(K=None, V=None, m0=None)
        a("s_waitcnt vmcnt(%d)" % (TURBO - 1))
        load_tile(*it, False)
    stamp()
    a("s_mov_b32 s%d, 1" % sFl)
a.vmq[:], a.vmopt, fab[:], done_idx[0] = sav[0], sav[1], sav[2], sav[3]
if TURBO:
    done_idx[0] = tdone
    a.vmopt.update(tpolls)
Q.clear(); Q.extend(sav[5]); live.update(sav[6])
curh.update(K=None, V=None, m0=None)
a.label("L_Q2D")
qbuild(QR2)
stamp()
wait_tag("KB9")


if NG:
    qload(4)


def cpump(n, paced=False):
    if not Q:
        return
    lab = a.newlabel("H2")
    a("s_cmp_lg_u32 s%d, 0" % sFl)
    rawbr("s_cbranch_scc1 %s" % lab)
    st0, dn0 = a.st, done_idx[0]
    pump(n, paced=paced)
    a.st, done_idx[0] = st0, dn0
    a.label(lab)


NREST = 37 - Q2POS
qk_burst("KB", list(range(10)), hook=lambda i: cpump(-(-NREST // 3)) if i in (1, 4, 7) else None)
softmax()
assert not any((not callable(it)) and it[0] == "VB" for it in Q)
pv_seq([(x, home("VB", 4 * x)) for x in range(10)], True, pre=lambda i: wait_tag("VB%d" % i),
       post=lambda i: cpump(1) if i in (0, 3, 6) else None)
publish(1, 1)
stamp()
cpump(100, paced=True)
curh.update(K=None, V=None, m0=None)
a("s_cmp_lt_u32 s%d, 3" % sB)
a("s_cselect_b32 s%d, s%d, 0" % (KB + 2, sNRK))
if NG or not P["NOW0"]:
    waitvm(0)
else:
    assert all(i <= done_idx[0] for i in tpolls)
    a("s_cmp_lg_u32 s%d, 2" % sFl)
    rawbr("s_cbranch_scc1 L_NW0")
    a("s_waitcnt vmcnt(0)")
    a.label("L_NW0")
for r in range(4):
    a("v_mov_b32 %s, -1" % V(QR2 + r))
if NG:
    a("s_cmp_eq_u32 s%d, 3" % sB)
    a("s_cbranch_scc1 L_NOG2")
    qcheck(4, True)
    qk_early()
    a.drain()
    a.label("L_NOG2")
    a("s_mov_b32 s15, s%d" % (KA + 2))
    a("s_mov_b32 s%d, s%d" % (KA + 2, sNRK))
    WIN[0] = P["WG3"]
    for i in range(4 * NG):
        Q.append(("KA", sCur, i, "home", True))
    pump(100)
    a("s_mov_b32 s%d, s15" % (KA + 2))
a("s_add_u32 s15, s%d, %d" % (sPq, 2 * PH))
qwait_pf("L_Q3D", wot=P["WOT"])
a.label("L_Q3D")

WIN[0] = W
qbuild(QR2)
curh.update(K=None, V=None, m0=None)
stamp()
STG3 = [home("KA", 24), home("KA", 28), home("KA", 32)]
F0 = 36 - SPR - PF
FQ = deque([("KA", sNxt, i, "home", True) for i in list(range(4 * NG, min(F0, 4 * NG + 4))) + [36] + list(range(4 * NG + 4, F0))] +
           [("VA", sNxt, i, "home", True) for i in range(NVJ)])
LQ = deque([("KA", sNxt, i, "home", False) for i in range(F0, 36 - SPR)])
order3 = [NG, 6, 9, 7, 8] + list(range(NG + 1, 6)) + list(range(NG))
if P["L2B"] == 3:
    g0 = F0 // 4
    rest3 = [g for g in range(6) if g not in (g0, g0 + 1)]
    rest3 = [g for g in rest3 if g > g0] + [g for g in rest3 if g < g0]
    order3 = [g0, 6, g0 + 1, 7, 8] + rest3 + [9]
assert F0 >= 4 * NG


def take(q, n):
    for it in list(q):
        if n == 0:
            break
        if not live.get((it[0], it[2]), False):
            q.remove(it)
            load_tile(*it, False)
            n -= 1


def _h3(i):
    g = order3[i]
    if g in (6, 7, 8):
        for x in range(4 * g, 4 * g + 4):
            live[("KA", x)] = True
        stage(g - 6, STG3[g - 6])
    if i in (4, 5, 6):
        wait_lg("st%d" % (i - 4))
        free("VA", i - 4)
    if P["L2B"] == 3:
        take(LQ, P["L2N"] if i < P["L2E"] else 0)
        take(FQ, {P["L2E"]: 4, P["L2E"] + 1: W - 4}.get(i, 0))
        return
    take(FQ, {0: 4, 2: 1, 4: W - 5, 7: 1, 9: 1}.get(i, 0))
    if P["L2B"] == 1:
        take(LQ, 2)


qk_burst("KA", order3, hook=_h3, release=True, pre=lambda g: wait_tag("KA%d" % g) if g < NG else None)
softmax()


def _post3(i):
    if i >= 3:
        free("VA", i)
    if i + 3 < 10:
        stage(i + 3, STG3[i % 3])
    if i in (0, 3, 6, 9):
        take(FQ, 1)
    if P["L2B"] in (1, 2) and i < 8:
        take(LQ, 1)


pv_seq([(g, STG3[g % 3]) for g in range(10)], True, pre=_pre1, post=_post3)
publish(0, 2)
if P["PBAR"]:
    a("s_barrier")
stamp()
for g in (6, 7, 8):
    free("KA", g)
for i in range(36 - SPR, 36):
    wait_tag("KS8")
    for r in (0, 2):
        a("v_mov_b64 %s, %s" % (V(home("KA", i) + r, 2), V(home("KS", i) + r, 2)))
assert not Q
for n_, it in enumerate(FQ):
    if n_ == P["CUD"]:
        Q.append(lambda: WIN.__setitem__(0, P["WCU"]))
    Q.append(it)
    if n_ >= P["CUD"] and LQ:
        for _ in range(P["L2R"]):
            if LQ:
                Q.append(LQ.popleft())
        if not LQ:
            assert len(FQ) - n_ > W
            Q.append(lambda: WIN.__setitem__(0, W))
assert not LQ
pump(100)
a("s_add_u32 s%d, s%d, 1" % (sB, sB))
a("s_mov_b32 s%d, s%d" % (sCur, sNxt))
a("s_add_u32 s%d, s%d, %d" % (sPq, sPq, 4 * PH))
a("s_add_u32 s%d, s%d, %d" % (sPa, sPa, 4 * PH))
a("s_add_u32 s%d, s%d, %d" % (sRk, sRk, 4 * PH))
stamp()
a("s_branch L_J")

a.label("L_COMM")
lgq.clear()
a("s_waitcnt lgkmcnt(0)")
common_srds()
vL8, vML, vM01, vHa, vHc, vOw, vOr, vX1, vX3, vG16, vL4, vC, vWL, vL16, vY1, vY2 = 1, 2, 3, 4, 5, 6, 7, 8, 9, 10, 11, 12, 16, 17, 18, 19
SET, TMP, AF, AC, STG, XF, G, XC = 20, 36, 52, 68, 84, 100, 108, 188
sP, sHA, sHB, sN, sHBm, sHC, sX, sTy, sMode, sGty, sWF, sHAo, sHBo, sHCo = 6, 7, 8, 9, 10, 11, 12, 13, 14, 15, 42, 43, 68, 69
SEL_LO, SEL_HI = 78, 77


def WQF(mat, k, ct):
    n = mat * 40 + 2 * k + ct
    return 256 + 4 * n if n < 64 else 192 + 4 * (n - 64)


def in_lds(i):
    return (i & 1) and i < 38


def greg(i):
    t, k = i // 4, i % 4
    return XC if i == 39 else G + 40 * (k // 2) + 4 * t


a("s_mov_b32 s%d, 0x05040100" % SEL_LO)
a("s_mov_b32 s%d, 0x07060302" % SEL_HI)
srd(OUT, 36, "5120")
a("v_lshlrev_b32 v%d, 2, v47" % vL4)
a("v_lshlrev_b32 v%d, 4, v47" % vL16)
a("v_lshrrev_b32 v44, 2, v47")
a("v_lshlrev_b32 v44, 13, v44")
a("v_and_b32 v43, 3, v47")
a("v_lshl_add_u32 v44, v43, 4, v44")
a("s_lshl_b32 s76, s%d, 8" % sH)
a("s_lshl_b32 s%d, s%d, 6" % (sT, sWv))
a("s_add_u32 s76, s76, s%d" % sT)
a("s_mul_i32 s71, s%d, 38912" % sWv)
a("s_add_u32 s71, s71, %d" % L_WO)
a("v_lshlrev_b32 v48, 9, v45")
a("v_lshl_add_u32 v48, v46, 2, v48")
a("v_add_u32 v48, s71, v48")
RAW = [52, 92, 132]
WT2 = 44


def wq_issue(n):
    mat, bt = n // 4, n % 4
    for r in range(10):
        a("s_add_u32 s%d, s76, %d" % (sT, (160 * bt + 16 * r) * 8192))
        a("s_add_u32 m0, s71, %d" % ((n % 3) * 10240 + r * 1024))
        a("buffer_load_dwordx4 v44, %s, s%d offen %slds" % (S(WT2 + 4 * mat, 4), sT, "nt " if P["WQNT"] else ""), tag="wq%d" % n)


def wq_read(n):
    for kk in range(5):
        a("v_add_u32 v49, %d, v48" % ((n % 3) * 10240 + kk * 2048))
        for e in range(0, 8, 2):
            a("ds_read2_b32 %s, v49 offset0:%d offset1:%d" % (V(RAW[0] + 8 * kk + e, 2), 16 * e, 16 * e + 16))
        if kk == 2:
            a("s_waitcnt lgkmcnt(6)")


def wq_perm(n):
    mat, bt = n // 4, n % 4
    tq = 92
    c = 0
    for kk in range(5):
        a("s_waitcnt lgkmcnt(%d)" % min(15, 4 * (4 - kk)))
        for ct in range(2):
            for e in range(0, 8, 2):
                r0 = RAW[0] + 8 * kk + e
                dst = WQF(mat, 5 * bt + kk, ct) + e // 2
                sel = SEL_HI if ct else SEL_LO
                if dst < 256:
                    a("v_perm_b32 v%d, v%d, v%d, s%d" % (dst, r0 + 1, r0, sel))
                else:
                    a("v_perm_b32 v%d, v%d, v%d, s%d" % (tq + c % 4, r0 + 1, r0, sel))
                    a("v_accvgpr_write_b32 %s, v%d" % (V(dst), tq + c % 4))
                    c += 1


def wq_step(n):
    a.wait_tag("wq%d" % n)
    wq_read(n)
    wq_perm(n)
    if n + 3 < 8:
        wq_issue(n + 3)


def comm_setup():
    a("v_lshlrev_b32 v%d, 3, v47" % vL8)
    a("v_and_b32 v43, 7, v47")
    a("v_cmp_eq_u32 vcc, 7, v43")
    a("v_min_u32 v43, 6, v43")
    a("v_lshlrev_b32 v%d, 7, v43" % vML)
    a("v_add_u32 v%d, 3584, v%d" % (vML, vML))
    a("v_cndmask_b32 v%d, 1.0, 0, vcc" % vM01)
    a("v_mul_u32_u24 v43, 1280, v45")
    a("v_lshl_add_u32 v%d, v46, 4, v43" % vHa)
    a("v_lshl_add_u32 v%d, v46, 3, v43" % vHc)
    a("v_add_u32 v%d, 512, v%d" % (vHc, vHc))
    a("s_mul_i32 s%d, s%d, 640" % (sT2, sWv))
    a("s_add_u32 s%d, s%d, %d" % (sT2, sT2, L_YB))
    a("v_add_u32 v%d, s%d, v%d" % (vOw, sT2, vL4))
    a("v_add_u32 v%d, s%d, v%d" % (vY1, sT2, vL16))
    a("v_add_u32 v%d, s%d, v%d" % (vY2, sT2, vL8))
    a("v_lshlrev_b32 v%d, 4, v45" % vG16)
    a("v_add_u32 v%d, s%d, v%d" % (vOr, sT2, vG16))
    a("s_mul_i32 s%d, s%d, 320" % (sT2, sWv))
    a("v_lshlrev_b32 v%d, 4, v46" % vX1)
    a("v_and_b32 v43, 1, v45")
    a("v_lshl_add_u32 v%d, v43, 2, v%d" % (vX1, vX1))
    a("v_lshrrev_b32 v43, 1, v45")
    a("v_lshl_add_u32 v%d, v43, 1, v%d" % (vX1, vX1))
    a("v_add_u32 v%d, s%d, v%d" % (vX1, sT2, vX1))
    a("v_lshlrev_b32 v%d, 2, v46" % vX3)
    a("v_lshl_add_u32 v%d, v43, 1, v%d" % (vX3, vX3))
    a("s_add_u32 s%d, s%d, 256" % (sT2, sT2))
    a("v_add_u32 v%d, s%d, v%d" % (vX3, sT2, vX3))
    a("v_add_u32 v%d, s71, v%d" % (vWL, vL16))
    a("s_mul_i32 s%d, s73, 163840" % sWF)
    a("s_mul_i32 s%d, s72, 320" % sT2)
    a("s_add_u32 s%d, s%d, s%d" % (sWF, sWF, sT2))
    a("s_movk_i32 s74, 560")
    a("s_movk_i32 s70, 640")
    for r in range(4):
        a("v_mov_b32 v%d, 0" % (vC + r))


a("s_andn2_b32 s73, s%d, 3" % sH)
a("s_add_u32 s73, s73, s%d" % sWv)
a("s_and_b32 s72, s%d, 3" % sH)
a("s_mul_i32 s%d, s73, 4608" % sHAo)
a("s_mul_i32 s%d, s%d, 5120" % (sHBo, sWv))
a("s_add_u32 s%d, s%d, %d" % (sHBo, sHBo, HB0))
a("s_lshl_b32 s%d, s76, 1" % sHCo)
a("s_add_u32 s%d, s%d, %d" % (sHCo, sHCo, HC0))
a("s_mul_i32 s75, s72, 5120")
a("s_lshr_b32 s%d, s%d, 2" % (sT2, sH))
a("s_mul_i32 s%d, s%d, 640" % (sT2, sT2))
a("s_add_u32 s75, s75, s%d" % sT2)
a("s_add_u32 s75, s75, %d" % HB0)
a("v_add_u32 v40, s75, v%d" % vL16)
a("v_subrev_u32 v41, 640, v%d" % vL16)
a("v_add_u32 v41, s%d, v41" % sHCo)
a("v_cmp_gt_u32 vcc, 40, v47")
a("v_cndmask_b32 v40, v41, v40, vcc")
a("s_lshr_b32 s%d, s%d, 2" % (sT2, sH))
a("s_lshl_b32 s%d, s%d, 7" % (sT2, sT2))
a("s_add_u32 s%d, s%d, %d" % (sT2, sT2, RK0))
a("v_mov_b32 v41, s%d" % sT2)
a("v_cmp_gt_u32 vcc, 44, v47")
a("v_cndmask_b32 v40, v41, v40, vcc")
for r in range(4):
    a("v_mov_b32 v%d, -1" % (36 + r))
a("s_mov_b32 exec_hi, 0x1fff")
for p in range(16):
    a("s_mov_b32 s%d, %d" % (sT, p * PH))
    a("buffer_store_dwordx4 v[36:39], v40, %s, s%d offen sc1" % (S(WS, 4), sT))
a("s_mov_b64 exec, -1")
srd(WT, 16, "5120")
a("s_mul_i32 s%d, s%d, 1280" % (sT, sWv))
for r in range(5):
    a("buffer_load_dword v%d, v%d, %s, s%d offen offset:%d" % (20 + r, vL4, S(WT, 4), sT, 256 * r))


def _between():
    comm_setup()
    a("s_waitcnt vmcnt(%d)" % (0 if P["CDEL"] else 30))
    a("s_mul_i32 s%d, s%d, 1280" % (sT2, sWv))
    a("v_add_u32 v43, s%d, v%d" % (sT2, vL4))
    a("v_mov_b32 v42, 0x3f803f80")
    for r in range(5):
        a("ds_write_b32 v43, v%d offset:%d" % (20 + r, L_X + 256 * r))
        a("ds_write_b32 v%d, v42 offset:%d" % (vL4, L_X + 4 * 1280 + 256 * r))
    a("s_waitcnt lgkmcnt(0)")
    a("s_barrier")
    a("s_cmp_lg_u32 s%d, 0" % sWv)
    a("s_cbranch_scc1 L_CNF")
    ready_add(42, vL4)
    a.label("L_CNF")


WOS = [52, 56]
wa, wb = TMP + 4, TMP + 5


def wo_addr():
    a("v_mad_u32_u24 v%d, v%d, s74, v%d" % (wa, vG16, vHa))
    a("v_and_b32 v%d, 63, v%d" % (wb, vL4))
    a("v_add_u32 v%d, 256, v%d" % (wb, wb))
    a("v_mad_u32_u24 v%d, v%d, s70, v%d" % (wb, vG16, wb))


def wo_issue(srdn, k, R, tag=None):
    for e in range(8):
        if e % 4 == 0:
            a("s_add_u32 s%d, s%d, %d" % (sT, sWF, (32 * k + e) * 1280))
        a("buffer_load_dwordx4 %s, v%d, %s, s%d offen offset:%d" % (V(R + 4 * e, 4), wa, S(srdn, 4), sT, (e % 4) * 1280), tag=tag)
        a("buffer_load_dword v%d, v%d, %s, s%d offen offset:%d" % (R + 32 + e, wb, S(srdn, 4), sT, (e % 4) * 1280), tag=tag)


def wo_perm(R, dst_of):
    for t in range(10):
        for e in range(0, 8, 2):
            if t < 8:
                r0, r1 = R + 4 * e + t // 2, R + 4 * e + 4 + t // 2
            else:
                r0, r1 = R + 32 + e, R + 33 + e
            a("v_perm_b32 v%d, v%d, v%d, s%d" % (dst_of(t) + e // 2, r1, r0, SEL_HI if t & 1 else SEL_LO))


def wo_to_lds(mat):
    FO = 52
    for n_, k in enumerate((1, 3)):
        a.wait_tag("wo%d_%d" % (mat, k))
        wo_perm(G + 40 * n_, lambda t: XF + 4 * mat if (t == 9 and k == 3) else FO + 4 * t)
        for t in range(10):
            i = 4 * t + k
            if in_lds(i):
                a("ds_write_b128 v%d, %s offset:%d" % (vWL, V(FO + 4 * t, 4), mat * 19456 + (i // 2) * 1024))
        a("s_waitcnt lgkmcnt(0)")


def tlb_touch():
    a("s_cmp_eq_u32 s%d, 1" % sWv)
    a("s_cselect_b32 s%d, s20, s18" % WT)
    a("s_cselect_b32 s%d, s21, s19" % (WT + 1))
    a("s_cmp_eq_u32 s%d, 2" % sWv)
    a("s_cselect_b32 s%d, s28, s%d" % (WT, WT))
    a("s_cselect_b32 s%d, s29, s%d" % (WT + 1, WT + 1))
    a("s_cmp_eq_u32 s%d, 3" % sWv)
    a("s_cselect_b32 s%d, s30, s%d" % (WT, WT))
    a("s_cselect_b32 s%d, s31, s%d" % (WT + 1, WT + 1))
    a("s_and_b32 s%d, s%d, 0xffff" % (WT + 1, WT + 1))
    a("s_mov_b32 s%d, 0x%x" % (WT + 2, TENSOR))
    a("s_lshl_b32 s%d, s72, 25" % sT)
    a("s_lshr_b32 s%d, s%d, 2" % (sT2, sH))
    a("s_lshl_b32 s%d, s%d, 22" % (sT2, sT2))
    a("s_add_u32 s%d, s%d, s%d" % (sT, sT, sT2))
    a("v_lshlrev_b32 v42, 14, v%d" % vL4)
    a("buffer_load_dword v43, v42, %s, s%d offen nt" % (S(WT, 4), sT))


def call_wq(ty, slot, mode, blk):
    a("s_mov_b32 s%d, %d" % (sTy, ty))
    a("s_mov_b32 s%d, %d" % (sX, L_X + 1280 * slot))
    a("s_mov_b32 s%d, %d" % (sMode, mode))
    a("s_add_u32 s%d, s%d, %d" % (sHC, sHCo, blk * PH))
    a("s_call_b64 %s, R_WQ" % S(RA, 2))


a.vmq[:] = []
a.vmopt.clear()
srd(WT2, 22, "0x%x" % (640 * 8192))
srd(WT2 + 4, 32, "0x%x" % (640 * 8192))
srd(WOS[0], 24, "0x%x" % (4096 * 1280))
srd(WOS[1], 34, "0x%x" % (4096 * 1280))
if P["CDEL"]:
    _between()
for n in range(3):
    wq_issue(n)
if not P["CDEL"]:
    _between()
wo_addr()
for n in range(4):
    wq_step(n)
    if n == 0:
        wo_issue(WOS[0], 1, G, "wo0_1")
        wo_issue(WOS[0], 3, G + 40, "wo0_3")
stamp()
call_wq(1, 4, 1, 0)
call_wq(1, 0, 0, 0)
if P["TLB"] == 2:
    tlb_touch()
stamp()
for n in range(4, 8):
    wq_step(n)
stamp()
wo_to_lds(0)
wo_issue(WOS[1], 1, G, "wo1_1")
wo_issue(WOS[1], 3, G + 40, "wo1_3")
call_wq(0, 4, 1, 0)
for b in range(1, 4):
    call_wq(1, b, 0, 4 * b)
stamp()
wo_to_lds(1)
if P["TLB"] == 1:
    tlb_touch()
a("s_barrier")
stamp()

a("v_and_b32 v44, 56, v%d" % vL8)
a("v_lshlrev_b32 v44, 2, v44")
a.label("L_AFW")
a("buffer_load_dword v42, v44, %s, 0 offen offset:4 sc1" % S(DBG, 4))
a("s_waitcnt vmcnt(0)")
a("v_and_b32 v43, 0xffff, v42")
a("v_cmp_gt_u32 vcc, 32, v43")
a("s_cbranch_vccz L_AFD")
budget("L_AFD", "L_AFW", 2)
a.label("L_AFD")
ready_local(42)
a("s_mov_b32 s%d, 0" % sN)
a("s_mov_b32 s%d, 0" % sMode)
a("s_mov_b32 s%d, 2" % sGty)
TAB = 0xfedbca9786534210 if P["ORD"] else 0xfbedc7a983654210
a("s_mov_b32 s18, 0x%08x" % (TAB & 0xffffffff))
a("s_mov_b32 s19, 0x%08x" % (TAB >> 32))
a("s_mov_b32 s%d, 0x%x" % (WT + 2, 4096 * 1280))

ta, ts = TMP + 14, TMP + 15
DQ, XS, s2, s1, one = AC, AF, TMP, TMP + 1, TMP + 2


def wq_pre():
    a("v_add_u32 v%d, s%d, v%d" % (ta, sX, vG16))
    a("v_add_u32 v%d, s%d, v%d" % (ts, sX, vL4))
    a("v_mov_b32 v%d, 0" % s2)
    a("v_mov_b32 v%d, 0" % s1)
    a("v_mov_b32 v%d, 0x3f803f80" % one)


cM, cL, cW, cX, cA = TMP, TMP + 1, TMP + 2, TMP + 3, TMP + 4
tLW, tx1, tx3, xo = TMP + 8, TMP + 9, TMP + 10, TMP + 11
a.label("L_CH")
lgq.clear()
a("s_lshl_b32 s%d, s%d, 2" % (sT, sN))
a("s_lshr_b64 s[16:17], s[18:19], s%d" % sT)
a("s_and_b32 s%d, s16, 15" % sP)
a("s_and_b32 s%d, s%d, 1" % (sTy, sP))


def g_issue(ty):
    a("s_cmp_eq_u32 s%d, 0" % ty)
    a("s_cselect_b32 s%d, s%d, s%d" % (WT, WOS[0], WOS[1]))
    a("s_cselect_b32 s%d, s%d, s%d" % (WT + 1, WOS[0] + 1, WOS[1] + 1))
    wo_addr()
    wo_issue(WT, 2, G)
    wo_issue(WT, 0, G + 40)


a("s_cmp_eq_u32 s%d, s%d" % (sTy, sGty))
a("s_cbranch_scc1 L_GOK")
a("s_cmp_eq_u32 s%d, 3" % sGty)
a("s_cbranch_scc1 L_GIS")
g_issue(sTy)
a.label("L_GIS")
a("s_mov_b32 s%d, s%d" % (sGty, sTy))
a("s_cmp_eq_u32 s%d, 0" % sTy)
a("s_cselect_b64 vcc, -1, 0")
for r in range(4):
    a("v_cndmask_b32 v%d, v%d, v%d, vcc" % (XC + r, XF + 4 + r, XF + r))
a("s_waitcnt vmcnt(16)")
wo_perm(G, lambda t: AF + 4 * t)
a("s_waitcnt vmcnt(0)")
wo_perm(G + 40, lambda t: G + 4 * t)
for r in range(0, 40, 2):
    a("v_mov_b64 %s, %s" % (V(G + 40 + r, 2), V(AF + r, 2)))
a.label("L_GOK")
if DIAG == 2:
    stamp()
a("s_mul_i32 s%d, s%d, %d" % (sT, sP, PH))
a("s_add_u32 s%d, s%d, s%d" % (sHA, sT, sHAo))
a("s_add_u32 s%d, s%d, s%d" % (sHB, sT, sHBo))
a("s_add_u32 s%d, s%d, s75" % (sHBm, sT))
a("s_add_u32 s%d, s%d, s%d" % (sHC, sT, sHCo))
a("s_add_u32 s%d, s%d, %d" % (sHC, sHC, PH))
a("s_lshr_b32 s%d, s%d, 2" % (sX, sP))
a("s_mul_i32 s%d, s%d, 1280" % (sX, sX))
a("s_mul_i32 s%d, s%d, 19456" % (sT, sTy))
a("v_add_u32 v%d, s%d, v%d" % (tLW, sT, vWL))
a("v_add_u32 v%d, s%d, v%d" % (tx1, sX, vX1))
a("v_add_u32 v%d, s%d, v%d" % (tx3, sX, vX3))
ds("ds_read_u16 v%d, v%d" % (xo, tx1))
ds("ds_read_u16 v%d, v%d offset:8" % (xo + 1, tx1))
ds("ds_read_u16 v%d, v%d" % (xo + 2, tx3))
SLOT = [STG, STG + 4, STG + 8, STG + 12, SET, SET + 4, SET + 8, SET + 12]


def lfrag(n):
    ds("ds_read_b128 %s, v%d offset:%d" % (V(SLOT[n % 8], 4), tLW, n * 1024), "lf%d" % n)


for n in range(4):
    lfrag(n)
wait_lg()
for r in range(3):
    a("v_lshlrev_b32 v%d, 16, v%d" % (xo + r, xo + r))
if P["TCH"]:
    a("v_lshrrev_b32 v%d, 2, v%d" % (AF, vL4))
    a("v_and_b32 v%d, 32, v%d" % (AF + 1, AF))
    a("v_add_u32 v%d, v%d, v%d" % (AF, AF, AF + 1))
    a("v_mul_u32_u24 v%d, 1280, v%d" % (AF, AF))
    a("s_mov_b32 s21, 0")
a.label("HA_L")
a("buffer_load_dwordx2 %s, v%d, %s, s%d offen sc1" % (V(SET + 14, 2), vML, S(WS, 4), sHA))
for p in range(7):
    a("buffer_load_dwordx2 %s, v%d, %s, s%d offen offset:%d sc1" % (V(SET + 2 * p, 2), vL8, S(WS, 4), sHA, p * 512))
ml = SET + 14
a("s_waitcnt vmcnt(7)")
a("v_max_f32_dpp v%d, v%d, v%d %s %s" % (cM, ml, ml, QP[0], DPPM))
a("v_mul_f32 v%d, v%d, v%d" % (cL, ml + 1, vM01))
a("v_max_f32_dpp v%d, v%d, v%d %s %s" % (cM, cM, cM, QP[1], DPPM))
a("v_max_f32_dpp v%d, v%d, v%d %s %s" % (cM, cM, cM, QP[2], DPPM))
a("v_sub_f32 v%d, v%d, v%d" % (cW, ml, cM))
a("v_exp_f32 v%d, v%d" % (cW, cW))
a("v_mul_f32 v%d, v%d, v%d" % (cL, cL, cW))
a("s_waitcnt vmcnt(0)")
lsum = ["v_add_f32_dpp v%d, v%d, v%d %s %s" % (cL, cL, cL, q, DPPM) for q in QP[:3]]
for p in range(7):
    for c in range(2):
        d = cA + 2 * (p & 1) + c
        op = "v_mul_f32_dpp" if p < 2 else "v_fmac_f32_dpp"
        a("%s v%d, v%d, v%d row_newbcast:%d %s" % (op, d, cW, SET + 2 * p + c, p, DPPM))
    if p in (0, 2, 4):
        a(lsum[p // 2])
    if p == 5:
        a("v_rcp_f32 v%d, v%d" % (cL, cL))
pk(cA, cA, cA + 2)
a("v_mul_f32 v%d, v%d, v%d" % (cA, cA, cL))
a("v_mul_f32 v%d, v%d, v%d" % (cA + 1, cA + 1, cL))
a("v_cmp_u_f32 vcc, v%d, v%d" % (cA, cA + 1))
a("v_cvt_pk_bf16_f32 v%d, v%d, v%d" % (cA, cA, cA + 1))
rawbr("s_cbranch_vccz HA_P")
exact_check(range(SET, SET + 16), cX)
a("s_cbranch_vccz HA_P")
if P["TCH"]:
    budget("HA_P", None)
    a("s_add_u32 s21, s21, 1")
    a("s_and_b32 s%d, s21, %d" % (sT, P["TCH"] - 1))
    a("s_cmp_lg_u32 s%d, 1" % sT)
    a("s_cbranch_scc1 HA_L")
    for m_ in range(2):
        for o in (0, 128, 256, 316):
            a("buffer_load_dword v%d, v%d, %s, s%d offen offset:%d" % (AF + 1, AF, S(WOS[m_], 4), sWF, o))
    a("s_branch HA_L")
else:
    budget("HA_P", "HA_L")
a.label("HA_P")
stamp()
ds("ds_write_b32 v%d, v%d" % (vOw, cA))
for k in range(4):
    ds("ds_read_b128 %s, v%d offset:%d" % (V(AF + 4 * k, 4), vOr, 64 * k), "af%d" % k)
for n in range(4, 8):
    lfrag(n)
ASL = [0, 1, 2, 3, 0, 1, 2, 3, 0, 1]


def ywrite(t):
    a("s_mov_b64 exec, 0xffff")
    if t < 8:
        o = 64 * (t // 4) + t % 4
        ds("ds_write2_b32 v%d, v%d, v%d offset0:%d offset1:%d" % (vY1, AC + 4 * ASL[t], AC + 4 * ASL[t + 1], o, o + 1))
    else:
        ds("ds_write2_b32 v%d, v%d, v%d offset0:128 offset1:129" % (vY2, AC + 4 * ASL[t], AC + 4 * ASL[t + 1]))
    a("s_mov_b64 exec, -1")


for i in range(40):
    t, k = i // 4, i % 4
    D = AC + 4 * ASL[t]
    wait_lg("af%d" % k)
    if in_lds(i):
        n = i // 2
        wait_lg("lf%d" % n)
        src = SLOT[n % 8]
    else:
        src = greg(i)
    mfma(D, AF + 4 * k, src, "0" if k == 0 else V(D, 4))
    if in_lds(i) and i // 2 + 8 < 19:
        lfrag(i // 2 + 8)
    if i in (13, 21, 29, 37):
        ywrite((i - 13) // 4)
ywrite(8)
wait_lg()
fstamp()
a("s_barrier")
fstamp()
a("s_cmp_lg_u32 s%d, 0" % sWv)
rawbr("s_cbranch_scc1 HB_W")
YR = SET
a("s_mov_b32 exec_hi, 0xff")
for w_ in range(4):
    a("ds_read_b128 %s, v%d offset:%d" % (V(YR + 4 * w_, 4), vY1, 640 * w_))
a("s_waitcnt lgkmcnt(2)")
pk(YR, YR, YR + 4); pk(YR + 2, YR + 2, YR + 6)
a("s_waitcnt lgkmcnt(0)")
pk(YR + 8, YR + 8, YR + 12); pk(YR + 10, YR + 10, YR + 14)
pk(YR, YR, YR + 8); pk(YR + 2, YR + 2, YR + 10)
for r in range(4):
    a("v_min_u32 v%d, -2, v%d" % (YR + r, YR + r))
a("buffer_store_dwordx4 %s, v%d, %s, s%d offen sc1" % (V(YR, 4), vL16, S(WS, 4), sHBm))
a("s_mov_b64 exec, -1")
rawbr("s_branch HB_0")
a.label("HB_W")
if P["HBW"]:
    a.comment("poll back-off (wave 0 spends this time reducing and publishing)")
    a("s_sleep %d" % P["HBW"])
a.label("HB_0")
fstamp()
a("s_and_b32 s%d, s%d, 3" % (sT, sP))
a("s_cmp_eq_u32 s%d, 3" % sT)
rawbr("s_cbranch_scc1 L_FINAL")
a.label("HB_L")
NS = P["HBS"]
T = AF
UB = G if NS > 1 else AF + 10


def hb_issue(k):
    for p in range(2):
        U = UB + 20 * k + 10 * p
        a("buffer_load_dwordx4 %s, v%d, %s, s%d offen offset:%d sc1" % (V(U, 4), vHa, S(WS, 4), sHB, p * 640))
        a("buffer_load_dwordx4 %s, v%d, %s, s%d offen offset:%d sc1" % (V(U + 4, 4), vHa, S(WS, 4), sHB, p * 640 + 256))
        a("buffer_load_dwordx2 %s, v%d, %s, s%d offen offset:%d sc1" % (V(U + 8, 2), vHc, S(WS, 4), sHB, p * 640))


if NS > 1:
    a("s_mov_b32 s%d, 2" % sGty)
if P["HBD"]:
    a.comment("back-off before the first poll: polling at once only caches the still-empty lines and makes the hand-off slower")
    a("s_sleep %d" % P["HBD"])
for k in range(NS):
    if k and P["HBSL"]:
        a("s_sleep %d" % P["HBSL"])
    hb_issue(k)
a.label("HB_R")
for k in range(NS):
    U0 = UB + 20 * k
    a("s_waitcnt vmcnt(%d)" % (6 * (NS - 1)))
    for r in range(0, 10, 2):
        pk(T + r, U0 + r, U0 + 10 + r)
    for r in (0, 2, 4, 6, 8):
        a("v_permlane32_swap_b32 v%d, v%d" % (T + r, T + r + 1))
    for r in (8, 0, 2, 4, 6):
        a("v_add_f32 v%d, v%d, v%d" % (T + r, T + r, T + r + 1))
        if r == 8:
            a("v_mov_b32 v%d, v%d" % (T + 9, T + 8))
    a("v_permlane16_swap_b32 v%d, v%d" % (T + 8, T + 9))
    a("v_permlane16_swap_b32 v%d, v%d" % (T, T + 2))
    a("v_permlane16_swap_b32 v%d, v%d" % (T + 4, T + 6))
    a("v_add_f32 v%d, v%d, v%d" % (T + 8, T + 8, T + 9))
    a("v_add_f32 v%d, v%d, v%d" % (T, T, T + 2))
    a("v_add_f32 v%d, v%d, v%d" % (T + 4, T + 4, T + 6))
    a("v_add_f32 v%d, v%d, v%d" % (T + 9, T + 8, T))
    a("v_cmp_u_f32 vcc, v%d, v%d" % (T + 9, T + 4))
    rawbr("s_cbranch_vccz HB_P")
    exact_check(range(U0, U0 + 20), cX)
    a("s_cbranch_vccz HB_P")
    budget("HB_P", None)
    hb_issue(k)
a("s_branch HB_R")
a.label("HB_P")
if DIAG != 2:
    stamp()
a("v_cvt_pk_bf16_f32 v%d, v%d, v%d" % (T + 8, T + 8, T + 8))
a("v_cvt_pk_bf16_f32 v%d, v%d, v%d" % (T, T, T + 4))
a("v_lshlrev_b32 v%d, 16, v%d" % (T + 8, T + 8))
a("v_lshlrev_b32 v%d, 16, v%d" % (T + 1, T))
a("v_and_b32 v%d, 0xffff0000, v%d" % (T + 2, T))
a("v_add_f32 v%d, v%d, v%d" % (T + 8, T + 8, xo + 2))
a("v_add_f32 v%d, v%d, v%d" % (T + 1, T + 1, xo))
a("v_add_f32 v%d, v%d, v%d" % (T + 2, T + 2, xo + 1))
a("v_cvt_pk_bf16_f32 v%d, v%d, v%d" % (cA + 1, T + 8, T + 8))
a("v_cvt_pk_bf16_f32 v%d, v%d, v%d" % (cA, T + 1, T + 2))
a("s_cmp_eq_u32 s%d, 16" % sN)
rawbr("s_cbranch_scc1 L_OUT")
a("ds_write_b16 v%d, v%d" % (tx3, cA + 1))
a("ds_write_b16 v%d, v%d" % (tx1, cA))
a("ds_write_b16_d16_hi v%d, v%d offset:8" % (tx1, cA))
wq_pre()
a("s_waitcnt lgkmcnt(0)")
fstamp()
a("s_barrier")
fstamp()
if P["EGB"]:
    a("s_add_u32 s%d, s%d, 1" % (sT, sN))
    a("s_lshl_b32 s%d, s%d, 2" % (sT, sT))
    a("s_lshr_b64 s[16:17], s[18:19], s%d" % sT)
    a("s_and_b32 s20, s16, 1")
    a("s_mov_b32 s%d, 2" % sMode)
    a("s_mov_b32 s%d, 3" % sGty)
a("s_call_b64 %s, R_WQ2" % S(RA, 2))
a("s_mov_b32 s%d, 0" % sMode)
stamp()
a("s_add_u32 s%d, s%d, 1" % (sN, sN))
a("s_branch L_CH")
a.label("L_FINAL")
a("s_barrier")
stamp()
a("s_add_u32 s%d, s%d, 1" % (sN, sN))
a("s_cmp_lt_u32 s%d, 16" % sN)
a("s_cbranch_scc1 L_CH")
a("s_cmp_gt_u32 s%d, 3" % sH)
a("s_cbranch_scc1 L_FIN")
a("s_cmp_eq_u32 s%d, 3" % sH)
a("s_cbranch_scc1 HB_L")
a("s_lshl_b32 s%d, s%d, 2" % (sT, sH))
a("s_add_u32 s%d, s%d, 3" % (sT, sT))
a("s_mul_i32 s%d, s%d, %d" % (sT, sT, PH))
a("s_add_u32 s%d, s%d, s%d" % (sHB, sT, sHBo))
a("s_mul_i32 s%d, s%d, 1280" % (sX, sH))
a("v_add_u32 v%d, s%d, v%d" % (tx1, sX, vX1))
a("v_add_u32 v%d, s%d, v%d" % (tx3, sX, vX3))
a("ds_read_u16 v%d, v%d" % (xo, tx1))
a("ds_read_u16 v%d, v%d offset:8" % (xo + 1, tx1))
a("ds_read_u16 v%d, v%d" % (xo + 2, tx3))
a("s_waitcnt lgkmcnt(0)")
for r in range(3):
    a("v_lshlrev_b32 v%d, 16, v%d" % (xo + r, xo + r))
a("s_branch HB_L")
a.label("L_OUT")
a("buffer_store_short v%d, v%d, %s, s%d offen" % (cA + 1, vX3, S(OUT, 4), sX))
a("buffer_store_short v%d, v%d, %s, s%d offen" % (cA, vX1, S(OUT, 4), sX))
a("buffer_store_short_d16_hi v%d, v%d, %s, s%d offen offset:8" % (cA, vX1, S(OUT, 4), sX))
a("s_branch L_FIN")

a.label("R_WQ")
lgq.clear()
wq_pre()
a.label("R_WQ2")
NPRE = 7
for k in range(3):
    ds("ds_read_b128 %s, v%d offset:%d" % (V(SLOT[k % 8], 4), ta, 64 * k), "xf%d" % k)
a("s_cmp_eq_u32 s%d, 0" % sTy)
rawbr("s_cbranch_scc1 WQ_B")
lg_save = list(lgq)


def stats_ops():
    ops = []
    for r in range(5):
        ops.append("v_dot2c_f32_bf16 v%d, v%d, v%d" % (s2, XS + r, XS + r))
        ops.append("v_dot2c_f32_bf16 v%d, v%d, v%d" % (s1, XS + r, one))
    ops += [
        "v_permlane32_swap_b32 v%d, v%d" % (s2, s1),
        "v_add_f32 v%d, v%d, v%d" % (s2, s2, s1),
        "v_mov_b32 v%d, v%d" % (s1, s2),
        "v_permlane16_swap_b32 v%d, v%d" % (s2, s1),
        "v_add_f32 v%d, v%d, v%d" % (s2, s2, s1),
    ]
    for q in QP:
        ops.append("v_add_f32_dpp v%d, v%d, v%d %s %s" % (s2, s2, s2, q, DPPM))
    ops += [
        "v_mul_f32 v%d, 0x%08x, v%d" % (s2, f32(1.0 / 640), s2),
        "v_mov_b32 v%d, v%d" % (s1, s2),
        "v_permlane32_swap_b32 v%d, v%d" % (s2, s1),
        "v_fma_f32 v%d, -v%d, v%d, v%d" % (s2, s1, s1, s2),
        "v_max_f32 v%d, 0, v%d" % (s2, s2),
        "v_cvt_pk_bf16_f32 v%d, v%d, v%d" % (s2, s1, s2),
        "v_lshlrev_b32 v%d, 16, v%d" % (s1, s2),
        "v_and_b32 v%d, 0xffff0000, v%d" % (s2, s2),
        "v_add_f32 v%d, 0x%08x, v%d" % (s2, f32(1e-5), s2),
        "v_cvt_pk_bf16_f32 v%d, v%d, v%d" % (s2, s2, s2),
        "v_and_b32 v%d, 0xffff0000, v%d" % (s2, s2),
        "v_sqrt_f32 v%d, v%d" % (s2, s2),
        "v_cvt_pk_bf16_f32 v%d, v%d, v%d" % (s2, s2, s2),
        "v_and_b32 v%d, 0xffff0000, v%d" % (s2, s2),
        "v_rcp_f32 v%d, v%d" % (s2, s2),
    ]
    return ops


for mat in (0, 1):
    if mat == 1:
        a.label("WQ_B")
        lgq[:] = lg_save
    for k in range(3, NPRE):
        ds("ds_read_b128 %s, v%d offset:%d" % (V(SLOT[k % 8], 4), ta, 64 * k), "xf%d" % k)
    ds("ds_read2st64_b32 %s, v%d offset0:0 offset1:1" % (V(XS, 2), ts))
    ds("ds_read2st64_b32 %s, v%d offset0:2 offset1:3" % (V(XS + 2, 2), ts))
    ds("ds_read_b32 v%d, v%d offset:1024" % (XS + 4, ts), "xs")
    so = stats_ops() + ["v_mul_f32 v%d, v%d, v%d" % (s1, s1, s2),
                        "v_mul_f32 v%d, v%d, v%d" % (XS, s1, vC + 2 * mat),
                        "v_mul_f32 v%d, v%d, v%d" % (XS + 1, s1, vC + 2 * mat + 1)]
    for k in range(20):
        if k < 3 or k % 2 == 0:
            wait_lg("xf%d" % min(19, k + (1 if k >= 3 else 0)))
        wait_lg("xf%d" % k)
        for ct in range(2):
            mfma(DQ + 4 * ct, SLOT[k % 8], WQF(mat, k, ct), "0" if k == 0 else V(DQ + 4 * ct, 4))
            if ct == 1 and k + NPRE < 20:
                ds("ds_read_b128 %s, v%d offset:%d" % (V(SLOT[(k + NPRE) % 8], 4), ta, 64 * (k + NPRE)), "xf%d" % (k + NPRE))
            if k >= 3:
                if k == 3 and ct == 0:
                    wait_lg("xs")
                for _ in range(2 if k >= 13 else 1):
                    if so:
                        a(so.pop(0))
    for op in so:
        a(op)
    Cr = vC + 2 * mat
    lab = a.newlabel("WQC")
    a("s_cmp_eq_u32 s%d, 1" % sMode)
    rawbr("s_cbranch_scc1 %s" % lab)
    a("s_mov_b64 exec, 0xffff")
    a("s_cmp_eq_u32 s%d, 0" % sLoc)
    a("v_fma_f32 v%d, v%d, v%d, -v%d" % (DQ, DQ, s2, XS))
    a("v_fma_f32 v%d, v%d, v%d, -v%d" % (DQ + 4, DQ + 4, s2, XS + 1))
    a("v_cvt_pk_bf16_f32 v%d, v%d, v%d" % (DQ, DQ, DQ + 4))
    a("v_min_u32 v%d, -2, v%d" % (DQ, DQ))
    lab2 = a.newlabel("QLOC")
    rawbr("s_cbranch_scc1 %s" % lab2)
    a("buffer_store_dword v%d, v%d, %s, s%d offen" % (DQ, vL4, S(WS, 4), sHC))
    a("s_mov_b64 exec, -1")
    a("s_setpc_b64 %s" % S(RA, 2))
    a.label(lab2)
    a("buffer_store_dword v%d, v%d, %s, s%d offen sc1" % (DQ, vL4, S(WS, 4), sHC))
    a("s_mov_b64 exec, -1")
    a("s_setpc_b64 %s" % S(RA, 2))
    a.label(lab)
    a.nop(8)
    a("v_mov_b32 v%d, v%d" % (Cr, DQ))
    a("v_mov_b32 v%d, v%d" % (Cr + 1, DQ + 4))
    a("s_setpc_b64 %s" % S(RA, 2))

a.label("L_FIN")
if DIAG:
    stamp()
    a("v_mbcnt_lo_u32_b32 v1, -1, 0")
    a("v_mbcnt_hi_u32_b32 v1, -1, v1")
    a("v_lshlrev_b32 v1, 2, v1")
    a("s_lshl_b32 s%d, s%d, 3" % (sT, sH))
    a("s_add_u32 s%d, s%d, s%d" % (sT, sT, sS))
    a("s_lshl_b32 s%d, s%d, 2" % (sT, sT))
    a("s_add_u32 s%d, s%d, s%d" % (sT, sT, sWv))
    a("s_lshl_b32 s%d, s%d, 8" % (sT, sT))
    a("s_add_u32 s%d, s%d, 0x%x" % (sT, sT, WS_DIAG))
    a("buffer_store_dword v0, v1, %s, s%d offen" % (S(WS, 4), sT))
a.label("L_END")
a("s_endpgm")

DESIGN = """
"""
ref = open(os.path.join(os.path.dirname(__file__), "..", "cdna_kernels", NAME + ".s.ref")).read().splitlines()
head = [l for l in ref if l.startswith(";") and "@launch" not in l and not l.startswith("; Override") and not l.startswith("; grid=")]
out = "\n".join(head) + DESIGN
out += "; @launch grid=(256,1,1) block=(256,1,1) lds=%d\n" % LDS_BYTES
out += '.amdgcn_target "amdgcn-amd-amdhsa--gfx950"\n.text\n.globl %s_kernel\n.p2align 8\n.type %s_kernel,@function\n%s_kernel:\n' % (NAME, NAME, NAME)
if P["ALN"]:
    import align
    a.lines = align.run(a.lines, NAME + "_kernel")
out += a.text()
out += """.section .rodata,"a"
.p2align 6
.amdhsa_kernel %s_kernel
  .amdhsa_next_free_vgpr 512
  .amdhsa_next_free_sgpr 102
  .amdhsa_accum_offset 256
  .amdhsa_group_segment_fixed_size 0
  .amdhsa_kernarg_size 104
  .amdhsa_user_sgpr_count 2
  .amdhsa_user_sgpr_kernarg_segment_ptr 1
  .amdhsa_system_sgpr_workgroup_id_x 1
  .amdhsa_float_denorm_mode_32 3
.end_amdhsa_kernel
""" % NAME
open(sys.argv[1], "w").write(out)
print("wrote", sys.argv[1], len(a.lines), "lines")
```
